```python
import torch

def _softmax(x, axis=-1):
    return torch.softmax(x, dim=axis)
def _gelu(x):
    return torch.nn.functional.gelu(x, approximate="tanh")
def _silu(x):
    return torch.nn.functional.silu(x)
def _sigmoid(x):
    return torch.sigmoid(x)
def _layernorm(x, axis=-1, eps=1e-5):
    m = x.mean(dim=axis, keepdim=True)
    v = x.var(dim=axis, keepdim=True, unbiased=False)
    return (x - m) / torch.sqrt(v + eps)
def _scatter_add(tgt, idx, src, axis=0):
    return tgt.clone().index_add_(axis, idx, src)
def _segment_sum(src, seg, n):
    out = torch.zeros((n,) + src.shape[1:], dtype=src.dtype)
    return out.index_add_(0, seg, src)
def _pad(x, pw):
    flat = tuple(v for pair in reversed(pw) for v in pair)
    return torch.nn.functional.pad(x, flat)

kernel_name = 'interleave_layers__sliding_local_dilated__moe_arch_mod__prompt'

def setup_inputs():

    _w = (lambda a: (lambda t: t.to(torch.bfloat16) if t.is_floating_point() else t)(torch.as_tensor(a)))
    def _A_setup():
        B, S, D = 1, 2048, 512
        return {
            "x": _w((lambda *s: torch.randn(*s, dtype=torch.bfloat16) * 0.05)(B, S, D)),
            "wqkv": _w((lambda *s: torch.randn(*s, dtype=torch.bfloat16) * 0.05)(D, 3 * D)),
            "wo": _w((lambda *s: torch.randn(*s, dtype=torch.bfloat16) * 0.05)(D, D)),
        }
    _A_in = _A_setup()

    def _B_setup():
        B, S, D, F, C = 1, 2048, 512, 1792, 8
        return {
            "x": _w((lambda *s: torch.randn(*s, dtype=torch.bfloat16) * 0.05)(B, S, D)),
            "w_r": _w((lambda *s: torch.randn(*s, dtype=torch.bfloat16) * 0.05)(D)),
            "w_gate": _w((lambda *s: torch.randn(*s, dtype=torch.bfloat16) * 0.05)(D, F)),
            "w_up": _w((lambda *s: torch.randn(*s, dtype=torch.bfloat16) * 0.05)(D, F)),
            "w_down": _w((lambda *s: torch.randn(*s, dtype=torch.bfloat16) * 0.05)(F, D)),
        }
    _B_in = _B_setup()

    return {
        "A_x": _A_in["x"],
        "A_wqkv": _A_in["wqkv"],
        "A_wo": _A_in["wo"],
        "B_x": _B_in["x"],
        "B_w_r": _B_in["w_r"],
        "B_w_gate": _B_in["w_gate"],
        "B_w_up": _B_in["w_up"],
        "B_w_down": _B_in["w_down"],
    }

def reference(A_x, A_wqkv, A_wo, B_x, B_w_r, B_w_gate, B_w_up, B_w_down):
    def _A_ref(x, wqkv, wo):
        B, S, D = x.shape
        H = 32; Dh = D // H
        W, dil = 8, 2
        qkv = (lambda x, *d: x.permute(*d))((x @ wqkv).reshape(B, S, 3, H, Dh), 2, 0, 3, 1, 4)
        q, k, v = qkv[0], qkv[1], qkv[2]
        scale = Dh ** -0.5
        pos = torch.arange(S)
        off = torch.arange(W) * dil
        idx = pos[:, None] - off[None, :]
        mask = idx >= 0
        idx_c = torch.where(mask, idx, 0).reshape(-1)
        kg = k[:, :, idx_c, :].reshape(B, H, S, W, Dh)
        vg = v[:, :, idx_c, :].reshape(B, H, S, W, Dh)
        logits = torch.einsum("bhsd,bhswd->bhsw", q, kg) * scale
        logits = torch.where(mask[None, None, :, :], logits, -1e9)
        attn = _softmax(logits, axis=-1)
        o = torch.einsum("bhsw,bhswd->bhsd", attn, vg)
        return (lambda x, *d: x.permute(*d))(o, 0, 2, 1, 3).reshape(B, S, D) @ wo

    def _B_ref(x, w_r, w_gate, w_up, w_down):
        B, S, D = x.shape
        C = 8
        r = x @ w_r
        idx = torch.argsort(-r, axis=-1)[:, :C]
        idx_e = (lambda x, n, axis: torch.repeat_interleave(x, n, dim=axis))(idx.reshape(B, C, 1), D, axis=2)
        x_sel = (lambda x, i, axis: torch.take_along_dim(x, i, dim=axis))(x, idx_e, axis=1)
        g = _silu(x_sel @ w_gate)
        u = x_sel @ w_up
        y = (g * u) @ w_down
        r_sel = _sigmoid((lambda x, i, axis: torch.take_along_dim(x, i, dim=axis))(r, idx, axis=1))
        y = y * r_sel.reshape(B, C, 1)
        b_off = (torch.arange(B) * S).reshape(B, 1)
        flat_idx = (idx + b_off).reshape(B * C)
        zero = (x * 0.0).reshape(B * S, D)
        upd = _scatter_add(zero, flat_idx, y.reshape(B * C, D), axis=0)
        return x + upd.reshape(B, S, D)

    x = A_x
    x = x + _A_ref(_layernorm(x, axis=-1), A_wqkv, A_wo)
    x = x + _B_ref(_layernorm(x, axis=-1), B_w_r, B_w_gate, B_w_up, B_w_down)
    x = x + _A_ref(_layernorm(x, axis=-1), A_wqkv, A_wo)
    x = x + _B_ref(_layernorm(x, axis=-1), B_w_r, B_w_gate, B_w_up, B_w_down)
    return x
```

```python
import sys

MB = 1 << 20
O_OFF = 0
X1_OFF = 2 * MB
X2_OFF = 4 * MB
ST_OFF = [6 * MB, 6 * MB + 65536]
SEL_OFF = [6 * MB + 131072, 6 * MB + 131072 + 256]
XS_OFF = [6 * MB + 196608, 6 * MB + 196608 + 8192]
H_OFF = [6 * MB + 262144, 6 * MB + 262144 + 32768]

ONES_BF = 0x3F803F80
LOG2E = 1.4426950408889634


import struct
def f2u(f):
    return struct.unpack("<I", struct.pack("<f", f))[0]


class Asm:
    def __init__(self):
        self.L = []

    def __call__(self, s):
        for line in s.strip("\n").split("\n"):
            self.L.append("    " + line.strip())

    def label(self, s):
        self.L.append(s + ":")

    def raw(self, s):
        self.L.append(s)

    def text(self):
        return "\n".join(self.L) + "\n"


def vr(b, n):
    return "v[%d:%d]" % (b, b + n - 1)


def ar(b, n):
    return "a[%d:%d]" % (b, b + n - 1)


def srd(a, d, lo, hi, off, size):
    if off:
        a("s_add_u32 s%d, s%d, 0x%x" % (d, lo, off))
        a("s_addc_u32 s%d, s%d, 0" % (d + 1, hi))
    else:
        a("s_mov_b32 s%d, s%d" % (d, lo))
        a("s_mov_b32 s%d, s%d" % (d + 1, hi))
    a("s_mov_b32 s%d, 0x%x" % (d + 2, size))
    a("s_mov_b32 s%d, 0x00020000" % (d + 3))


def bfly(a, op, regs, tmps):
    for sw in ("v_permlane16_swap_b32", "v_permlane32_swap_b32"):
        for r, t in zip(regs, tmps):
            a("v_mov_b32 v%d, v%d" % (t, r))
        a("s_nop 1")
        for r, t in zip(regs, tmps):
            a("%s v%d, v%d" % (sw, r, t))
        a("s_nop 0")
        for r, t in zip(regs, tmps):
            a("%s v%d, v%d, v%d" % (op, r, r, t))


def rbf(a, r, t=None):
    a("v_cvt_pk_bf16_f32 v%d, v%d, v%d" % (r, r, r))
    a("v_lshlrev_b32 v%d, 16, v%d" % (r, r))


def ln_finalize(a, vs, vq, vm, vinv, vden, sconst):
    a("v_mul_f32 v%d, s%d, v%d" % (vm, sconst["r512"], vs))
    a("v_mul_f32 v%d, s%d, v%d" % (vden, sconst["r512"], vq))
    a("v_fma_f32 v%d, -v%d, v%d, v%d" % (vden, vm, vm, vden))
    a("v_max_f32 v%d, 0, v%d" % (vden, vden))
    rbf(a, vm)
    rbf(a, vden)
    a("v_add_f32 v%d, s%d, v%d" % (vden, sconst["eps"], vden))
    rbf(a, vden)
    a("v_sqrt_f32 v%d, v%d" % (vden, vden))
    a("s_nop 0")
    rbf(a, vden)
    a("v_rcp_f32 v%d, v%d" % (vinv, vden))
    a("s_nop 0")


def kdesc(name, vgpr, agpr, sgpr=102):
    acc = (vgpr + 3) // 4 * 4
    nfv = acc + agpr if agpr else vgpr
    return """.section .rodata,"a"
.p2align 6
.amdhsa_kernel %s
  .amdhsa_next_free_vgpr %d
  .amdhsa_next_free_sgpr %d
  .amdhsa_accum_offset %d
  .amdhsa_group_segment_fixed_size 0
  .amdhsa_kernarg_size 88
  .amdhsa_user_sgpr_count 2
  .amdhsa_user_sgpr_kernarg_segment_ptr 1
  .amdhsa_system_sgpr_workgroup_id_x 1
.end_amdhsa_kernel
""" % (name, nfv, sgpr, acc)


def khead(a, name):
    a.raw(".text")
    a.raw(".globl %s" % name)
    a.raw(".p2align 8")
    a.raw(".type %s,@function" % name)
    a.label(name)


K1_CT = 16384 + 64
K1_CS = 0
K1_VS = 2048
K1_W0 = 4096
K1_LDS = K1_W0 + 6 * K1_CT


def gen_k1(layer):
    a = Asm()
    name = "k1l%d_kernel" % layer
    khead(a, name)
    a("s_cmp_ge_u32 s2, 256")
    a("s_cbranch_scc1 L_%s_end" % name)
    a("s_load_dwordx4 s[20:23], s[0:1], 0")
    a("s_load_dwordx2 s[24:25], s[0:1], 80")
    a("""
    s_and_b32 s3, s2, 7
    s_lshr_b32 s26, s2, 3
    s_and_b32 s27, s3, 3
    s_lshl_b32 s27, s27, 2
    s_and_b32 s30, s26, 3
    s_add_u32 s27, s27, s30
    s_lshr_b32 s28, s3, 2
    s_lshl_b32 s28, s28, 3
    s_lshr_b32 s30, s26, 2
    s_add_u32 s28, s28, s30
    v_lshrrev_b32 v1, 6, v0
    s_nop 0
    v_readfirstlane_b32 s29, v1
    v_and_b32 v1, 63, v0
    """)
    a("""
    s_lshl_b32 s30, s27, 7
    s_lshl_b32 s31, s29, 5
    s_add_u32 s30, s30, s31
    s_sub_u32 s30, s30, 16
    s_lshl_b32 s31, s30, 10
    v_and_b32 v2, 15, v1
    v_lshlrev_b32 v2, 10, v2
    v_lshrrev_b32 v3, 4, v1
    v_lshl_add_u32 v2, v3, 4, v2
    v_add_u32 v2, s31, v2
    v_add_u32 v3, 0x4000, v2
    v_add_u32 v4, 0x8000, v2
    """)
    a("""
    v_lshrrev_b32 v8, 2, v0
    v_mul_u32_u24 v5, 3072, v8
    v_and_b32 v9, 3, v0
    v_lshl_add_u32 v5, v9, 4, v5
    v_and_b32 v10, 0x33, v8
    v_and_b32 v11, 4, v8
    v_lshl_or_b32 v10, v11, 1, v10
    v_and_b32 v11, 8, v8
    v_lshrrev_b32 v11, 1, v11
    v_or_b32 v10, v10, v11
    v_lshlrev_b32 v6, 5, v10
    v_and_b32 v11, 1, v9
    v_lshl_add_u32 v6, v11, 4, v6
    v_lshrrev_b32 v11, 1, v9
    v_mul_u32_u24 v11, %d, v11
    v_add_u32 v6, v6, v11
    v_add_u32 v6, %d, v6
    v_add_u32 v7, %d, v6
    """ % (K1_CT, K1_W0, 4 * K1_CT))
    a("""
    v_lshrrev_b32 v10, 5, v1
    v_lshlrev_b32 v8, 4, v10
    v_bfe_u32 v10, v1, 4, 1
    v_lshl_add_u32 v8, v10, 2, v8
    v_bfe_u32 v10, v1, 2, 2
    v_add_u32 v8, v8, v10
    v_lshlrev_b32 v8, 5, v8
    v_and_b32 v10, 3, v1
    v_lshl_add_u32 v8, v10, 3, v8
    v_add_u32 v8, %d, v8
    v_add_u32 v9, %d, v8
    """ % (K1_W0, 3 * K1_CT))
    for r in range(10, 16):
        a("v_mov_b32 v%d, 0" % r)
    for r in range(64, 88):
        a("v_accvgpr_write_b32 a%d, 0" % r)
    a("v_mov_b32 v16, 0x%x" % ONES_BF)
    for r in range(88, 92):
        a("v_accvgpr_write_b32 a%d, v16" % r)
    a("s_mov_b32 s33, 0x%x" % ONES_BF)
    a("s_lshl_b32 s32, s28, 6")
    a("s_waitcnt lgkmcnt(0)")
    if layer == 0:
        srd(a, 4, 20, 21, 0, 2 * MB)
    else:
        srd(a, 4, 24, 25, X2_OFF, 2 * MB)
    srd(a, 8, 22, 23, 0, 512 * 3072)
    srd(a, 12, 24, 25, O_OFF, 2 * MB)
    srd(a, 16, 24, 25, ST_OFF[layer], 32768)

    def issue_w(c):
        for i in range(6):
            seg = i >> 1
            off = (128 * c + 64 * (i & 1)) * 3072 + seg * 1024
            a("s_add_u32 s34, s32, 0x%x" % off)
            a("buffer_load_dwordx4 %s, v5, s[8:11], s34 offen" % ar(96 + 24 * c + 4 * i, 4))

    def issue_a(c):
        for s in range(4 * c, 4 * c + 4):
            for t, vo in enumerate((2, 3, 4)):
                a("buffer_load_dwordx4 %s, v%d, s[4:7], 0 offen offset:%d" % (vr(64 + 64 * t + 4 * s, 4), vo, s * 64))

    def write_w(c):
        for i in range(6):
            seg = i >> 1
            off = (128 * c + 64 * (i & 1)) * 32
            if seg < 2:
                a("ds_write_b128 v6, %s offset:%d" % (ar(96 + 24 * c + 4 * i, 4), off + seg * 2 * K1_CT))
            else:
                a("ds_write_b128 v7, %s offset:%d" % (ar(96 + 24 * c + 4 * i, 4), off))

    def read_b(s):
        base = 16 + 24 * (s & 1)
        for ct in range(6):
            vb = 8 if ct < 3 else 9
            off = (ct % 3) * K1_CT + s * 1024
            a("ds_read_b64_tr_b16 %s, v%d offset:%d" % (vr(base + 4 * ct, 2), vb, off))
            a("ds_read_b64_tr_b16 %s, v%d offset:%d" % (vr(base + 4 * ct + 2, 2), vb, off + 256))

    for c in range(3):
        issue_w(c)
        issue_a(c)
    a("""
    v_lshlrev_b32 v16, 4, v0
    s_lshl_b32 s34, s2, 7
    v_add_u32 v16, s34, v16
    v_cmp_gt_u32 vcc, 8, v0
    v_mov_b32 v17, 0x7ffffff0
    s_nop 0
    v_cndmask_b32 v16, v17, v16, vcc
    v_mov_b32 v20, 0
    v_mov_b32 v21, 0
    v_mov_b32 v22, 0
    v_mov_b32 v23, 0
    buffer_store_dwordx4 v[20:23], v16, s[16:19], 0 offen
    """)
    a("s_waitcnt vmcnt(49)")
    write_w(0)
    a("s_waitcnt lgkmcnt(0)")
    a("s_barrier")
    read_b(0)
    for s in range(16):
        c = s >> 2
        a("s_waitcnt lgkmcnt(0)")
        if (s & 3) == 3 and c < 3:
            a("s_barrier")
        if s < 15:
            read_b(s + 1)
        if (s & 3) == 0:
            if c == 0:
                a("s_waitcnt vmcnt(37)")
            elif c == 1:
                a("s_waitcnt vmcnt(37)")
            elif c == 2:
                a("s_waitcnt vmcnt(19)")
            else:
                a("s_waitcnt vmcnt(0)")
        B = 16 + 24 * (s & 1)
        AP, A0, A1 = 64 + 4 * s, 128 + 4 * s, 192 + 4 * s
        first = (s == 0)
        mf = []
        for ti, A in enumerate((A0, A1)):
            for h in range(2):
                acc = 4 * (2 * ti + h)
                mf.append((acc, vr(B + 4 * h, 4), vr(A, 4)))
        for ti, A in enumerate((AP, A0, A1)):
            for h in range(2):
                acc = 16 + 4 * (2 * ti + h)
                mf.append((acc, vr(B + 8 + 4 * h, 4), vr(A, 4)))
        for ti, A in enumerate((AP, A0, A1)):
            for h in range(2):
                acc = 40 + 4 * (2 * ti + h)
                mf.append((acc, vr(A, 4), vr(B + 16 + 4 * h, 4)))
        dots = []
        for ti, A in enumerate((AP, A0, A1)):
            for r in range(4):
                dots.append("v_dot2_f32_bf16 v%d, v%d, s33, v%d" % (10 + 2 * ti, A + r, 10 + 2 * ti))
                dots.append("v_dot2_f32_bf16 v%d, v%d, v%d, v%d" % (11 + 2 * ti, A + r, A + r, 11 + 2 * ti))
        di = 0
        for mi, (acc, x, y) in enumerate(mf):
            cs = "0" if first else ar(acc, 4)
            a("v_mfma_f32_16x16x32_bf16 %s, %s, %s, %s" % (ar(acc, 4), x, y, cs))
            n = 2 if (mi & 1) == 0 else 1
            for _ in range(n):
                a(dots[di]); di += 1
        assert di == 24
        a("s_cmp_lg_u32 s29, %d" % (s & 3))
        a("s_cbranch_scc1 L_%s_cs%d" % (name, s))
        for ct in range(4):
            a("v_mfma_f32_16x16x32_bf16 %s, %s, a[88:91], %s" % (ar(64 + 4 * ct, 4), vr(B + 4 * ct, 4), ar(64 + 4 * ct, 4)))
        for ct in range(4, 6):
            a("v_mfma_f32_16x16x32_bf16 %s, a[88:91], %s, %s" % (ar(64 + 4 * ct, 4), vr(B + 4 * ct, 4), ar(64 + 4 * ct, 4)))
        a.label("L_%s_cs%d" % (name, s))
        if (s & 3) == 1 and c < 3:
            if c == 0:
                a("s_waitcnt vmcnt(31)")
            elif c == 1:
                a("s_waitcnt vmcnt(31)")
            else:
                a("s_waitcnt vmcnt(12)")
            write_w(c + 1)
            if c == 0:
                issue_w(3)
                issue_a(3)
    a("s_mov_b32 s40, 0x%x" % f2u(1.0 / 512))
    a("s_mov_b32 s41, 0x%x" % f2u(1e-5))
    sc = {"r512": 40, "eps": 41}
    a("s_nop 7")
    a("""
    v_lshrrev_b32 v22, 4, v1
    v_lshlrev_b32 v22, 4, v22
    s_lshl_b32 s34, s29, 8
    v_add_u32 v22, s34, v22
    v_and_b32 v23, 15, v1
    v_lshlrev_b32 v23, 2, v23
    s_lshl_b32 s34, s29, 7
    v_add_u32 v23, s34, v23
    s_nop 4
    """)
    for ct in range(4):
        a("ds_write_b128 v22, %s offset:%d" % (ar(64 + 4 * ct, 4), K1_CS + 64 * ct))
    for ct in range(2):
        a("ds_write_b32 v23, a%d offset:%d" % (80 + 4 * ct, K1_CS + 1024 + 64 * ct))
    bfly(a, "v_add_f32", list(range(10, 16)), list(range(24, 30)))
    for t in range(3):
        ln_finalize(a, 10 + 2 * t, 11 + 2 * t, 16 + 2 * t, 17 + 2 * t, 24, sc)
    a("""
    v_and_b32 v24, 15, v1
    v_lshlrev_b32 v24, 2, v24
    s_mul_i32 s34, s29, 384
    v_add_u32 v24, s34, v24
    v_lshrrev_b32 v25, 4, v1
    v_lshlrev_b32 v25, 4, v25
    v_add_u32 v25, s34, v25
    """)
    for t in range(3):
        a("ds_write_b32 v24, v%d offset:%d" % (16 + 2 * t, K1_VS + 128 * t))
        a("ds_write_b32 v24, v%d offset:%d" % (17 + 2 * t, K1_VS + 128 * t + 64))
    a("s_waitcnt lgkmcnt(0)")
    a("s_barrier")
    a("""
    v_lshrrev_b32 v22, 4, v1
    v_lshlrev_b32 v22, 4, v22
    v_and_b32 v23, 15, v1
    v_lshlrev_b32 v23, 2, v23
    """)
    for w in range(4):
        for ct in range(4):
            a("ds_read_b128 %s, v22 offset:%d" % (vr(104 + 16 * w + 4 * ct, 4), K1_CS + 256 * w + 64 * ct))
    for w in range(4):
        for ct in range(2):
            a("ds_read_b32 v%d, v23 offset:%d" % (168 + 2 * w + ct, K1_CS + 1024 + 128 * w + 64 * ct))
    for t in range(3):
        a("ds_read_b128 %s, v25 offset:%d" % (vr(44 + 8 * t, 4), K1_VS + 128 * t))
        a("ds_read_b128 %s, v25 offset:%d" % (vr(48 + 8 * t, 4), K1_VS + 128 * t + 64))
    a("s_waitcnt lgkmcnt(0)")
    for i in range(16):
        a("v_add_f32 v%d, v%d, v%d" % (24 + i, 104 + i, 120 + i))
        a("v_add_f32 v%d, v%d, v%d" % (136 + i, 136 + i, 152 + i))
        a("v_add_f32 v%d, v%d, v%d" % (24 + i, 24 + i, 136 + i))
    for ct in range(2):
        a("v_add_f32 v%d, v%d, v%d" % (40 + ct, 168 + ct, 170 + ct))
        a("v_add_f32 v%d, v%d, v%d" % (172 + ct, 172 + ct, 174 + ct))
        a("v_add_f32 v%d, v%d, v%d" % (40 + ct, 40 + ct, 172 + ct))
    def norm_qk(acc, cs, vm, vinv, dst):
        for r in range(4):
            a("v_accvgpr_read_b32 v%d, a%d" % (104 + r, acc + r))
        for r in range(4):
            a("v_fma_f32 v%d, -v%d, v%d, v%d" % (104 + r, vm, cs + r, 104 + r))
        for r in range(4):
            a("v_mul_f32 v%d, v%d, v%d" % (104 + r, vinv, 104 + r))
        a("v_cvt_pk_bf16_f32 v%d, v104, v105" % dst)
        a("v_cvt_pk_bf16_f32 v%d, v106, v107" % (dst + 1))

    for ti in range(2):
        for h in range(2):
            norm_qk(4 * (2 * ti + h), 24 + 4 * h, 18 + 2 * ti, 19 + 2 * ti, 72 + 2 * (2 * ti + h))
    for ti in range(3):
        for h in range(2):
            norm_qk(16 + 4 * (2 * ti + h), 32 + 4 * h, 16 + 2 * ti, 17 + 2 * ti, 80 + 2 * (2 * ti + h))
    for ti in range(3):
        for h in range(2):
            acc = 40 + 4 * (2 * ti + h)
            for r in range(4):
                a("v_accvgpr_read_b32 v%d, a%d" % (104 + r, acc + r))
            for r in range(4):
                a("v_fma_f32 v%d, -v%d, v%d, v%d" % (104 + r, 44 + 8 * ti + r, 40 + h, 104 + r))
            for r in range(4):
                a("v_mul_f32 v%d, v%d, v%d" % (104 + r, 48 + 8 * ti + r, 104 + r))
            d = 92 + 6 * h + 2 * ti
            a("v_cvt_pk_bf16_f32 v%d, v104, v105" % d)
            a("v_cvt_pk_bf16_f32 v%d, v106, v107" % (d + 1))
    a("""
    v_and_b32 v104, 15, v1
    v_lshrrev_b32 v105, 4, v1
    v_and_b32 v106, 1, v1
    v_lshl_add_u32 v105, v105, 2, v106
    v_cmp_eq_u32 s[44:45], 1, v106
    v_cmp_le_u32 s[46:47], v105, v104
    v_add_u32 v105, 2, v105
    v_cmp_le_u32 s[48:49], v105, v104
    v_lshlrev_b32 v106, 4, v106
    s_or_b32 s34, s27, s29
    s_cmp_eq_u32 s34, 0
    s_cselect_b32 s35, 0x%x, 0
    v_mov_b32 v107, s35
    v_mov_b32 v109, 0
    v_cndmask_b32 v108, v107, v109, s[46:47]
    v_cndmask_b32 v107, v107, v109, s[48:49]
    s_mov_b32 s42, 0x%x
    """ % (f2u(-1e30), f2u(0.25 * LOG2E)))
    for ti in range(2):
        for h in range(2):
            u = 2 * ti + h
            q = vr(72 + 2 * u, 2)
            a("v_mfma_f32_16x16x16_bf16 %s, %s, %s, 0" % (vr(128 + 8 * u, 4), vr(80 + 2 * (2 * ti + h), 2), q))
            a("v_mfma_f32_16x16x16_bf16 %s, %s, %s, 0" % (vr(132 + 8 * u, 4), vr(80 + 2 * (2 * ti + 2 + h), 2), q))
    a("s_nop 7")
    for u in range(4):
        Sp, Sc = 128 + 8 * u, 132 + 8 * u
        a("v_cndmask_b32 v110, v%d, v%d, s[44:45]" % (Sc, Sc + 1))
        a("v_cndmask_b32 v111, v%d, v%d, s[44:45]" % (Sp, Sp + 1))
        a("v_cndmask_b32 v%d, v111, v110, s[46:47]" % (160 + 2 * u))
        a("v_cndmask_b32 v110, v%d, v%d, s[44:45]" % (Sc + 2, Sc + 3))
        a("v_cndmask_b32 v111, v%d, v%d, s[44:45]" % (Sp + 2, Sp + 3))
        a("v_cndmask_b32 v%d, v111, v110, s[48:49]" % (161 + 2 * u))
    for u in range(4):
        a("v_cvt_pk_bf16_f32 v110, v%d, v%d" % (160 + 2 * u, 161 + 2 * u))
        a("v_lshlrev_b32 v%d, 16, v110" % (160 + 2 * u))
        a("v_and_b32 v%d, 0xffff0000, v110" % (161 + 2 * u))
        b0, b1 = (108, 107) if u < 2 else (109, 109)
        a("v_fma_f32 v%d, v%d, s42, v%d" % (160 + 2 * u, 160 + 2 * u, b0))
        a("v_fma_f32 v%d, v%d, s42, v%d" % (161 + 2 * u, 161 + 2 * u, b1))
        a("v_max_f32 v%d, v%d, v%d" % (168 + u, 160 + 2 * u, 161 + 2 * u))
    bfly(a, "v_max_f32", [168, 169, 170, 171], [172, 173, 174, 175])
    for u in range(4):
        a("v_sub_f32 v%d, v%d, v%d" % (160 + 2 * u, 160 + 2 * u, 168 + u))
        a("v_sub_f32 v%d, v%d, v%d" % (161 + 2 * u, 161 + 2 * u, 168 + u))
        a("v_exp_f32 v%d, v%d" % (160 + 2 * u, 160 + 2 * u))
        a("v_exp_f32 v%d, v%d" % (161 + 2 * u, 161 + 2 * u))
    a("s_nop 0")
    for u in range(4):
        a("v_add_f32 v%d, v%d, v%d" % (168 + u, 160 + 2 * u, 161 + 2 * u))
    bfly(a, "v_add_f32", [168, 169, 170, 171], [172, 173, 174, 175])
    for u in range(4):
        a("v_rcp_f32 v%d, v%d" % (168 + u, 168 + u))
    a("s_nop 0")
    for u in range(4):
        a("v_mul_f32 v%d, v%d, v%d" % (160 + 2 * u, 160 + 2 * u, 168 + u))
        a("v_mul_f32 v%d, v%d, v%d" % (161 + 2 * u, 161 + 2 * u, 168 + u))
        a("v_cvt_pk_bf16_f32 v110, v%d, v%d" % (160 + 2 * u, 161 + 2 * u))
        a("v_and_b32 v111, 0xffff, v110")
        a("v_lshlrev_b32 v111, v106, v111")
        a("v_lshrrev_b32 v110, 16, v110")
        a("v_lshlrev_b32 v110, v106, v110")
        P = 176 + 4 * u
        a("v_cndmask_b32 v%d, v111, v109, s[46:47]" % (P + 0))
        a("v_cndmask_b32 v%d, v110, v109, s[48:49]" % (P + 1))
        a("v_cndmask_b32 v%d, v109, v111, s[46:47]" % (P + 2))
        a("v_cndmask_b32 v%d, v109, v110, s[48:49]" % (P + 3))
    a("s_nop 1")
    for ti in range(2):
        for h in range(2):
            u = 2 * ti + h
            a("v_mfma_f32_16x16x32_bf16 %s, %s, %s, 0" % (vr(192 + 4 * u, 4), vr(92 + 6 * h + 2 * ti, 4), vr(176 + 4 * u, 4)))
    a("""
    v_lshrrev_b32 v110, 4, v1
    v_lshlrev_b32 v110, 3, v110
    v_sub_u32 v112, v3, v110
    v_add_u32 v112, s32, v112
    v_add_u32 v113, 0x4000, v112
    s_nop 4
    """)
    for ti in range(2):
        for h in range(2):
            u = 2 * ti + h
            a("v_cvt_pk_bf16_f32 v%d, v%d, v%d" % (208 + 2 * u, 192 + 4 * u, 193 + 4 * u))
            a("v_cvt_pk_bf16_f32 v%d, v%d, v%d" % (209 + 2 * u, 194 + 4 * u, 195 + 4 * u))
            a("buffer_store_dwordx2 %s, v%d, s[12:15], 0 offen offset:%d" % (vr(208 + 2 * u, 2), 112 + ti, 32 * h))
    a.label("L_%s_end" % name)
    a("s_endpgm")
    return name, a.text() + kdesc(name, 256, 192)


K2_CT = 16384 + 32
K2_LDS = 4 * K2_CT


def gen_k2(layer):
    a = Asm()
    name = "k2l%d_kernel" % layer
    khead(a, name)
    a("s_cmp_ge_u32 s2, 256")
    a("s_cbranch_scc1 L_%s_end" % name)
    a("s_load_dwordx2 s[20:21], s[0:1], 0")
    a("s_load_dwordx2 s[22:23], s[0:1], 16")
    a("s_load_dwordx2 s[24:25], s[0:1], 80")
    a("s_load_dwordx2 s[36:37], s[0:1], 32")
    a("""
    s_and_b32 s3, s2, 7
    s_lshr_b32 s26, s2, 3
    s_and_b32 s27, s3, 3
    s_lshl_b32 s27, s27, 3
    s_and_b32 s30, s26, 7
    s_add_u32 s27, s27, s30
    s_lshr_b32 s28, s3, 2
    s_lshl_b32 s28, s28, 2
    s_lshr_b32 s30, s26, 3
    s_add_u32 s28, s28, s30
    v_lshrrev_b32 v1, 6, v0
    s_nop 0
    v_readfirstlane_b32 s29, v1
    v_and_b32 v1, 63, v0
    s_lshr_b32 s30, s29, 1
    s_and_b32 s31, s29, 1
    """)
    a("""
    s_lshl_b32 s34, s27, 6
    s_lshl_b32 s35, s30, 5
    s_add_u32 s34, s34, s35
    s_lshl_b32 s35, s34, 10
    v_and_b32 v2, 15, v1
    v_lshlrev_b32 v2, 10, v2
    v_lshrrev_b32 v4, 4, v1
    v_lshl_add_u32 v2, v4, 4, v2
    v_add_u32 v2, s35, v2
    v_add_u32 v3, 0x4000, v2
    """)
    a("""
    v_lshrrev_b32 v8, 3, v0
    v_lshlrev_b32 v5, 10, v8
    v_and_b32 v9, 7, v0
    v_lshl_add_u32 v5, v9, 4, v5
    s_lshl_b32 s35, s28, 7
    v_add_u32 v5, s35, v5
    v_and_b32 v10, 0x13, v8
    v_and_b32 v11, 4, v8
    v_lshl_or_b32 v10, v11, 1, v10
    v_and_b32 v11, 8, v8
    v_lshrrev_b32 v11, 1, v11
    v_or_b32 v10, v10, v11
    v_lshlrev_b32 v6, 5, v10
    v_and_b32 v11, 1, v9
    v_lshl_add_u32 v6, v11, 4, v6
    v_lshrrev_b32 v11, 1, v9
    v_mul_u32_u24 v11, %d, v11
    v_add_u32 v6, v6, v11
    """ % K2_CT)
    a("""
    v_lshrrev_b32 v10, 5, v1
    v_lshlrev_b32 v8, 4, v10
    v_bfe_u32 v10, v1, 4, 1
    v_lshl_add_u32 v8, v10, 2, v8
    v_bfe_u32 v10, v1, 2, 2
    v_add_u32 v8, v8, v10
    v_lshlrev_b32 v8, 5, v8
    v_and_b32 v10, 3, v1
    v_lshl_add_u32 v8, v10, 3, v8
    s_mul_i32 s35, s31, %d
    v_add_u32 v8, s35, v8
    """ % (2 * K2_CT))
    a("""
    v_lshrrev_b32 v10, 4, v1
    v_lshlrev_b32 v10, 3, v10
    v_sub_u32 v9, v2, v10
    s_lshl_b32 s35, s28, 7
    s_lshl_b32 s38, s31, 6
    s_add_u32 s35, s35, s38
    v_add_u32 v9, s35, v9
    v_add_u32 v12, 0x4000, v9
    v_add_u32 v13, s35, v10
    """)
    a("s_waitcnt lgkmcnt(0)")
    srd(a, 4, 24, 25, O_OFF, 2 * MB)
    srd(a, 8, 22, 23, 0, 512 * 1024)
    if layer == 0:
        srd(a, 12, 20, 21, 0, 2 * MB)
    else:
        srd(a, 12, 24, 25, X2_OFF, 2 * MB)
    srd(a, 16, 24, 25, X1_OFF, 2 * MB)
    srd(a, 40, 24, 25, ST_OFF[layer], 32768)
    srd(a, 44, 36, 37, 0, 1024)

    def issue_w(c):
        for i in range(4):
            k0 = 128 * c + 32 * i
            a("s_mov_b32 s34, 0x%x" % (k0 * 1024))
            a("buffer_load_dwordx4 %s, v5, s[8:11], s34 offen" % ar(16 * c + 4 * i, 4))

    def issue_a(c):
        for s in range(4 * c, 4 * c + 4):
            for t, vo in enumerate((2, 3)):
                a("buffer_load_dwordx4 %s, v%d, s[4:7], 0 offen offset:%d" % (vr(64 + 64 * t + 4 * s, 4), vo, s * 64))

    for c in range(4):
        issue_w(c)
        issue_a(c)
    for ti, vo in enumerate((9, 12)):
        for ct in range(2):
            a("buffer_load_dwordx2 %s, v%d, s[12:15], 0 offen offset:%d" % (vr(48 + 4 * ti + 2 * ct, 2), vo, 32 * ct))
    for ct in range(2):
        a("buffer_load_dwordx2 %s, v13, s[44:47], 0 offen offset:%d" % (vr(56 + 2 * ct, 2), 32 * ct))
    for c in range(4):
        after_w = 8 + 12 * (3 - c) + 6
        a("s_waitcnt vmcnt(%d)" % after_w)
        for i in range(4):
            a("ds_write_b128 v6, %s offset:%d" % (ar(16 * c + 4 * i, 4), (128 * c + 32 * i) * 32))
        a("s_waitcnt lgkmcnt(0)")
        a("s_barrier")
        for s in range(4 * c, 4 * c + 4):
            for ct in range(2):
                off = ct * K2_CT + s * 1024
                b = 192 + 8 * (s & 3) + 4 * ct
                a("ds_read_b64_tr_b16 %s, v8 offset:%d" % (vr(b, 2), off))
                a("ds_read_b64_tr_b16 %s, v8 offset:%d" % (vr(b + 2, 2), off + 256))
        a("s_waitcnt vmcnt(%d)" % (after_w - 8))
        for s in range(4 * c, 4 * c + 4):
            a("s_waitcnt lgkmcnt(%d)" % (4 * (3 - (s & 3))))
            for ti in range(2):
                for ct in range(2):
                    acc = 32 + 4 * (2 * ti + ct)
                    cs = "0" if s == 0 else vr(acc, 4)
                    a("v_mfma_f32_16x16x32_bf16 %s, %s, %s, %s" % (vr(acc, 4), vr(192 + 8 * (s & 3) + 4 * ct, 4), vr(64 + 64 * ti + 4 * s, 4), cs))
    a("s_waitcnt vmcnt(0)")
    a("s_nop 7")
    for ct in range(2):
        for j in range(2):
            a("v_lshlrev_b32 v%d, 16, v%d" % (64 + 4 * ct + 2 * j, 56 + 2 * ct + j))
            a("v_and_b32 v%d, 0xffff0000, v%d" % (65 + 4 * ct + 2 * j, 56 + 2 * ct + j))
    for ti in range(2):
        S, Q, D = 80 + 4 * ti, 81 + 4 * ti, 82 + 4 * ti
        for ct in range(2):
            acc = 32 + 4 * (2 * ti + ct)
            xr = 48 + 4 * ti + 2 * ct
            for j in range(2):
                a("v_cvt_pk_bf16_f32 v72, v%d, v%d" % (acc + 2 * j, acc + 2 * j + 1))
                a("v_lshlrev_b32 v73, 16, v72")
                a("v_and_b32 v74, 0xffff0000, v72")
                a("v_lshlrev_b32 v75, 16, v%d" % (xr + j))
                a("v_and_b32 v76, 0xffff0000, v%d" % (xr + j))
                a("v_add_f32 v73, v73, v75")
                a("v_add_f32 v74, v74, v76")
                a("v_cvt_pk_bf16_f32 v%d, v73, v74" % (xr + j))
                a("v_lshlrev_b32 v73, 16, v%d" % (xr + j))
                a("v_and_b32 v74, 0xffff0000, v%d" % (xr + j))
                w0, w1 = 64 + 4 * ct + 2 * j, 65 + 4 * ct + 2 * j
                if ct == 0 and j == 0:
                    a("v_add_f32 v%d, v73, v74" % S)
                    a("v_mul_f32 v%d, v73, v73" % Q)
                    a("v_mul_f32 v%d, v73, v%d" % (D, w0))
                else:
                    a("v_add_f32 v%d, v%d, v73" % (S, S))
                    a("v_add_f32 v%d, v%d, v74" % (S, S))
                    a("v_fma_f32 v%d, v73, v73, v%d" % (Q, Q))
                    a("v_fma_f32 v%d, v73, v%d, v%d" % (D, w0, D))
                a("v_fma_f32 v%d, v74, v74, v%d" % (Q, Q))
                a("v_fma_f32 v%d, v74, v%d, v%d" % (D, w1, D))
            a("buffer_store_dwordx2 %s, v%d, s[16:19], 0 offen offset:%d" % (vr(xr, 2), (9, 12)[ti], 32 * ct))
    bfly(a, "v_add_f32", [80, 81, 82, 84, 85, 86], [88, 89, 90, 91, 92, 93])
    a("""
    v_lshrrev_b32 v88, 4, v1
    v_cmp_eq_u32 s[48:49], 1, v88
    v_cmp_eq_u32 s[50:51], 2, v88
    v_cmp_eq_u32 s[52:53], 3, v88
    v_lshrrev_b32 v89, 6, v2
    v_and_b32 v89, 0xfffffff0, v89
    v_lshl_add_u32 v89, v88, 2, v89
    v_add_u32 v90, 256, v89
    """)
    for ti in range(2):
        S = 80 + 4 * ti
        a("v_cndmask_b32 v%d, v%d, v%d, s[48:49]" % (S, S, S + 1))
        a("v_cndmask_b32 v%d, v%d, v%d, s[50:51]" % (S, S, S + 2))
    a("s_andn2_b64 exec, exec, s[52:53]")
    for ti in range(2):
        S = 80 + 4 * ti
        a("buffer_atomic_add_f32 v%d, v%d, s[40:43], 0 offen" % (S, 89 + ti))
    a.label("L_%s_end" % name)
    a("s_endpgm")
    return name, a.text() + kdesc(name, 256, 64)


K3_MS = 0
K3_WGU = 16384
K3_XS = 32768
K3_XSP = 1040
K3_CAND = K3_XS + 16 * K3_XSP
K3_SEL = K3_CAND + 128
K3_RED = K3_SEL + 128
K3_LDS = K3_RED + 4096


def gen_k3a(layer):
    a = Asm()
    name = "k3al%d_kernel" % layer
    khead(a, name)
    a("s_cmp_ge_u32 s2, 256")
    a("s_cbranch_scc1 L_%s_end" % name)
    a("s_load_dwordx4 s[20:23], s[0:1], 32")
    a("s_load_dwordx2 s[26:27], s[0:1], 48")
    a("s_load_dwordx2 s[24:25], s[0:1], 80")
    a("s_load_dwordx2 s[28:29], s[0:1], 64")
    a("""
    v_lshrrev_b32 v1, 6, v0
    s_nop 0
    v_readfirstlane_b32 s30, v1
    v_and_b32 v1, 63, v0
    s_and_b32 s3, s2, 7
    s_lshr_b32 s31, s2, 3
    s_mul_i32 s32, s3, 28
    s_add_u32 s32, s32, s31
    s_lshl_b32 s32, s32, 4
    """)
    a("s_waitcnt lgkmcnt(0)")
    srd(a, 4, 24, 25, ST_OFF[layer], 32768)
    srd(a, 8, 24, 25, X1_OFF, 2 * MB)
    if layer == 0:
        srd(a, 12, 24, 25, X2_OFF, 2 * MB)
    else:
        srd(a, 12, 28, 29, 0, 2 * MB)
    srd(a, 16, 20, 21, 0, 1024)
    srd(a, 36, 22, 23, 0, 512 * 3584)
    srd(a, 40, 26, 27, 0, 512 * 3584)
    srd(a, 44, 24, 25, SEL_OFF[layer], 64)
    srd(a, 48, 24, 25, XS_OFF[layer], 8192)
    srd(a, 52, 24, 25, H_OFF[layer], 8 * 3584)
    a("v_lshlrev_b32 v2, 7, v0")
    for i in range(8):
        a("buffer_load_dwordx4 %s, v2, s[4:7], 0 offen offset:%d" % (vr(64 + 4 * i, 4), 16 * i))
    a("v_lshlrev_b32 v3, 4, v1")
    a("buffer_load_dwordx4 v[96:99], v3, s[16:19], 0 offen")
    a("""
    s_lshl_b32 s33, s2, 13
    v_lshlrev_b32 v4, 4, v0
    v_add_u32 v4, s33, v4
    """)
    a("buffer_load_dwordx4 v[100:103], v4, s[8:11], 0 offen")
    a("v_add_u32 v5, 4096, v4")
    a("buffer_load_dwordx4 v[104:107], v5, s[8:11], 0 offen")
    a("""
    s_cmp_lt_u32 s31, 28
    s_cselect_b32 s33, s32, 0x7ff00000
    v_mul_u32_u24 v6, 3584, v0
    v_add_u32 v6, s33, v6
    v_add_u32 v7, %d, v6
    """ % (256 * 3584))
    a("buffer_load_dwordx4 v[108:111], v6, s[36:39], 0 offen")
    a("buffer_load_dwordx4 v[112:115], v7, s[36:39], 0 offen")
    a("buffer_load_dwordx4 v[116:119], v6, s[40:43], 0 offen")
    a("buffer_load_dwordx4 v[120:123], v7, s[40:43], 0 offen")
    a("s_mov_b32 s56, 0x%x" % f2u(1.0 / 512))
    a("s_mov_b32 s57, 0x%x" % f2u(1e-5))
    a("s_mov_b32 s58, 0x%x" % ONES_BF)
    sc = {"r512": 56, "eps": 57}
    a("s_waitcnt vmcnt(6)")
    a("v_mov_b32 v8, 0")
    for r in range(4):
        a("v_dot2_f32_bf16 v8, v%d, s58, v8" % (96 + r))
    a("s_nop 2")
    for sh in (1, 2, 4, 8):
        a("v_add_f32_dpp v8, v8, v8 row_ror:%d row_mask:0xf bank_mask:0xf" % sh)
        a("s_nop 1")
    bfly(a, "v_add_f32", [8], [9])
    a("v_lshlrev_b32 v10, 6, v0")
    a("v_lshlrev_b32 v11, 3, v0")
    a("v_sub_u32 v11, 2047, v11")
    for i in range(8):
        b = 64 + 4 * i
        ln_finalize(a, b, b + 1, 12, 13, 14, sc)
        a("v_fma_f32 v15, -v12, v8, v%d" % (b + 2))
        a("v_mul_f32 v15, v15, v13")
        a("v_cvt_pk_bf16_f32 v15, v15, v15")
        a("v_lshlrev_b32 v15, 16, v15")
        a("v_ashrrev_i32 v16, 31, v15")
        a("v_or_b32 v16, 0x80000000, v16")
        a("v_xor_b32 v15, v15, v16")
        a("v_and_b32 v15, 0xffff0000, v15")
        a("v_subrev_u32 v16, %d, v11" % i)
        a("v_or_b32 v%d, v15, v16" % (20 + i))
        a("v_mov_b32 v%d, v12" % (b))
        a("v_mov_b32 v%d, v14" % (b + 1))
        a("ds_write_b64 v10, %s offset:%d" % (vr(b, 2), K3_MS + 8 * i))
    a("""
    v_and_b32 v12, 0xf3, v0
    v_and_b32 v13, 4, v0
    v_lshl_or_b32 v12, v13, 1, v12
    v_and_b32 v13, 8, v0
    v_lshrrev_b32 v13, 1, v13
    v_or_b32 v12, v12, v13
    v_lshlrev_b32 v12, 5, v12
    """)
    a("s_waitcnt vmcnt(0)")
    a("ds_write_b128 v12, v[108:111] offset:%d" % (K3_WGU))
    a("ds_write_b128 v12, v[116:119] offset:%d" % (K3_WGU + 16))
    a("ds_write_b128 v12, v[112:115] offset:%d" % (K3_WGU + 8192))
    a("ds_write_b128 v12, v[120:123] offset:%d" % (K3_WGU + 8192 + 16))
    net = [(0, 1), (2, 3), (4, 5), (6, 7), (0, 2), (1, 3), (4, 6), (5, 7), (1, 2), (5, 6),
           (0, 4), (1, 5), (2, 6), (3, 7), (2, 4), (3, 5), (1, 2), (3, 4), (5, 6)]
    for (i, j) in net:
        a("v_max_u32 v12, v%d, v%d" % (20 + i, 20 + j))
        a("v_min_u32 v%d, v%d, v%d" % (20 + j, 20 + i, 20 + j))
        a("v_mov_b32 v%d, v12" % (20 + i))
    a("v_mov_b32 v30, 0")
    for rd in range(8):
        a("v_mov_b32 v12, v20")
        a("s_nop 1")
        for sh in (1, 2, 4, 8):
            a("v_max_u32_dpp v12, v12, v12 row_ror:%d row_mask:0xf bank_mask:0xf" % sh)
            a("s_nop 1")
        bfly(a, "v_max_u32", [12], [13])
        a("v_cmp_eq_u32 vcc, v12, v20")
        a("v_cmp_eq_u32 s[60:61], %d, v1" % rd)
        a("s_nop 0")
        for i in range(7):
            a("v_cndmask_b32 v%d, v%d, v%d, vcc" % (20 + i, 20 + i, 21 + i))
        a("v_mov_b32 v13, 0")
        a("v_cndmask_b32 v27, v27, v13, vcc")
        a("v_cndmask_b32 v30, v30, v12, s[60:61]")
    a("""
    s_lshl_b32 s33, s30, 5
    v_lshlrev_b32 v12, 2, v1
    v_add_u32 v12, s33, v12
    v_cmp_gt_u32 vcc, 8, v1
    s_and_saveexec_b64 s[62:63], vcc
    ds_write_b32 v12, v30 offset:%d
    s_mov_b64 exec, s[62:63]
    s_waitcnt lgkmcnt(0)
    s_barrier
    """ % K3_CAND)
    a("v_and_b32 v12, 31, v1")
    a("v_lshlrev_b32 v12, 2, v12")
    a("ds_read_b32 v30, v12 offset:%d" % K3_CAND)
    a("v_mov_b32 v13, 0")
    for i in range(8):
        a("ds_read_b128 %s, v13 offset:%d" % (vr(32 + 4 * i, 4), K3_CAND + 16 * i))
    a("v_mov_b32 v14, 0")
    a("s_waitcnt lgkmcnt(0)")
    for i in range(32):
        a("v_cmp_gt_u32 vcc, v%d, v30" % (32 + i))
        a("v_addc_co_u32 v14, vcc, 0, v14, vcc")
    a("""
    v_cmp_gt_u32 vcc, 8, v14
    v_cmp_gt_u32 s[60:61], 32, v1
    s_and_b64 vcc, vcc, s[60:61]
    v_lshlrev_b32 v14, 2, v14
    s_and_saveexec_b64 s[62:63], vcc
    ds_write_b32 v14, v30 offset:%d
    s_mov_b64 exec, s[62:63]
    s_waitcnt lgkmcnt(0)
    """ % K3_SEL)
    a("""
    v_lshrrev_b32 v12, 5, v0
    v_lshlrev_b32 v12, 2, v12
    ds_read_b32 v31, v12 offset:%d
    s_waitcnt lgkmcnt(0)
    v_and_b32 v13, 0xffff, v31
    v_sub_u32 v13, 2047, v13
    v_lshlrev_b32 v14, 10, v13
    v_and_b32 v15, 31, v0
    v_lshl_add_u32 v14, v15, 5, v14
    buffer_load_dwordx4 v[32:35], v14, s[8:11], 0 offen
    buffer_load_dwordx4 v[36:39], v14, s[8:11], 0 offen offset:16
    v_lshlrev_b32 v16, 3, v13
    ds_read_b64 v[40:41], v16 offset:%d
    """ % (K3_SEL, K3_MS))
    a("""
    v_lshrrev_b32 v17, 6, v0
    s_lshl_b32 s33, s2, 3
    v_add_u32 v17, s33, v17
    v_lshlrev_b32 v17, 3, v17
    ds_read_b64 v[42:43], v17 offset:%d
    ds_read_b64 v[44:45], v17 offset:%d
    s_waitcnt lgkmcnt(0)
    v_rcp_f32 v46, v43
    v_rcp_f32 v47, v45
    v_rcp_f32 v48, v41
    """ % (K3_MS, K3_MS + 32))

    def norm_pair(src, vm, vinv, mode):
        a("v_lshlrev_b32 v50, 16, v%d" % src)
        a("v_and_b32 v51, 0xffff0000, v%d" % src)
        a("v_sub_f32 v52, v50, v%d" % vm)
        a("v_sub_f32 v53, v51, v%d" % vm)
        a("v_cvt_pk_bf16_f32 v54, v52, v53")
        a("v_lshlrev_b32 v52, 16, v54")
        a("v_and_b32 v53, 0xffff0000, v54")
        a("v_mul_f32 v52, v52, v%d" % vinv)
        a("v_mul_f32 v53, v53, v%d" % vinv)
        if mode == "xn":
            a("v_cvt_pk_bf16_f32 v%d, v52, v53" % src)
        else:
            a("v_cvt_pk_bf16_f32 v54, v52, v53")
            a("v_lshlrev_b32 v52, 16, v54")
            a("v_and_b32 v53, 0xffff0000, v54")
            a("v_add_f32 v52, v52, v50")
            a("v_add_f32 v53, v53, v51")
            a("v_cvt_pk_bf16_f32 v%d, v52, v53" % src)

    for r in range(4):
        norm_pair(100 + r, 42, 46, "x2")
    a("buffer_store_dwordx4 v[100:103], v4, s[12:15], 0 offen")
    for r in range(4):
        norm_pair(104 + r, 44, 47, "x2")
    a("buffer_store_dwordx4 v[104:107], v5, s[12:15], 0 offen")
    a("s_waitcnt vmcnt(2)")
    for r in range(8):
        norm_pair(32 + r, 40, 48, "xn")
    a("""
    v_lshrrev_b32 v12, 5, v0
    v_mul_u32_u24 v12, %d, v12
    v_and_b32 v15, 31, v0
    v_lshl_add_u32 v12, v15, 5, v12
    ds_write_b128 v12, v[32:35] offset:%d
    ds_write_b128 v12, v[36:39] offset:%d
    """ % (K3_XSP, K3_XS, K3_XS + 16))
    a("s_cmp_lg_u32 s2, 0")
    a("s_cbranch_scc1 L_%s_nopub" % name)
    a("""
    v_lshlrev_b32 v12, 5, v0
    buffer_store_dwordx4 v[32:35], v12, s[48:51], 0 offen
    buffer_store_dwordx4 v[36:39], v12, s[48:51], 0 offen offset:16
    v_and_b32 v50, 0x8000, v31
    v_lshlrev_b32 v50, 16, v50
    v_ashrrev_i32 v50, 31, v50
    v_not_b32 v50, v50
    v_or_b32 v50, 0x80000000, v50
    v_and_b32 v51, 0xffff0000, v31
    """)
    a("""
    v_ashrrev_i32 v50, 31, v51
    v_not_b32 v50, v50
    v_or_b32 v50, 0x80000000, v50
    v_xor_b32 v51, v51, v50
    v_and_b32 v51, 0xffff0000, v51
    v_mul_f32 v52, 0x%x, v51
    v_exp_f32 v52, v52
    s_nop 0
    v_add_f32 v52, 1.0, v52
    v_rcp_f32 v52, v52
    s_nop 0
    v_cvt_pk_bf16_f32 v52, v52, v52
    v_lshlrev_b32 v52, 16, v52
    v_lshrrev_b32 v12, 5, v0
    v_lshlrev_b32 v12, 2, v12
    v_and_b32 v15, 31, v0
    v_cmp_eq_u32 vcc, 0, v15
    v_mov_b32 v53, 0x7ffffff0
    s_nop 0
    v_cndmask_b32 v12, v53, v12, vcc
    buffer_store_dword v13, v12, s[44:47], 0 offen
    buffer_store_dword v52, v12, s[44:47], 0 offen offset:32
    """ % f2u(-LOG2E))
    a.label("L_%s_nopub" % name)
    a("s_cmp_ge_u32 s31, 28")
    a("s_cbranch_scc1 L_%s_end" % name)
    a("s_waitcnt lgkmcnt(0)")
    a("s_barrier")
    a("""
    v_lshrrev_b32 v10, 5, v1
    v_lshlrev_b32 v8, 4, v10
    v_bfe_u32 v10, v1, 4, 1
    v_lshl_add_u32 v8, v10, 2, v8
    v_bfe_u32 v10, v1, 2, 2
    v_add_u32 v8, v8, v10
    v_lshlrev_b32 v8, 5, v8
    v_and_b32 v10, 3, v1
    v_lshl_add_u32 v8, v10, 3, v8
    s_lshl_b32 s33, s30, 12
    v_add_u32 v8, s33, v8
    v_and_b32 v9, 7, v1
    v_mul_u32_u24 v9, %d, v9
    v_lshrrev_b32 v10, 4, v1
    v_lshl_add_u32 v9, v10, 4, v9
    s_lshl_b32 s33, s30, 8
    v_add_u32 v9, s33, v9
    """ % K3_XSP)
    for s in range(4):
        a("ds_read_b64_tr_b16 %s, v8 offset:%d" % (vr(64 + 4 * s, 2), K3_WGU + 1024 * s))
        a("ds_read_b64_tr_b16 %s, v8 offset:%d" % (vr(66 + 4 * s, 2), K3_WGU + 1024 * s + 256))
        a("ds_read_b128 %s, v9 offset:%d" % (vr(80 + 4 * s, 4), K3_XS + 64 * s))
    a("s_waitcnt lgkmcnt(0)")
    for s in range(4):
        a("v_mfma_f32_16x16x32_bf16 v[96:99], %s, %s, %s" % (vr(64 + 4 * s, 4), vr(80 + 4 * s, 4), "0" if s == 0 else "v[96:99]"))
    a("""
    v_lshlrev_b32 v10, 4, v1
    s_lshl_b32 s33, s30, 10
    v_add_u32 v11, s33, v10
    s_nop 7
    ds_write_b128 v11, v[96:99] offset:%d
    s_waitcnt lgkmcnt(0)
    s_barrier
    """ % K3_RED)
    a("s_cmp_lg_u32 s30, 0")
    a("s_cbranch_scc1 L_%s_end" % name)
    for w in range(1, 4):
        a("ds_read_b128 %s, v10 offset:%d" % (vr(96 + 4 * w, 4), K3_RED + 1024 * w))
    a("s_waitcnt lgkmcnt(0)")
    for r in range(4):
        a("v_add_f32 v%d, v%d, v%d" % (96 + r, 96 + r, 100 + r))
        a("v_add_f32 v%d, v%d, v%d" % (104 + r, 104 + r, 108 + r))
        a("v_add_f32 v%d, v%d, v%d" % (96 + r, 96 + r, 104 + r))
    for r in range(4):
        rbf(a, 96 + r)
        a("v_mov_b32 v%d, v%d" % (100 + r, 96 + r))
    a("s_nop 1")
    for r in range(4):
        a("v_permlane32_swap_b32 v%d, v%d" % (96 + r, 100 + r))
    a("s_mov_b32 s33, 0x%x" % f2u(-LOG2E))
    for r in range(4):
        a("v_mul_f32 v%d, s33, v%d" % (104 + r, 96 + r))
        a("v_exp_f32 v%d, v%d" % (104 + r, 104 + r))
    a("s_nop 0")
    for r in range(4):
        a("v_add_f32 v%d, 1.0, v%d" % (104 + r, 104 + r))
        a("v_rcp_f32 v%d, v%d" % (104 + r, 104 + r))
    a("s_nop 0")
    for r in range(4):
        a("v_mul_f32 v%d, v%d, v%d" % (96 + r, 96 + r, 104 + r))
        rbf(a, 96 + r)
        a("v_mul_f32 v%d, v%d, v%d" % (96 + r, 96 + r, 100 + r))
    a("v_cvt_pk_bf16_f32 v96, v96, v97")
    a("v_cvt_pk_bf16_f32 v97, v98, v99")
    a("""
    v_and_b32 v10, 15, v1
    v_mul_u32_u24 v11, 3584, v10
    v_lshrrev_b32 v12, 4, v1
    v_lshl_add_u32 v11, v12, 3, v11
    v_add_u32 v11, s32, v11
    v_cmp_gt_u32 vcc, 8, v10
    v_cmp_gt_u32 s[60:61], 32, v1
    s_and_b64 vcc, vcc, s[60:61]
    v_mov_b32 v12, 0x7ffffff0
    s_nop 0
    v_cndmask_b32 v11, v12, v11, vcc
    buffer_store_dwordx2 v[96:97], v11, s[52:55], 0 offen
    """)
    a.label("L_%s_end" % name)
    a("s_endpgm")
    return name, a.text() + kdesc(name, 128, 0)


K4_WD = 0
K4_WSTR = 448 * 16 + 64
K4_RED = 4 * K4_WSTR
K4_LDS = K4_RED + 4096


def gen_k3b(layer):
    a = Asm()
    name = "k3bl%d_kernel" % layer
    khead(a, name)
    a("s_cmp_ge_u32 s2, 64")
    a("s_cbranch_scc1 L_%s_end" % name)
    a("s_load_dwordx4 s[20:23], s[0:1], 56")
    a("s_load_dwordx2 s[24:25], s[0:1], 80")
    a("""
    v_lshrrev_b32 v1, 6, v0
    s_nop 0
    v_readfirstlane_b32 s30, v1
    v_and_b32 v1, 63, v0
    s_lshl_b32 s32, s2, 4
    s_mul_i32 s33, s30, %d
    """ % (448 * 1024))
    a("s_waitcnt lgkmcnt(0)")
    srd(a, 4, 20, 21, 0, 1792 * 1024)
    srd(a, 8, 24, 25, H_OFF[layer], 8 * 3584)
    srd(a, 12, 24, 25, X1_OFF, 2 * MB)
    if layer == 0:
        srd(a, 16, 24, 25, X2_OFF, 2 * MB)
    else:
        srd(a, 16, 22, 23, 0, 2 * MB)
    srd(a, 36, 24, 25, SEL_OFF[layer], 64)
    srd(a, 40, 24, 25, XS_OFF[layer], 8192)
    a("""
    s_add_u32 s33, s33, s32
    v_lshlrev_b32 v2, 10, v1
    v_add_u32 v2, s33, v2
    """)
    for i in range(7):
        a("s_mov_b32 s34, 0x%x" % (65536 * i))
        a("buffer_load_dwordx4 %s, v2, s[4:7], s34 offen" % vr(32 + 4 * i, 4))
    a("""
    v_and_b32 v3, 7, v1
    v_mul_u32_u24 v3, 3584, v3
    v_lshrrev_b32 v4, 4, v1
    v_lshl_add_u32 v3, v4, 4, v3
    s_mul_i32 s34, s30, 896
    v_add_u32 v3, s34, v3
    """)
    for s in range(14):
        a("buffer_load_dwordx4 %s, v3, s[8:11], 0 offen offset:%d" % (vr(64 + 4 * s, 4), 64 * s))
    a("""
    v_and_b32 v5, 7, v1
    v_lshlrev_b32 v5, 2, v5
    buffer_load_dword v6, v5, s[36:39], 0 offen
    buffer_load_dword v7, v5, s[36:39], 0 offen offset:32
    """)
    a("""
    v_and_b32 v10, 0x33, v1
    v_and_b32 v11, 4, v1
    v_lshl_or_b32 v10, v11, 1, v10
    v_and_b32 v11, 8, v1
    v_lshrrev_b32 v11, 1, v11
    v_or_b32 v10, v10, v11
    v_lshlrev_b32 v10, 4, v10
    s_mul_i32 s34, s30, %d
    v_add_u32 v10, s34, v10
    v_lshrrev_b32 v11, 5, v1
    v_lshlrev_b32 v8, 4, v11
    v_bfe_u32 v11, v1, 4, 1
    v_lshl_add_u32 v8, v11, 2, v8
    v_bfe_u32 v11, v1, 2, 2
    v_add_u32 v8, v8, v11
    v_lshlrev_b32 v8, 4, v8
    v_and_b32 v11, 3, v1
    v_lshl_add_u32 v8, v11, 3, v8
    v_add_u32 v8, s34, v8
    """ % K4_WSTR)
    a("s_waitcnt vmcnt(16)")
    for i in range(7):
        a("ds_write_b128 v10, %s offset:%d" % (vr(32 + 4 * i, 4), K4_WD + 1024 * i))
    a("s_waitcnt lgkmcnt(0)")
    for s in range(14):
        a("ds_read_b64_tr_b16 %s, v8 offset:%d" % (vr(128 + 4 * s, 2), K4_WD + 512 * s))
        a("ds_read_b64_tr_b16 %s, v8 offset:%d" % (vr(130 + 4 * s, 2), K4_WD + 512 * s + 128))
        if s == 6:
            a("s_waitcnt lgkmcnt(0)")
    a("s_waitcnt vmcnt(0)")
    a("""
    v_lshrrev_b32 v4, 4, v1
    v_lshlrev_b32 v4, 3, v4
    v_add_u32 v4, s32, v4
    v_lshl_add_u32 v12, v6, 10, v4
    v_and_b32 v5, 7, v1
    v_lshl_add_u32 v13, v5, 10, v4
    buffer_load_dwordx2 v[14:15], v12, s[12:15], 0 offen
    buffer_load_dwordx2 v[16:17], v13, s[40:43], 0 offen
    """)
    a("s_waitcnt lgkmcnt(0)")
    for s in range(14):
        a("v_mfma_f32_16x16x32_bf16 v[20:23], %s, %s, %s" % (vr(128 + 4 * s, 4), vr(64 + 4 * s, 4), "0" if s == 0 else "v[20:23]"))
    a("""
    v_lshlrev_b32 v10, 4, v1
    s_lshl_b32 s33, s30, 10
    v_add_u32 v11, s33, v10
    s_nop 7
    ds_write_b128 v11, v[20:23] offset:%d
    s_waitcnt lgkmcnt(0)
    s_barrier
    """ % K4_RED)
    a("s_cmp_lg_u32 s30, 0")
    a("s_cbranch_scc1 L_%s_end" % name)
    for w in range(1, 4):
        a("ds_read_b128 %s, v10 offset:%d" % (vr(20 + 4 * w, 4), K4_RED + 1024 * w))
    a("s_waitcnt lgkmcnt(0) vmcnt(0)")
    for r in range(4):
        a("v_add_f32 v%d, v%d, v%d" % (20 + r, 20 + r, 24 + r))
        a("v_add_f32 v%d, v%d, v%d" % (28 + r, 28 + r, 32 + r))
        a("v_add_f32 v%d, v%d, v%d" % (20 + r, 20 + r, 28 + r))
    for j in range(2):
        a("v_cvt_pk_bf16_f32 v40, v%d, v%d" % (20 + 2 * j, 21 + 2 * j))
        a("v_lshlrev_b32 v41, 16, v40")
        a("v_and_b32 v42, 0xffff0000, v40")
        a("v_mul_f32 v41, v41, v7")
        a("v_mul_f32 v42, v42, v7")
        a("v_cvt_pk_bf16_f32 v40, v41, v42")
        a("v_lshlrev_b32 v41, 16, v40")
        a("v_and_b32 v42, 0xffff0000, v40")
        a("v_lshlrev_b32 v43, 16, v%d" % (16 + j))
        a("v_and_b32 v44, 0xffff0000, v%d" % (16 + j))
        a("v_add_f32 v41, v41, v43")
        a("v_add_f32 v42, v42, v44")
        a("v_cvt_pk_bf16_f32 v40, v41, v42")
        a("v_lshlrev_b32 v41, 16, v40")
        a("v_and_b32 v42, 0xffff0000, v40")
        a("v_lshlrev_b32 v43, 16, v%d" % (14 + j))
        a("v_and_b32 v44, 0xffff0000, v%d" % (14 + j))
        a("v_add_f32 v41, v41, v43")
        a("v_add_f32 v42, v42, v44")
        a("v_cvt_pk_bf16_f32 v%d, v41, v42" % (46 + j))
    a("""
    v_and_b32 v10, 15, v1
    v_cmp_gt_u32 vcc, 8, v10
    v_cmp_gt_u32 s[60:61], 32, v1
    s_and_b64 vcc, vcc, s[60:61]
    v_mov_b32 v11, 0x7ffffff0
    s_nop 0
    v_cndmask_b32 v12, v11, v12, vcc
    buffer_store_dwordx2 v[46:47], v12, s[16:19], 0 offen
    """)
    a.label("L_%s_end" % name)
    a("s_endpgm")
    return name, a.text() + kdesc(name, 192, 0)


HEADER = """; generated by wk/gen.py - multi-kernel launch list
"""


def main(out):
    parts = []
    launches = []
    for layer in range(2):
        for g, grid, lds in ((gen_k1, 256, K1_LDS), (gen_k2, 256, K2_LDS), (gen_k3a, 256, K3_LDS), (gen_k3b, 64, K4_LDS)):
            n, t = g(layer)
            parts.append(t)
            launches.append("; @launch kernel=%s grid=(%d,1,1) block=(256,1,1) lds=%d" % (n, grid, lds))
    txt = HEADER + "\n".join(launches) + "\n" + '.amdgcn_target "amdgcn-amd-amdhsa--gfx950"\n' + "\n".join(parts)
    open(out, "w").write(txt)


if __name__ == "__main__":
    main(sys.argv[1] if len(sys.argv) > 1 else "interleave_layers__sliding_local_dilated__moe_arch_mod__prompt.s")
```

```python
import sys

MB = 1 << 20
O_OFF = 0
X1_OFF = 2 * MB
X2_OFF = 4 * MB
ST_OFF = [6 * MB, 6 * MB + 65536]
SEL_OFF = [6 * MB + 131072, 6 * MB + 131072 + 256]
XS_OFF = [6 * MB + 196608, 6 * MB + 196608 + 8192]
H_OFF = [6 * MB + 262144, 6 * MB + 262144 + 32768]

ONES_BF = 0x3F803F80
LOG2E = 1.4426950408889634


import struct
def f2u(f):
    return struct.unpack("<I", struct.pack("<f", f))[0]


class Asm:
    def __init__(self):
        self.L = []

    def __call__(self, s):
        for line in s.strip("\n").split("\n"):
            self.L.append("    " + line.strip())

    def label(self, s):
        self.L.append(s + ":")

    def raw(self, s):
        self.L.append(s)

    def text(self):
        return "\n".join(self.L) + "\n"


def vr(b, n):
    return "v[%d:%d]" % (b, b + n - 1)


def ar(b, n):
    return "a[%d:%d]" % (b, b + n - 1)


def srd(a, d, lo, hi, off, size):
    if off:
        a("s_add_u32 s%d, s%d, 0x%x" % (d, lo, off))
        a("s_addc_u32 s%d, s%d, 0" % (d + 1, hi))
    else:
        a("s_mov_b32 s%d, s%d" % (d, lo))
        a("s_mov_b32 s%d, s%d" % (d + 1, hi))
    a("s_mov_b32 s%d, 0x%x" % (d + 2, size))
    a("s_mov_b32 s%d, 0x00020000" % (d + 3))


def bfly(a, op, regs, tmps):
    for sw in ("v_permlane16_swap_b32", "v_permlane32_swap_b32"):
        for r, t in zip(regs, tmps):
            a("v_mov_b32 v%d, v%d" % (t, r))
        a("s_nop 1")
        for r, t in zip(regs, tmps):
            a("%s v%d, v%d" % (sw, r, t))
        a("s_nop 0")
        for r, t in zip(regs, tmps):
            a("%s v%d, v%d, v%d" % (op, r, r, t))


def rbf(a, r, t=None):
    a("v_cvt_pk_bf16_f32 v%d, v%d, v%d" % (r, r, r))
    a("v_lshlrev_b32 v%d, 16, v%d" % (r, r))


def ln_finalize(a, vs, vq, vm, vinv, vden, sconst):
    a("v_mul_f32 v%d, s%d, v%d" % (vm, sconst["r512"], vs))
    a("v_mul_f32 v%d, s%d, v%d" % (vden, sconst["r512"], vq))
    a("v_fma_f32 v%d, -v%d, v%d, v%d" % (vden, vm, vm, vden))
    a("v_max_f32 v%d, 0, v%d" % (vden, vden))
    rbf(a, vm)
    rbf(a, vden)
    a("v_add_f32 v%d, s%d, v%d" % (vden, sconst["eps"], vden))
    rbf(a, vden)
    a("v_sqrt_f32 v%d, v%d" % (vden, vden))
    a("s_nop 0")
    rbf(a, vden)
    a("v_rcp_f32 v%d, v%d" % (vinv, vden))
    a("s_nop 0")


def kdesc(name, vgpr, agpr, sgpr=102):
    acc = (vgpr + 3) // 4 * 4
    nfv = acc + agpr if agpr else vgpr
    return """.section .rodata,"a"
.p2align 6
.amdhsa_kernel %s
  .amdhsa_next_free_vgpr %d
  .amdhsa_next_free_sgpr %d
  .amdhsa_accum_offset %d
  .amdhsa_group_segment_fixed_size 0
  .amdhsa_kernarg_size 88
  .amdhsa_user_sgpr_count 2
  .amdhsa_user_sgpr_kernarg_segment_ptr 1
  .amdhsa_system_sgpr_workgroup_id_x 1
.end_amdhsa_kernel
""" % (name, nfv, sgpr, acc)


def khead(a, name):
    a.raw(".text")
    a.raw(".globl %s" % name)
    a.raw(".p2align 8")
    a.raw(".type %s,@function" % name)
    a.label(name)


K1_CT = 16384 + 64
K1_CS = 0
K1_VS = 2048
K1_W0 = 4096
K1_LDS = K1_W0 + 6 * K1_CT


def gen_k1(layer):
    a = Asm()
    name = "k1l%d_kernel" % layer
    khead(a, name)
    a("s_cmp_ge_u32 s2, 256")
    a("s_cbranch_scc1 L_%s_end" % name)
    a("s_load_dwordx4 s[20:23], s[0:1], 0")
    a("s_load_dwordx2 s[24:25], s[0:1], 80")
    a("""
    s_and_b32 s3, s2, 7
    s_lshr_b32 s26, s2, 3
    s_and_b32 s27, s3, 3
    s_lshl_b32 s27, s27, 2
    s_and_b32 s30, s26, 3
    s_add_u32 s27, s27, s30
    s_lshr_b32 s28, s3, 2
    s_lshl_b32 s28, s28, 3
    s_lshr_b32 s30, s26, 2
    s_add_u32 s28, s28, s30
    v_lshrrev_b32 v1, 6, v0
    s_nop 0
    v_readfirstlane_b32 s29, v1
    v_and_b32 v1, 63, v0
    """)
    a("""
    s_lshl_b32 s30, s27, 7
    s_lshl_b32 s31, s29, 5
    s_add_u32 s30, s30, s31
    s_sub_u32 s30, s30, 16
    s_lshl_b32 s31, s30, 10
    v_and_b32 v2, 15, v1
    v_lshlrev_b32 v2, 10, v2
    v_lshrrev_b32 v3, 4, v1
    v_lshl_add_u32 v2, v3, 4, v2
    v_add_u32 v2, s31, v2
    v_add_u32 v3, 0x4000, v2
    v_add_u32 v4, 0x8000, v2
    """)
    a("""
    v_lshrrev_b32 v8, 2, v0
    v_mul_u32_u24 v5, 3072, v8
    v_and_b32 v9, 3, v0
    v_lshl_add_u32 v5, v9, 4, v5
    v_and_b32 v10, 0x33, v8
    v_and_b32 v11, 4, v8
    v_lshl_or_b32 v10, v11, 1, v10
    v_and_b32 v11, 8, v8
    v_lshrrev_b32 v11, 1, v11
    v_or_b32 v10, v10, v11
    v_lshlrev_b32 v6, 5, v10
    v_and_b32 v11, 1, v9
    v_lshl_add_u32 v6, v11, 4, v6
    v_lshrrev_b32 v11, 1, v9
    v_mul_u32_u24 v11, %d, v11
    v_add_u32 v6, v6, v11
    v_add_u32 v6, %d, v6
    v_add_u32 v7, %d, v6
    """ % (K1_CT, K1_W0, 4 * K1_CT))
    a("""
    v_lshrrev_b32 v10, 5, v1
    v_lshlrev_b32 v8, 4, v10
    v_bfe_u32 v10, v1, 4, 1
    v_lshl_add_u32 v8, v10, 2, v8
    v_bfe_u32 v10, v1, 2, 2
    v_add_u32 v8, v8, v10
    v_lshlrev_b32 v8, 5, v8
    v_and_b32 v10, 3, v1
    v_lshl_add_u32 v8, v10, 3, v8
    v_add_u32 v8, %d, v8
    v_add_u32 v9, %d, v8
    """ % (K1_W0, 3 * K1_CT))
    for r in range(10, 16):
        a("v_mov_b32 v%d, 0" % r)
    for r in range(64, 88):
        a("v_accvgpr_write_b32 a%d, 0" % r)
    a("v_mov_b32 v16, 0x%x" % ONES_BF)
    for r in range(88, 92):
        a("v_accvgpr_write_b32 a%d, v16" % r)
    a("s_mov_b32 s33, 0x%x" % ONES_BF)
    a("s_lshl_b32 s32, s28, 6")
    a("s_waitcnt lgkmcnt(0)")
    if layer == 0:
        srd(a, 4, 20, 21, 0, 2 * MB)
    else:
        srd(a, 4, 24, 25, X2_OFF, 2 * MB)
    srd(a, 8, 22, 23, 0, 512 * 3072)
    srd(a, 12, 24, 25, O_OFF, 2 * MB)
    srd(a, 16, 24, 25, ST_OFF[layer], 32768)

    def issue_w(c):
        for i in range(6):
            seg = i >> 1
            off = (128 * c + 64 * (i & 1)) * 3072 + seg * 1024
            a("s_add_u32 s34, s32, 0x%x" % off)
            a("buffer_load_dwordx4 %s, v5, s[8:11], s34 offen" % ar(96 + 24 * c + 4 * i, 4))

    def issue_a(c):
        for s in range(4 * c, 4 * c + 4):
            for t, vo in enumerate((2, 3, 4)):
                a("buffer_load_dwordx4 %s, v%d, s[4:7], 0 offen offset:%d" % (vr(64 + 64 * t + 4 * s, 4), vo, s * 64))

    def write_w(c):
        for i in range(6):
            seg = i >> 1
            off = (128 * c + 64 * (i & 1)) * 32
            if seg < 2:
                a("ds_write_b128 v6, %s offset:%d" % (ar(96 + 24 * c + 4 * i, 4), off + seg * 2 * K1_CT))
            else:
                a("ds_write_b128 v7, %s offset:%d" % (ar(96 + 24 * c + 4 * i, 4), off))

    def read_b(s):
        base = 16 + 24 * (s & 1)
        for ct in range(6):
            vb = 8 if ct < 3 else 9
            off = (ct % 3) * K1_CT + s * 1024
            a("ds_read_b64_tr_b16 %s, v%d offset:%d" % (vr(base + 4 * ct, 2), vb, off))
            a("ds_read_b64_tr_b16 %s, v%d offset:%d" % (vr(base + 4 * ct + 2, 2), vb, off + 256))

    for c in range(3):
        issue_w(c)
        issue_a(c)
    a("""
    v_lshlrev_b32 v16, 4, v0
    s_lshl_b32 s34, s2, 7
    v_add_u32 v16, s34, v16
    v_cmp_gt_u32 vcc, 8, v0
    v_mov_b32 v17, 0x7ffffff0
    s_nop 0
    v_cndmask_b32 v16, v17, v16, vcc
    v_mov_b32 v20, 0
    v_mov_b32 v21, 0
    v_mov_b32 v22, 0
    v_mov_b32 v23, 0
    buffer_store_dwordx4 v[20:23], v16, s[16:19], 0 offen
    """)
    a("s_waitcnt vmcnt(49)")
    write_w(0)
    a("s_waitcnt lgkmcnt(0)")
    a("s_barrier")
    read_b(0)
    for s in range(16):
        c = s >> 2
        a("s_waitcnt lgkmcnt(0)")
        if (s & 3) == 3 and c < 3:
            a("s_barrier")
        if s < 15:
            read_b(s + 1)
        if (s & 3) == 0:
            if c == 0:
                a("s_waitcnt vmcnt(37)")
            elif c == 1:
                a("s_waitcnt vmcnt(37)")
            elif c == 2:
                a("s_waitcnt vmcnt(19)")
            else:
                a("s_waitcnt vmcnt(0)")
        B = 16 + 24 * (s & 1)
        AP, A0, A1 = 64 + 4 * s, 128 + 4 * s, 192 + 4 * s
        first = (s == 0)
        mf = []
        for ti, A in enumerate((A0, A1)):
            for h in range(2):
                acc = 4 * (2 * ti + h)
                mf.append((acc, vr(B + 4 * h, 4), vr(A, 4)))
        for ti, A in enumerate((AP, A0, A1)):
            for h in range(2):
                acc = 16 + 4 * (2 * ti + h)
                mf.append((acc, vr(B + 8 + 4 * h, 4), vr(A, 4)))
        for ti, A in enumerate((AP, A0, A1)):
            for h in range(2):
                acc = 40 + 4 * (2 * ti + h)
                mf.append((acc, vr(A, 4), vr(B + 16 + 4 * h, 4)))
        dots = []
        for ti, A in enumerate((AP, A0, A1)):
            for r in range(4):
                dots.append("v_dot2_f32_bf16 v%d, v%d, s33, v%d" % (10 + 2 * ti, A + r, 10 + 2 * ti))
                dots.append("v_dot2_f32_bf16 v%d, v%d, v%d, v%d" % (11 + 2 * ti, A + r, A + r, 11 + 2 * ti))
        di = 0
        for mi, (acc, x, y) in enumerate(mf):
            cs = "0" if first else ar(acc, 4)
            a("v_mfma_f32_16x16x32_bf16 %s, %s, %s, %s" % (ar(acc, 4), x, y, cs))
            n = 2 if (mi & 1) == 0 else 1
            for _ in range(n):
                a(dots[di]); di += 1
        assert di == 24
        a("s_cmp_lg_u32 s29, %d" % (s & 3))
        a("s_cbranch_scc1 L_%s_cs%d" % (name, s))
        for ct in range(4):
            a("v_mfma_f32_16x16x32_bf16 %s, %s, a[88:91], %s" % (ar(64 + 4 * ct, 4), vr(B + 4 * ct, 4), ar(64 + 4 * ct, 4)))
        for ct in range(4, 6):
            a("v_mfma_f32_16x16x32_bf16 %s, a[88:91], %s, %s" % (ar(64 + 4 * ct, 4), vr(B + 4 * ct, 4), ar(64 + 4 * ct, 4)))
        a.label("L_%s_cs%d" % (name, s))
        if (s & 3) == 1 and c < 3:
            if c == 0:
                a("s_waitcnt vmcnt(31)")
            elif c == 1:
                a("s_waitcnt vmcnt(31)")
            else:
                a("s_waitcnt vmcnt(12)")
            write_w(c + 1)
            if c == 0:
                issue_w(3)
                issue_a(3)
    a("s_mov_b32 s40, 0x%x" % f2u(1.0 / 512))
    a("s_mov_b32 s41, 0x%x" % f2u(1e-5))
    sc = {"r512": 40, "eps": 41}
    a("s_nop 7")
    a("""
    v_lshrrev_b32 v22, 4, v1
    v_lshlrev_b32 v22, 4, v22
    s_lshl_b32 s34, s29, 8
    v_add_u32 v22, s34, v22
    v_and_b32 v23, 15, v1
    v_lshlrev_b32 v23, 2, v23
    s_lshl_b32 s34, s29, 7
    v_add_u32 v23, s34, v23
    s_nop 4
    """)
    for ct in range(4):
        a("ds_write_b128 v22, %s offset:%d" % (ar(64 + 4 * ct, 4), K1_CS + 64 * ct))
    for ct in range(2):
        a("ds_write_b32 v23, a%d offset:%d" % (80 + 4 * ct, K1_CS + 1024 + 64 * ct))
    bfly(a, "v_add_f32", list(range(10, 16)), list(range(24, 30)))
    for t in range(3):
        ln_finalize(a, 10 + 2 * t, 11 + 2 * t, 16 + 2 * t, 17 + 2 * t, 24, sc)
    a("""
    v_and_b32 v24, 15, v1
    v_lshlrev_b32 v24, 2, v24
    s_mul_i32 s34, s29, 384
    v_add_u32 v24, s34, v24
    v_lshrrev_b32 v25, 4, v1
    v_lshlrev_b32 v25, 4, v25
    v_add_u32 v25, s34, v25
    """)
    for t in range(3):
        a("ds_write_b32 v24, v%d offset:%d" % (16 + 2 * t, K1_VS + 128 * t))
        a("ds_write_b32 v24, v%d offset:%d" % (17 + 2 * t, K1_VS + 128 * t + 64))
    a("s_waitcnt lgkmcnt(0)")
    a("s_barrier")
    a("""
    v_lshrrev_b32 v22, 4, v1
    v_lshlrev_b32 v22, 4, v22
    v_and_b32 v23, 15, v1
    v_lshlrev_b32 v23, 2, v23
    """)
    for w in range(4):
        for ct in range(4):
            a("ds_read_b128 %s, v22 offset:%d" % (vr(104 + 16 * w + 4 * ct, 4), K1_CS + 256 * w + 64 * ct))
    for w in range(4):
        for ct in range(2):
            a("ds_read_b32 v%d, v23 offset:%d" % (168 + 2 * w + ct, K1_CS + 1024 + 128 * w + 64 * ct))
    for t in range(3):
        a("ds_read_b128 %s, v25 offset:%d" % (vr(44 + 8 * t, 4), K1_VS + 128 * t))
        a("ds_read_b128 %s, v25 offset:%d" % (vr(48 + 8 * t, 4), K1_VS + 128 * t + 64))
    a("s_waitcnt lgkmcnt(0)")
    for i in range(16):
        a("v_add_f32 v%d, v%d, v%d" % (24 + i, 104 + i, 120 + i))
        a("v_add_f32 v%d, v%d, v%d" % (136 + i, 136 + i, 152 + i))
        a("v_add_f32 v%d, v%d, v%d" % (24 + i, 24 + i, 136 + i))
    for ct in range(2):
        a("v_add_f32 v%d, v%d, v%d" % (40 + ct, 168 + ct, 170 + ct))
        a("v_add_f32 v%d, v%d, v%d" % (172 + ct, 172 + ct, 174 + ct))
        a("v_add_f32 v%d, v%d, v%d" % (40 + ct, 40 + ct, 172 + ct))
    def norm_qk(acc, cs, vm, vinv, dst):
        for r in range(4):
            a("v_accvgpr_read_b32 v%d, a%d" % (104 + r, acc + r))
        for r in range(4):
            a("v_fma_f32 v%d, -v%d, v%d, v%d" % (104 + r, vm, cs + r, 104 + r))
        for r in range(4):
            a("v_mul_f32 v%d, v%d, v%d" % (104 + r, vinv, 104 + r))
        a("v_cvt_pk_bf16_f32 v%d, v104, v105" % dst)
        a("v_cvt_pk_bf16_f32 v%d, v106, v107" % (dst + 1))

    for ti in range(2):
        for h in range(2):
            norm_qk(4 * (2 * ti + h), 24 + 4 * h, 18 + 2 * ti, 19 + 2 * ti, 72 + 2 * (2 * ti + h))
    for ti in range(3):
        for h in range(2):
            norm_qk(16 + 4 * (2 * ti + h), 32 + 4 * h, 16 + 2 * ti, 17 + 2 * ti, 80 + 2 * (2 * ti + h))
    for ti in range(3):
        for h in range(2):
            acc = 40 + 4 * (2 * ti + h)
            for r in range(4):
                a("v_accvgpr_read_b32 v%d, a%d" % (104 + r, acc + r))
            for r in range(4):
                a("v_fma_f32 v%d, -v%d, v%d, v%d" % (104 + r, 44 + 8 * ti + r, 40 + h, 104 + r))
            for r in range(4):
                a("v_mul_f32 v%d, v%d, v%d" % (104 + r, 48 + 8 * ti + r, 104 + r))
            d = 92 + 6 * h + 2 * ti
            a("v_cvt_pk_bf16_f32 v%d, v104, v105" % d)
            a("v_cvt_pk_bf16_f32 v%d, v106, v107" % (d + 1))
    a("""
    v_and_b32 v104, 15, v1
    v_lshrrev_b32 v105, 4, v1
    v_and_b32 v106, 1, v1
    v_lshl_add_u32 v105, v105, 2, v106
    v_cmp_eq_u32 s[44:45], 1, v106
    v_cmp_le_u32 s[46:47], v105, v104
    v_add_u32 v105, 2, v105
    v_cmp_le_u32 s[48:49], v105, v104
    v_lshlrev_b32 v106, 4, v106
    s_or_b32 s34, s27, s29
    s_cmp_eq_u32 s34, 0
    s_cselect_b32 s35, 0x%x, 0
    v_mov_b32 v107, s35
    v_mov_b32 v109, 0
    v_cndmask_b32 v108, v107, v109, s[46:47]
    v_cndmask_b32 v107, v107, v109, s[48:49]
    s_mov_b32 s42, 0x%x
    """ % (f2u(-1e30), f2u(0.25 * LOG2E)))
    for ti in range(2):
        for h in range(2):
            u = 2 * ti + h
            q = vr(72 + 2 * u, 2)
            a("v_mfma_f32_16x16x16_bf16 %s, %s, %s, 0" % (vr(128 + 8 * u, 4), vr(80 + 2 * (2 * ti + h), 2), q))
            a("v_mfma_f32_16x16x16_bf16 %s, %s, %s, 0" % (vr(132 + 8 * u, 4), vr(80 + 2 * (2 * ti + 2 + h), 2), q))
    a("s_nop 7")
    for u in range(4):
        Sp, Sc = 128 + 8 * u, 132 + 8 * u
        a("v_cndmask_b32 v110, v%d, v%d, s[44:45]" % (Sc, Sc + 1))
        a("v_cndmask_b32 v111, v%d, v%d, s[44:45]" % (Sp, Sp + 1))
        a("v_cndmask_b32 v%d, v111, v110, s[46:47]" % (160 + 2 * u))
        a("v_cndmask_b32 v110, v%d, v%d, s[44:45]" % (Sc + 2, Sc + 3))
        a("v_cndmask_b32 v111, v%d, v%d, s[44:45]" % (Sp + 2, Sp + 3))
        a("v_cndmask_b32 v%d, v111, v110, s[48:49]" % (161 + 2 * u))
    for u in range(4):
        a("v_cvt_pk_bf16_f32 v110, v%d, v%d" % (160 + 2 * u, 161 + 2 * u))
        a("v_lshlrev_b32 v%d, 16, v110" % (160 + 2 * u))
        a("v_and_b32 v%d, 0xffff0000, v110" % (161 + 2 * u))
        b0, b1 = (108, 107) if u < 2 else (109, 109)
        a("v_fma_f32 v%d, v%d, s42, v%d" % (160 + 2 * u, 160 + 2 * u, b0))
        a("v_fma_f32 v%d, v%d, s42, v%d" % (161 + 2 * u, 161 + 2 * u, b1))
        a("v_max_f32 v%d, v%d, v%d" % (168 + u, 160 + 2 * u, 161 + 2 * u))
    bfly(a, "v_max_f32", [168, 169, 170, 171], [172, 173, 174, 175])
    for u in range(4):
        a("v_sub_f32 v%d, v%d, v%d" % (160 + 2 * u, 160 + 2 * u, 168 + u))
        a("v_sub_f32 v%d, v%d, v%d" % (161 + 2 * u, 161 + 2 * u, 168 + u))
        a("v_exp_f32 v%d, v%d" % (160 + 2 * u, 160 + 2 * u))
        a("v_exp_f32 v%d, v%d" % (161 + 2 * u, 161 + 2 * u))
    a("s_nop 0")
    for u in range(4):
        a("v_add_f32 v%d, v%d, v%d" % (168 + u, 160 + 2 * u, 161 + 2 * u))
    bfly(a, "v_add_f32", [168, 169, 170, 171], [172, 173, 174, 175])
    for u in range(4):
        a("v_rcp_f32 v%d, v%d" % (168 + u, 168 + u))
    a("s_nop 0")
    for u in range(4):
        a("v_mul_f32 v%d, v%d, v%d" % (160 + 2 * u, 160 + 2 * u, 168 + u))
        a("v_mul_f32 v%d, v%d, v%d" % (161 + 2 * u, 161 + 2 * u, 168 + u))
        a("v_cvt_pk_bf16_f32 v110, v%d, v%d" % (160 + 2 * u, 161 + 2 * u))
        a("v_and_b32 v111, 0xffff, v110")
        a("v_lshlrev_b32 v111, v106, v111")
        a("v_lshrrev_b32 v110, 16, v110")
        a("v_lshlrev_b32 v110, v106, v110")
        P = 176 + 4 * u
        a("v_cndmask_b32 v%d, v111, v109, s[46:47]" % (P + 0))
        a("v_cndmask_b32 v%d, v110, v109, s[48:49]" % (P + 1))
        a("v_cndmask_b32 v%d, v109, v111, s[46:47]" % (P + 2))
        a("v_cndmask_b32 v%d, v109, v110, s[48:49]" % (P + 3))
    a("s_nop 1")
    for ti in range(2):
        for h in range(2):
            u = 2 * ti + h
            a("v_mfma_f32_16x16x32_bf16 %s, %s, %s, 0" % (vr(192 + 4 * u, 4), vr(92 + 6 * h + 2 * ti, 4), vr(176 + 4 * u, 4)))
    a("""
    v_lshrrev_b32 v110, 4, v1
    v_lshlrev_b32 v110, 3, v110
    v_sub_u32 v112, v3, v110
    v_add_u32 v112, s32, v112
    v_add_u32 v113, 0x4000, v112
    s_nop 4
    """)
    for ti in range(2):
        for h in range(2):
            u = 2 * ti + h
            a("v_cvt_pk_bf16_f32 v%d, v%d, v%d" % (208 + 2 * u, 192 + 4 * u, 193 + 4 * u))
            a("v_cvt_pk_bf16_f32 v%d, v%d, v%d" % (209 + 2 * u, 194 + 4 * u, 195 + 4 * u))
            a("buffer_store_dwordx2 %s, v%d, s[12:15], 0 offen offset:%d" % (vr(208 + 2 * u, 2), 112 + ti, 32 * h))
    a.label("L_%s_end" % name)
    a("s_endpgm")
    return name, a.text() + kdesc(name, 256, 192)


K2_CT = 16384 + 32
K2_LDS = 4 * K2_CT


def gen_k2(layer):
    a = Asm()
    name = "k2l%d_kernel" % layer
    khead(a, name)
    a("s_cmp_ge_u32 s2, 256")
    a("s_cbranch_scc1 L_%s_end" % name)
    a("s_load_dwordx2 s[20:21], s[0:1], 0")
    a("s_load_dwordx2 s[22:23], s[0:1], 16")
    a("s_load_dwordx2 s[24:25], s[0:1], 80")
    a("s_load_dwordx2 s[36:37], s[0:1], 32")
    a("""
    s_and_b32 s3, s2, 7
    s_lshr_b32 s26, s2, 3
    s_and_b32 s27, s3, 3
    s_lshl_b32 s27, s27, 3
    s_and_b32 s30, s26, 7
    s_add_u32 s27, s27, s30
    s_lshr_b32 s28, s3, 2
    s_lshl_b32 s28, s28, 2
    s_lshr_b32 s30, s26, 3
    s_add_u32 s28, s28, s30
    v_lshrrev_b32 v1, 6, v0
    s_nop 0
    v_readfirstlane_b32 s29, v1
    v_and_b32 v1, 63, v0
    s_lshr_b32 s30, s29, 1
    s_and_b32 s31, s29, 1
    """)
    a("""
    s_lshl_b32 s34, s27, 6
    s_lshl_b32 s35, s30, 5
    s_add_u32 s34, s34, s35
    s_lshl_b32 s35, s34, 10
    v_and_b32 v2, 15, v1
    v_lshlrev_b32 v2, 10, v2
    v_lshrrev_b32 v4, 4, v1
    v_lshl_add_u32 v2, v4, 4, v2
    v_add_u32 v2, s35, v2
    v_add_u32 v3, 0x4000, v2
    """)
    a("""
    v_lshrrev_b32 v8, 3, v0
    v_lshlrev_b32 v5, 10, v8
    v_and_b32 v9, 7, v0
    v_lshl_add_u32 v5, v9, 4, v5
    s_lshl_b32 s35, s28, 7
    v_add_u32 v5, s35, v5
    v_and_b32 v10, 0x13, v8
    v_and_b32 v11, 4, v8
    v_lshl_or_b32 v10, v11, 1, v10
    v_and_b32 v11, 8, v8
    v_lshrrev_b32 v11, 1, v11
    v_or_b32 v10, v10, v11
    v_lshlrev_b32 v6, 5, v10
    v_and_b32 v11, 1, v9
    v_lshl_add_u32 v6, v11, 4, v6
    v_lshrrev_b32 v11, 1, v9
    v_mul_u32_u24 v11, %d, v11
    v_add_u32 v6, v6, v11
    """ % K2_CT)
    a("""
    v_lshrrev_b32 v10, 5, v1
    v_lshlrev_b32 v8, 4, v10
    v_bfe_u32 v10, v1, 4, 1
    v_lshl_add_u32 v8, v10, 2, v8
    v_bfe_u32 v10, v1, 2, 2
    v_add_u32 v8, v8, v10
    v_lshlrev_b32 v8, 5, v8
    v_and_b32 v10, 3, v1
    v_lshl_add_u32 v8, v10, 3, v8
    s_mul_i32 s35, s31, %d
    v_add_u32 v8, s35, v8
    """ % (2 * K2_CT))
    a("""
    v_lshrrev_b32 v10, 4, v1
    v_lshlrev_b32 v10, 3, v10
    v_sub_u32 v9, v2, v10
    s_lshl_b32 s35, s28, 7
    s_lshl_b32 s38, s31, 6
    s_add_u32 s35, s35, s38
    v_add_u32 v9, s35, v9
    v_add_u32 v12, 0x4000, v9
    v_add_u32 v13, s35, v10
    """)
    a("s_waitcnt lgkmcnt(0)")
    srd(a, 4, 24, 25, O_OFF, 2 * MB)
    srd(a, 8, 22, 23, 0, 512 * 1024)
    if layer == 0:
        srd(a, 12, 20, 21, 0, 2 * MB)
    else:
        srd(a, 12, 24, 25, X2_OFF, 2 * MB)
    srd(a, 16, 24, 25, X1_OFF, 2 * MB)
    srd(a, 40, 24, 25, ST_OFF[layer], 32768)
    srd(a, 44, 36, 37, 0, 1024)

    def issue_w(c):
        for i in range(4):
            k0 = 128 * c + 32 * i
            a("s_mov_b32 s34, 0x%x" % (k0 * 1024))
            a("buffer_load_dwordx4 %s, v5, s[8:11], s34 offen" % ar(16 * c + 4 * i, 4))

    def issue_a(c):
        for s in range(4 * c, 4 * c + 4):
            for t, vo in enumerate((2, 3)):
                a("buffer_load_dwordx4 %s, v%d, s[4:7], 0 offen offset:%d" % (vr(64 + 64 * t + 4 * s, 4), vo, s * 64))

    for c in range(4):
        issue_w(c)
        issue_a(c)
    for ti, vo in enumerate((9, 12)):
        for ct in range(2):
            a("buffer_load_dwordx2 %s, v%d, s[12:15], 0 offen offset:%d" % (vr(48 + 4 * ti + 2 * ct, 2), vo, 32 * ct))
    for ct in range(2):
        a("buffer_load_dwordx2 %s, v13, s[44:47], 0 offen offset:%d" % (vr(56 + 2 * ct, 2), 32 * ct))
    for c in range(4):
        after_w = 8 + 12 * (3 - c) + 6
        a("s_waitcnt vmcnt(%d)" % after_w)
        for i in range(4):
            a("ds_write_b128 v6, %s offset:%d" % (ar(16 * c + 4 * i, 4), (128 * c + 32 * i) * 32))
        a("s_waitcnt lgkmcnt(0)")
        a("s_barrier")
        for s in range(4 * c, 4 * c + 4):
            for ct in range(2):
                off = ct * K2_CT + s * 1024
                b = 192 + 8 * (s & 3) + 4 * ct
                a("ds_read_b64_tr_b16 %s, v8 offset:%d" % (vr(b, 2), off))
                a("ds_read_b64_tr_b16 %s, v8 offset:%d" % (vr(b + 2, 2), off + 256))
        a("s_waitcnt vmcnt(%d)" % (after_w - 8))
        for s in range(4 * c, 4 * c + 4):
            a("s_waitcnt lgkmcnt(%d)" % (4 * (3 - (s & 3))))
            for ti in range(2):
                for ct in range(2):
                    acc = 32 + 4 * (2 * ti + ct)
                    cs = "0" if s == 0 else vr(acc, 4)
                    a("v_mfma_f32_16x16x32_bf16 %s, %s, %s, %s" % (vr(acc, 4), vr(192 + 8 * (s & 3) + 4 * ct, 4), vr(64 + 64 * ti + 4 * s, 4), cs))
    a("s_waitcnt vmcnt(0)")
    a("s_nop 7")
    for ct in range(2):
        for j in range(2):
            a("v_lshlrev_b32 v%d, 16, v%d" % (64 + 4 * ct + 2 * j, 56 + 2 * ct + j))
            a("v_and_b32 v%d, 0xffff0000, v%d" % (65 + 4 * ct + 2 * j, 56 + 2 * ct + j))
    for ti in range(2):
        S, Q, D = 80 + 4 * ti, 81 + 4 * ti, 82 + 4 * ti
        for ct in range(2):
            acc = 32 + 4 * (2 * ti + ct)
            xr = 48 + 4 * ti + 2 * ct
            for j in range(2):
                a("v_cvt_pk_bf16_f32 v72, v%d, v%d" % (acc + 2 * j, acc + 2 * j + 1))
                a("v_lshlrev_b32 v73, 16, v72")
                a("v_and_b32 v74, 0xffff0000, v72")
                a("v_lshlrev_b32 v75, 16, v%d" % (xr + j))
                a("v_and_b32 v76, 0xffff0000, v%d" % (xr + j))
                a("v_add_f32 v73, v73, v75")
                a("v_add_f32 v74, v74, v76")
                a("v_cvt_pk_bf16_f32 v%d, v73, v74" % (xr + j))
                a("v_lshlrev_b32 v73, 16, v%d" % (xr + j))
                a("v_and_b32 v74, 0xffff0000, v%d" % (xr + j))
                w0, w1 = 64 + 4 * ct + 2 * j, 65 + 4 * ct + 2 * j
                if ct == 0 and j == 0:
                    a("v_add_f32 v%d, v73, v74" % S)
                    a("v_mul_f32 v%d, v73, v73" % Q)
                    a("v_mul_f32 v%d, v73, v%d" % (D, w0))
                else:
                    a("v_add_f32 v%d, v%d, v73" % (S, S))
                    a("v_add_f32 v%d, v%d, v74" % (S, S))
                    a("v_fma_f32 v%d, v73, v73, v%d" % (Q, Q))
                    a("v_fma_f32 v%d, v73, v%d, v%d" % (D, w0, D))
                a("v_fma_f32 v%d, v74, v74, v%d" % (Q, Q))
                a("v_fma_f32 v%d, v74, v%d, v%d" % (D, w1, D))
            a("buffer_store_dwordx2 %s, v%d, s[16:19], 0 offen offset:%d" % (vr(xr, 2), (9, 12)[ti], 32 * ct))
    bfly(a, "v_add_f32", [80, 81, 82, 84, 85, 86], [88, 89, 90, 91, 92, 93])
    a("""
    v_lshrrev_b32 v88, 4, v1
    v_cmp_eq_u32 s[48:49], 1, v88
    v_cmp_eq_u32 s[50:51], 2, v88
    v_cmp_eq_u32 s[52:53], 3, v88
    v_lshrrev_b32 v89, 6, v2
    v_and_b32 v89, 0xfffffff0, v89
    v_lshl_add_u32 v89, v88, 2, v89
    v_add_u32 v90, 256, v89
    """)
    for ti in range(2):
        S = 80 + 4 * ti
        a("v_cndmask_b32 v%d, v%d, v%d, s[48:49]" % (S, S, S + 1))
        a("v_cndmask_b32 v%d, v%d, v%d, s[50:51]" % (S, S, S + 2))
    a("s_andn2_b64 exec, exec, s[52:53]")
    for ti in range(2):
        S = 80 + 4 * ti
        a("buffer_atomic_add_f32 v%d, v%d, s[40:43], 0 offen" % (S, 89 + ti))
    a.label("L_%s_end" % name)
    a("s_endpgm")
    return name, a.text() + kdesc(name, 256, 64)


K3_MS = 0
K3_WGU = 16384
K3_XS = 32768
K3_XSP = 1040
K3_CAND = K3_XS + 16 * K3_XSP
K3_SEL = K3_CAND + 128
K3_RED = K3_SEL + 128
K3_LDS = K3_RED + 4096


def gen_k3a(layer):
    a = Asm()
    name = "k3al%d_kernel" % layer
    khead(a, name)
    a("s_cmp_ge_u32 s2, 256")
    a("s_cbranch_scc1 L_%s_end" % name)
    a("s_load_dwordx4 s[20:23], s[0:1], 32")
    a("s_load_dwordx2 s[26:27], s[0:1], 48")
    a("s_load_dwordx2 s[24:25], s[0:1], 80")
    a("s_load_dwordx2 s[28:29], s[0:1], 64")
    a("""
    v_lshrrev_b32 v1, 6, v0
    s_nop 0
    v_readfirstlane_b32 s30, v1
    v_and_b32 v1, 63, v0
    s_and_b32 s3, s2, 7
    s_lshr_b32 s31, s2, 3
    s_mul_i32 s32, s3, 28
    s_add_u32 s32, s32, s31
    s_lshl_b32 s32, s32, 4
    """)
    a("s_waitcnt lgkmcnt(0)")
    srd(a, 4, 24, 25, ST_OFF[layer], 32768)
    srd(a, 8, 24, 25, X1_OFF, 2 * MB)
    if layer == 0:
        srd(a, 12, 24, 25, X2_OFF, 2 * MB)
    else:
        srd(a, 12, 28, 29, 0, 2 * MB)
    srd(a, 16, 20, 21, 0, 1024)
    srd(a, 36, 22, 23, 0, 512 * 3584)
    srd(a, 40, 26, 27, 0, 512 * 3584)
    srd(a, 44, 24, 25, SEL_OFF[layer], 64)
    srd(a, 48, 24, 25, XS_OFF[layer], 8192)
    srd(a, 52, 24, 25, H_OFF[layer], 8 * 3584)
    a("v_lshlrev_b32 v2, 7, v0")
    for i in range(8):
        a("buffer_load_dwordx4 %s, v2, s[4:7], 0 offen offset:%d" % (vr(64 + 4 * i, 4), 16 * i))
    a("v_lshlrev_b32 v3, 4, v1")
    a("buffer_load_dwordx4 v[96:99], v3, s[16:19], 0 offen")
    a("""
    s_lshl_b32 s33, s2, 13
    v_lshlrev_b32 v4, 4, v0
    v_add_u32 v4, s33, v4
    """)
    a("buffer_load_dwordx4 v[100:103], v4, s[8:11], 0 offen")
    a("v_add_u32 v5, 4096, v4")
    a("buffer_load_dwordx4 v[104:107], v5, s[8:11], 0 offen")
    a("""
    s_cmp_lt_u32 s31, 28
    s_cselect_b32 s33, s32, 0x7ff00000
    v_mul_u32_u24 v6, 3584, v0
    v_add_u32 v6, s33, v6
    v_add_u32 v7, %d, v6
    """ % (256 * 3584))
    a("buffer_load_dwordx4 v[108:111], v6, s[36:39], 0 offen")
    a("buffer_load_dwordx4 v[112:115], v7, s[36:39], 0 offen")
    a("buffer_load_dwordx4 v[116:119], v6, s[40:43], 0 offen")
    a("buffer_load_dwordx4 v[120:123], v7, s[40:43], 0 offen")
    a("s_mov_b32 s56, 0x%x" % f2u(1.0 / 512))
    a("s_mov_b32 s57, 0x%x" % f2u(1e-5))
    a("s_mov_b32 s58, 0x%x" % ONES_BF)
    sc = {"r512": 56, "eps": 57}
    a("s_waitcnt vmcnt(6)")
    a("v_mov_b32 v8, 0")
    for r in range(4):
        a("v_dot2_f32_bf16 v8, v%d, s58, v8" % (96 + r))
    a("s_nop 2")
    for sh in (1, 2, 4, 8):
        a("v_add_f32_dpp v8, v8, v8 row_ror:%d row_mask:0xf bank_mask:0xf" % sh)
        a("s_nop 1")
    bfly(a, "v_add_f32", [8], [9])
    a("v_lshlrev_b32 v10, 6, v0")
    a("v_lshlrev_b32 v11, 3, v0")
    a("v_sub_u32 v11, 2047, v11")
    for i in range(8):
        b = 64 + 4 * i
        ln_finalize(a, b, b + 1, 12, 13, 14, sc)
        a("v_fma_f32 v15, -v12, v8, v%d" % (b + 2))
        a("v_mul_f32 v15, v15, v13")
        a("v_cvt_pk_bf16_f32 v15, v15, v15")
        a("v_lshlrev_b32 v15, 16, v15")
        a("v_ashrrev_i32 v16, 31, v15")
        a("v_or_b32 v16, 0x80000000, v16")
        a("v_xor_b32 v15, v15, v16")
        a("v_and_b32 v15, 0xffff0000, v15")
        a("v_subrev_u32 v16, %d, v11" % i)
        a("v_or_b32 v%d, v15, v16" % (20 + i))
        a("v_mov_b32 v%d, v12" % (b))
        a("v_mov_b32 v%d, v14" % (b + 1))
        a("ds_write_b64 v10, %s offset:%d" % (vr(b, 2), K3_MS + 8 * i))
    a("""
    v_and_b32 v12, 0xf3, v0
    v_and_b32 v13, 4, v0
    v_lshl_or_b32 v12, v13, 1, v12
    v_and_b32 v13, 8, v0
    v_lshrrev_b32 v13, 1, v13
    v_or_b32 v12, v12, v13
    v_lshlrev_b32 v12, 5, v12
    """)
    a("s_waitcnt vmcnt(0)")
    a("ds_write_b128 v12, v[108:111] offset:%d" % (K3_WGU))
    a("ds_write_b128 v12, v[116:119] offset:%d" % (K3_WGU + 16))
    a("ds_write_b128 v12, v[112:115] offset:%d" % (K3_WGU + 8192))
    a("ds_write_b128 v12, v[120:123] offset:%d" % (K3_WGU + 8192 + 16))
    net = [(0, 1), (2, 3), (4, 5), (6, 7), (0, 2), (1, 3), (4, 6), (5, 7), (1, 2), (5, 6),
           (0, 4), (1, 5), (2, 6), (3, 7), (2, 4), (3, 5), (1, 2), (3, 4), (5, 6)]
    for (i, j) in net:
        a("v_max_u32 v12, v%d, v%d" % (20 + i, 20 + j))
        a("v_min_u32 v%d, v%d, v%d" % (20 + j, 20 + i, 20 + j))
        a("v_mov_b32 v%d, v12" % (20 + i))
    a("v_mov_b32 v30, 0")
    for rd in range(8):
        a("v_mov_b32 v12, v20")
        a("s_nop 1")
        for sh in (1, 2, 4, 8):
            a("v_max_u32_dpp v12, v12, v12 row_ror:%d row_mask:0xf bank_mask:0xf" % sh)
            a("s_nop 1")
        bfly(a, "v_max_u32", [12], [13])
        a("v_cmp_eq_u32 vcc, v12, v20")
        a("v_cmp_eq_u32 s[60:61], %d, v1" % rd)
        a("s_nop 0")
        for i in range(7):
            a("v_cndmask_b32 v%d, v%d, v%d, vcc" % (20 + i, 20 + i, 21 + i))
        a("v_mov_b32 v13, 0")
        a("v_cndmask_b32 v27, v27, v13, vcc")
        a("v_cndmask_b32 v30, v30, v12, s[60:61]")
    a("""
    s_lshl_b32 s33, s30, 5
    v_lshlrev_b32 v12, 2, v1
    v_add_u32 v12, s33, v12
    v_cmp_gt_u32 vcc, 8, v1
    s_and_saveexec_b64 s[62:63], vcc
    ds_write_b32 v12, v30 offset:%d
    s_mov_b64 exec, s[62:63]
    s_waitcnt lgkmcnt(0)
    s_barrier
    """ % K3_CAND)
    a("v_and_b32 v12, 31, v1")
    a("v_lshlrev_b32 v12, 2, v12")
    a("ds_read_b32 v30, v12 offset:%d" % K3_CAND)
    a("v_mov_b32 v13, 0")
    for i in range(8):
        a("ds_read_b128 %s, v13 offset:%d" % (vr(32 + 4 * i, 4), K3_CAND + 16 * i))
    a("v_mov_b32 v14, 0")
    a("s_waitcnt lgkmcnt(0)")
    for i in range(32):
        a("v_cmp_gt_u32 vcc, v%d, v30" % (32 + i))
        a("v_addc_co_u32 v14, vcc, 0, v14, vcc")
    a("""
    v_cmp_gt_u32 vcc, 8, v14
    v_cmp_gt_u32 s[60:61], 32, v1
    s_and_b64 vcc, vcc, s[60:61]
    v_lshlrev_b32 v14, 2, v14
    s_and_saveexec_b64 s[62:63], vcc
    ds_write_b32 v14, v30 offset:%d
    s_mov_b64 exec, s[62:63]
    s_waitcnt lgkmcnt(0)
    """ % K3_SEL)
    a("""
    v_lshrrev_b32 v12, 5, v0
    v_lshlrev_b32 v12, 2, v12
    ds_read_b32 v31, v12 offset:%d
    s_waitcnt lgkmcnt(0)
    v_and_b32 v13, 0xffff, v31
    v_sub_u32 v13, 2047, v13
    v_lshlrev_b32 v14, 10, v13
    v_and_b32 v15, 31, v0
    v_lshl_add_u32 v14, v15, 5, v14
    buffer_load_dwordx4 v[32:35], v14, s[8:11], 0 offen
    buffer_load_dwordx4 v[36:39], v14, s[8:11], 0 offen offset:16
    v_lshlrev_b32 v16, 3, v13
    ds_read_b64 v[40:41], v16 offset:%d
    """ % (K3_SEL, K3_MS))
    a("""
    v_lshrrev_b32 v17, 6, v0
    s_lshl_b32 s33, s2, 3
    v_add_u32 v17, s33, v17
    v_lshlrev_b32 v17, 3, v17
    ds_read_b64 v[42:43], v17 offset:%d
    ds_read_b64 v[44:45], v17 offset:%d
    s_waitcnt lgkmcnt(0)
    v_rcp_f32 v46, v43
    v_rcp_f32 v47, v45
    v_rcp_f32 v48, v41
    """ % (K3_MS, K3_MS + 32))

    def norm_pair(src, vm, vinv, mode):
        a("v_lshlrev_b32 v50, 16, v%d" % src)
        a("v_and_b32 v51, 0xffff0000, v%d" % src)
        a("v_sub_f32 v52, v50, v%d" % vm)
        a("v_sub_f32 v53, v51, v%d" % vm)
        a("v_cvt_pk_bf16_f32 v54, v52, v53")
        a("v_lshlrev_b32 v52, 16, v54")
        a("v_and_b32 v53, 0xffff0000, v54")
        a("v_mul_f32 v52, v52, v%d" % vinv)
        a("v_mul_f32 v53, v53, v%d" % vinv)
        if mode == "xn":
            a("v_cvt_pk_bf16_f32 v%d, v52, v53" % src)
        else:
            a("v_cvt_pk_bf16_f32 v54, v52, v53")
            a("v_lshlrev_b32 v52, 16, v54")
            a("v_and_b32 v53, 0xffff0000, v54")
            a("v_add_f32 v52, v52, v50")
            a("v_add_f32 v53, v53, v51")
            a("v_cvt_pk_bf16_f32 v%d, v52, v53" % src)

    for r in range(4):
        norm_pair(100 + r, 42, 46, "x2")
    a("buffer_store_dwordx4 v[100:103], v4, s[12:15], 0 offen")
    for r in range(4):
        norm_pair(104 + r, 44, 47, "x2")
    a("buffer_store_dwordx4 v[104:107], v5, s[12:15], 0 offen")
    a("s_waitcnt vmcnt(2)")
    for r in range(8):
        norm_pair(32 + r, 40, 48, "xn")
    a("""
    v_lshrrev_b32 v12, 5, v0
    v_mul_u32_u24 v12, %d, v12
    v_and_b32 v15, 31, v0
    v_lshl_add_u32 v12, v15, 5, v12
    ds_write_b128 v12, v[32:35] offset:%d
    ds_write_b128 v12, v[36:39] offset:%d
    """ % (K3_XSP, K3_XS, K3_XS + 16))
    a("s_cmp_lg_u32 s2, 0")
    a("s_cbranch_scc1 L_%s_nopub" % name)
    a("""
    v_lshlrev_b32 v12, 5, v0
    buffer_store_dwordx4 v[32:35], v12, s[48:51], 0 offen
    buffer_store_dwordx4 v[36:39], v12, s[48:51], 0 offen offset:16
    v_and_b32 v50, 0x8000, v31
    v_lshlrev_b32 v50, 16, v50
    v_ashrrev_i32 v50, 31, v50
    v_not_b32 v50, v50
    v_or_b32 v50, 0x80000000, v50
    v_and_b32 v51, 0xffff0000, v31
    """)
    a("""
    v_ashrrev_i32 v50, 31, v51
    v_not_b32 v50, v50
    v_or_b32 v50, 0x80000000, v50
    v_xor_b32 v51, v51, v50
    v_and_b32 v51, 0xffff0000, v51
    v_mul_f32 v52, 0x%x, v51
    v_exp_f32 v52, v52
    s_nop 0
    v_add_f32 v52, 1.0, v52
    v_rcp_f32 v52, v52
    s_nop 0
    v_cvt_pk_bf16_f32 v52, v52, v52
    v_lshlrev_b32 v52, 16, v52
    v_lshrrev_b32 v12, 5, v0
    v_lshlrev_b32 v12, 2, v12
    v_and_b32 v15, 31, v0
    v_cmp_eq_u32 vcc, 0, v15
    v_mov_b32 v53, 0x7ffffff0
    s_nop 0
    v_cndmask_b32 v12, v53, v12, vcc
    buffer_store_dword v13, v12, s[44:47], 0 offen
    buffer_store_dword v52, v12, s[44:47], 0 offen offset:32
    """ % f2u(-LOG2E))
    a.label("L_%s_nopub" % name)
    a("s_cmp_ge_u32 s31, 28")
    a("s_cbranch_scc1 L_%s_end" % name)
    a("s_waitcnt lgkmcnt(0)")
    a("s_barrier")
    a("""
    v_lshrrev_b32 v10, 5, v1
    v_lshlrev_b32 v8, 4, v10
    v_bfe_u32 v10, v1, 4, 1
    v_lshl_add_u32 v8, v10, 2, v8
    v_bfe_u32 v10, v1, 2, 2
    v_add_u32 v8, v8, v10
    v_lshlrev_b32 v8, 5, v8
    v_and_b32 v10, 3, v1
    v_lshl_add_u32 v8, v10, 3, v8
    s_lshl_b32 s33, s30, 12
    v_add_u32 v8, s33, v8
    v_and_b32 v9, 7, v1
    v_mul_u32_u24 v9, %d, v9
    v_lshrrev_b32 v10, 4, v1
    v_lshl_add_u32 v9, v10, 4, v9
    s_lshl_b32 s33, s30, 8
    v_add_u32 v9, s33, v9
    """ % K3_XSP)
    for s in range(4):
        a("ds_read_b64_tr_b16 %s, v8 offset:%d" % (vr(64 + 4 * s, 2), K3_WGU + 1024 * s))
        a("ds_read_b64_tr_b16 %s, v8 offset:%d" % (vr(66 + 4 * s, 2), K3_WGU + 1024 * s + 256))
        a("ds_read_b128 %s, v9 offset:%d" % (vr(80 + 4 * s, 4), K3_XS + 64 * s))
    a("s_waitcnt lgkmcnt(0)")
    for s in range(4):
        a("v_mfma_f32_16x16x32_bf16 v[96:99], %s, %s, %s" % (vr(64 + 4 * s, 4), vr(80 + 4 * s, 4), "0" if s == 0 else "v[96:99]"))
    a("""
    v_lshlrev_b32 v10, 4, v1
    s_lshl_b32 s33, s30, 10
    v_add_u32 v11, s33, v10
    s_nop 7
    ds_write_b128 v11, v[96:99] offset:%d
    s_waitcnt lgkmcnt(0)
    s_barrier
    """ % K3_RED)
    a("s_cmp_lg_u32 s30, 0")
    a("s_cbranch_scc1 L_%s_end" % name)
    for w in range(1, 4):
        a("ds_read_b128 %s, v10 offset:%d" % (vr(96 + 4 * w, 4), K3_RED + 1024 * w))
    a("s_waitcnt lgkmcnt(0)")
    for r in range(4):
        a("v_add_f32 v%d, v%d, v%d" % (96 + r, 96 + r, 100 + r))
        a("v_add_f32 v%d, v%d, v%d" % (104 + r, 104 + r, 108 + r))
        a("v_add_f32 v%d, v%d, v%d" % (96 + r, 96 + r, 104 + r))
    for r in range(4):
        rbf(a, 96 + r)
        a("v_mov_b32 v%d, v%d" % (100 + r, 96 + r))
    a("s_nop 1")
    for r in range(4):
        a("v_permlane32_swap_b32 v%d, v%d" % (96 + r, 100 + r))
    a("s_mov_b32 s33, 0x%x" % f2u(-LOG2E))
    for r in range(4):
        a("v_mul_f32 v%d, s33, v%d" % (104 + r, 96 + r))
        a("v_exp_f32 v%d, v%d" % (104 + r, 104 + r))
    a("s_nop 0")
    for r in range(4):
        a("v_add_f32 v%d, 1.0, v%d" % (104 + r, 104 + r))
        a("v_rcp_f32 v%d, v%d" % (104 + r, 104 + r))
    a("s_nop 0")
    for r in range(4):
        a("v_mul_f32 v%d, v%d, v%d" % (96 + r, 96 + r, 104 + r))
        rbf(a, 96 + r)
        a("v_mul_f32 v%d, v%d, v%d" % (96 + r, 96 + r, 100 + r))
    a("v_cvt_pk_bf16_f32 v96, v96, v97")
    a("v_cvt_pk_bf16_f32 v97, v98, v99")
    a("""
    v_and_b32 v10, 15, v1
    v_mul_u32_u24 v11, 3584, v10
    v_lshrrev_b32 v12, 4, v1
    v_lshl_add_u32 v11, v12, 3, v11
    v_add_u32 v11, s32, v11
    v_cmp_gt_u32 vcc, 8, v10
    v_cmp_gt_u32 s[60:61], 32, v1
    s_and_b64 vcc, vcc, s[60:61]
    v_mov_b32 v12, 0x7ffffff0
    s_nop 0
    v_cndmask_b32 v11, v12, v11, vcc
    buffer_store_dwordx2 v[96:97], v11, s[52:55], 0 offen
    """)
    a.label("L_%s_end" % name)
    a("s_endpgm")
    return name, a.text() + kdesc(name, 128, 0)


K4_WD = 0
K4_WSTR = 448 * 16 + 64
K4_RED = 4 * K4_WSTR
K4_LDS = K4_RED + 4096


def gen_k3b(layer):
    a = Asm()
    name = "k3bl%d_kernel" % layer
    khead(a, name)
    a("s_cmp_ge_u32 s2, 64")
    a("s_cbranch_scc1 L_%s_end" % name)
    a("s_load_dwordx4 s[20:23], s[0:1], 56")
    a("s_load_dwordx2 s[24:25], s[0:1], 80")
    a("""
    v_lshrrev_b32 v1, 6, v0
    s_nop 0
    v_readfirstlane_b32 s30, v1
    v_and_b32 v1, 63, v0
    s_lshl_b32 s32, s2, 4
    s_mul_i32 s33, s30, %d
    """ % (448 * 1024))
    a("s_waitcnt lgkmcnt(0)")
    srd(a, 4, 20, 21, 0, 1792 * 1024)
    srd(a, 8, 24, 25, H_OFF[layer], 8 * 3584)
    srd(a, 12, 24, 25, X1_OFF, 2 * MB)
    if layer == 0:
        srd(a, 16, 24, 25, X2_OFF, 2 * MB)
    else:
        srd(a, 16, 22, 23, 0, 2 * MB)
    srd(a, 36, 24, 25, SEL_OFF[layer], 64)
    srd(a, 40, 24, 25, XS_OFF[layer], 8192)
    a("""
    s_add_u32 s33, s33, s32
    v_lshlrev_b32 v2, 10, v1
    v_add_u32 v2, s33, v2
    """)
    for i in range(7):
        a("s_mov_b32 s34, 0x%x" % (65536 * i))
        a("buffer_load_dwordx4 %s, v2, s[4:7], s34 offen" % vr(32 + 4 * i, 4))
    a("""
    v_and_b32 v3, 7, v1
    v_mul_u32_u24 v3, 3584, v3
    v_lshrrev_b32 v4, 4, v1
    v_lshl_add_u32 v3, v4, 4, v3
    s_mul_i32 s34, s30, 896
    v_add_u32 v3, s34, v3
    """)
    for s in range(14):
        a("buffer_load_dwordx4 %s, v3, s[8:11], 0 offen offset:%d" % (vr(64 + 4 * s, 4), 64 * s))
    a("""
    v_and_b32 v5, 7, v1
    v_lshlrev_b32 v5, 2, v5
    buffer_load_dword v6, v5, s[36:39], 0 offen
    buffer_load_dword v7, v5, s[36:39], 0 offen offset:32
    """)
    a("""
    v_and_b32 v10, 0x33, v1
    v_and_b32 v11, 4, v1
    v_lshl_or_b32 v10, v11, 1, v10
    v_and_b32 v11, 8, v1
    v_lshrrev_b32 v11, 1, v11
    v_or_b32 v10, v10, v11
    v_lshlrev_b32 v10, 4, v10
    s_mul_i32 s34, s30, %d
    v_add_u32 v10, s34, v10
    v_lshrrev_b32 v11, 5, v1
    v_lshlrev_b32 v8, 4, v11
    v_bfe_u32 v11, v1, 4, 1
    v_lshl_add_u32 v8, v11, 2, v8
    v_bfe_u32 v11, v1, 2, 2
    v_add_u32 v8, v8, v11
    v_lshlrev_b32 v8, 4, v8
    v_and_b32 v11, 3, v1
    v_lshl_add_u32 v8, v11, 3, v8
    v_add_u32 v8, s34, v8
    """ % K4_WSTR)
    a("s_waitcnt vmcnt(16)")
    for i in range(7):
        a("ds_write_b128 v10, %s offset:%d" % (vr(32 + 4 * i, 4), K4_WD + 1024 * i))
    a("s_waitcnt lgkmcnt(0)")
    for s in range(14):
        a("ds_read_b64_tr_b16 %s, v8 offset:%d" % (vr(128 + 4 * s, 2), K4_WD + 512 * s))
        a("ds_read_b64_tr_b16 %s, v8 offset:%d" % (vr(130 + 4 * s, 2), K4_WD + 512 * s + 128))
        if s == 6:
            a("s_waitcnt lgkmcnt(0)")
    a("s_waitcnt vmcnt(0)")
    a("""
    v_lshrrev_b32 v4, 4, v1
    v_lshlrev_b32 v4, 3, v4
    v_add_u32 v4, s32, v4
    v_lshl_add_u32 v12, v6, 10, v4
    v_and_b32 v5, 7, v1
    v_lshl_add_u32 v13, v5, 10, v4
    buffer_load_dwordx2 v[14:15], v12, s[12:15], 0 offen
    buffer_load_dwordx2 v[16:17], v13, s[40:43], 0 offen
    """)
    a("s_waitcnt lgkmcnt(0)")
    for s in range(14):
        a("v_mfma_f32_16x16x32_bf16 v[20:23], %s, %s, %s" % (vr(128 + 4 * s, 4), vr(64 + 4 * s, 4), "0" if s == 0 else "v[20:23]"))
    a("""
    v_lshlrev_b32 v10, 4, v1
    s_lshl_b32 s33, s30, 10
    v_add_u32 v11, s33, v10
    s_nop 7
    ds_write_b128 v11, v[20:23] offset:%d
    s_waitcnt lgkmcnt(0)
    s_barrier
    """ % K4_RED)
    a("s_cmp_lg_u32 s30, 0")
    a("s_cbranch_scc1 L_%s_end" % name)
    for w in range(1, 4):
        a("ds_read_b128 %s, v10 offset:%d" % (vr(20 + 4 * w, 4), K4_RED + 1024 * w))
    a("s_waitcnt lgkmcnt(0) vmcnt(0)")
    for r in range(4):
        a("v_add_f32 v%d, v%d, v%d" % (20 + r, 20 + r, 24 + r))
        a("v_add_f32 v%d, v%d, v%d" % (28 + r, 28 + r, 32 + r))
        a("v_add_f32 v%d, v%d, v%d" % (20 + r, 20 + r, 28 + r))
    for j in range(2):
        a("v_cvt_pk_bf16_f32 v40, v%d, v%d" % (20 + 2 * j, 21 + 2 * j))
        a("v_lshlrev_b32 v41, 16, v40")
        a("v_and_b32 v42, 0xffff0000, v40")
        a("v_mul_f32 v41, v41, v7")
        a("v_mul_f32 v42, v42, v7")
        a("v_cvt_pk_bf16_f32 v40, v41, v42")
        a("v_lshlrev_b32 v41, 16, v40")
        a("v_and_b32 v42, 0xffff0000, v40")
        a("v_lshlrev_b32 v43, 16, v%d" % (16 + j))
        a("v_and_b32 v44, 0xffff0000, v%d" % (16 + j))
        a("v_add_f32 v41, v41, v43")
        a("v_add_f32 v42, v42, v44")
        a("v_cvt_pk_bf16_f32 v40, v41, v42")
        a("v_lshlrev_b32 v41, 16, v40")
        a("v_and_b32 v42, 0xffff0000, v40")
        a("v_lshlrev_b32 v43, 16, v%d" % (14 + j))
        a("v_and_b32 v44, 0xffff0000, v%d" % (14 + j))
        a("v_add_f32 v41, v41, v43")
        a("v_add_f32 v42, v42, v44")
        a("v_cvt_pk_bf16_f32 v%d, v41, v42" % (46 + j))
    a("""
    v_and_b32 v10, 15, v1
    v_cmp_gt_u32 vcc, 8, v10
    v_cmp_gt_u32 s[60:61], 32, v1
    s_and_b64 vcc, vcc, s[60:61]
    v_mov_b32 v11, 0x7ffffff0
    s_nop 0
    v_cndmask_b32 v12, v11, v12, vcc
    buffer_store_dwordx2 v[46:47], v12, s[16:19], 0 offen
    """)
    a.label("L_%s_end" % name)
    a("s_endpgm")
    return name, a.text() + kdesc(name, 192, 0)


HEADER = """; generated by wk/gen.py - multi-kernel launch list
"""


def build_parts():
    parts = []
    launches = []
    for layer in range(2):
        for g, grid, lds in ((gen_k1, 256, K1_LDS), (gen_k2, 256, K2_LDS), (gen_k3a, 256, K3_LDS), (gen_k3b, 64, K4_LDS)):
            n, t = g(layer)
            parts.append(t)
            launches.append("; @launch kernel=%s grid=(%d,1,1) block=(256,1,1) lds=%d" % (n, grid, lds))
    return parts, launches


def main(out):
    parts, launches = build_parts()
    txt = HEADER + "\n".join(launches) + "\n" + '.amdgcn_target "amdgcn-amd-amdhsa--gfx950"\n' + "\n".join(parts)
    open(out, "w").write(txt)


if __name__ == "__main__":
    main(sys.argv[1] if len(sys.argv) > 1 else "interleave_layers__sliding_local_dilated__moe_arch_mod__prompt.s")
```

```python
from gen import *
import gen

K1_MISC = 0
K1_S0 = 1024
K1_SLOT = 36864
K1_AW = 12288
K1_LDS2 = K1_S0 + 4 * K1_SLOT


def gen_k1(layer):
    a = Asm()
    name = "k1l%d_kernel" % layer
    khead(a, name)
    a("s_cmp_ge_u32 s2, 256")
    a("s_cbranch_scc1 L_%s_end" % name)
    a("s_load_dwordx4 s[20:23], s[0:1], 0")
    a("s_load_dwordx2 s[24:25], s[0:1], 80")
    a("""
    s_and_b32 s3, s2, 7
    s_lshr_b32 s26, s2, 3
    s_and_b32 s27, s3, 3
    s_lshl_b32 s27, s27, 3
    s_and_b32 s30, s26, 7
    s_add_u32 s27, s27, s30
    s_lshr_b32 s28, s3, 2
    s_lshl_b32 s28, s28, 2
    s_lshr_b32 s30, s26, 3
    s_add_u32 s28, s28, s30
    v_lshrrev_b32 v1, 6, v0
    s_nop 0
    v_readfirstlane_b32 s29, v1
    v_and_b32 v1, 63, v0
    s_lshl_b32 s32, s28, 7
    s_mov_b32 s40, 0x%x
    s_mov_b32 s41, 0x%x
    s_cmp_lt_u32 s29, 4
    s_cbranch_scc1 L_%s_mm
    """ % (f2u(1.0 / 512), f2u(1e-5), name))
    sc = {"r512": 40, "eps": 41}

    def stats_ops(src, acc, t):
        ops = []
        for r in range(4):
            ops.append("v_lshlrev_b32 v%d, 16, v%d" % (t, src + r))
            ops.append("v_and_b32 v%d, 0xffff0000, v%d" % (t + 1, src + r))
            ops.append("v_add_f32 v%d, v%d, v%d" % (acc, acc, t))
            ops.append("v_add_f32 v%d, v%d, v%d" % (acc + 1, acc + 1, t + 1))
            ops.append("v_fma_f32 v%d, v%d, v%d, v%d" % (acc + 2, t, t, acc + 2))
            ops.append("v_fma_f32 v%d, v%d, v%d, v%d" % (acc + 3, t + 1, t + 1, acc + 3))
        return ops

    def stats_fin(acc, vrow):
        a("v_add_f32 v%d, v%d, v%d" % (acc, acc, acc + 1))
        a("v_add_f32 v%d, v%d, v%d" % (acc + 2, acc + 2, acc + 3))
        for m in ("quad_perm:[1,0,3,2]", "quad_perm:[2,3,0,1]", "row_half_mirror"):
            a("s_nop 1")
            a("v_add_f32_dpp v%d, v%d, v%d %s row_mask:0xf bank_mask:0xf" % (acc, acc, acc, m))
            a("v_add_f32_dpp v%d, v%d, v%d %s row_mask:0xf bank_mask:0xf" % (acc + 2, acc + 2, acc + 2, m))
        ln_finalize(a, acc, acc + 2, acc + 1, acc + 3, 36, sc)
        a("v_lshlrev_b32 v%d, 2, v%d" % (vrow, vrow))
        a("ds_write_b32 v%d, v%d offset:%d" % (vrow, acc + 1, K1_MISC))
        a("ds_write_b32 v%d, v%d offset:%d" % (vrow, acc + 3, K1_MISC + 512))

    a("s_sub_u32 s29, s29, 4")
    a("v_and_b32 v0, 255, v0")
    a("""
    s_lshl_b32 s30, s27, 6
    s_sub_u32 s30, s30, 16
    s_mul_i32 s31, s29, 24
    v_lshrrev_b32 v10, 3, v1
    v_add_u32 v10, s31, v10
    v_and_b32 v11, 7, v1
    """)
    for i in range(3):
        a("v_add_u32 v12, %d, v10" % (8 * i))
        a("v_bfe_u32 v13, v12, 1, 3")
        a("v_xor_b32 v13, v13, v11")
        a("v_add_u32 v14, s30, v12")
        a("v_lshlrev_b32 v14, 10, v14")
        a("v_lshl_add_u32 v%d, v13, 4, v14" % (2 + i))
        a("v_cmp_gt_u32 vcc, 80, v12")
        a("v_mov_b32 v13, 0x7ff00000")
        a("s_nop 0")
        a("v_cndmask_b32 v%d, v13, v%d, vcc" % (2 + i, 2 + i))
    a("""
    v_lshrrev_b32 v10, 3, v1
    v_mul_u32_u24 v12, 3072, v10
    v_bfe_u32 v13, v10, 1, 1
    v_lshlrev_b32 v13, 1, v13
    v_xor_b32 v13, v13, v11
    v_lshl_add_u32 v5, v13, 4, v12
    v_xor_b32 v13, 4, v13
    v_lshl_add_u32 v6, v13, 4, v12
    """)
    a("s_mul_i32 s31, s29, 6")
    for i in range(6):
        a("s_add_u32 s34, s31, %d" % i)
        a("s_and_b32 s35, s34, 7")
        a("s_mul_i32 s35, s35, 24576")
        a("s_lshr_b32 s34, s34, 3")
        a("s_lshl_b32 s34, s34, 10")
        a("s_add_u32 s35, s35, s34")
        a("s_add_u32 s%d, s35, s32" % (46 + i))
    a("s_mul_i32 s52, s29, 3072")
    a("s_add_u32 s52, s52, %d" % K1_S0)
    a("s_mul_i32 s53, s29, 6144")
    a("s_add_u32 s53, s53, %d" % (K1_S0 + K1_AW))
    a("""
    v_lshrrev_b32 v10, 3, v0
    v_and_b32 v11, 7, v0
    v_lshlrev_b32 v11, 4, v11
    v_add_u32 v44, 32, v10
    v_lshl_add_u32 v28, v44, 7, v11
    v_add_u32 v28, %d, v28
    v_add_u32 v45, 64, v10
    v_min_u32 v45, 79, v45
    v_lshl_add_u32 v48, v45, 7, v11
    v_add_u32 v48, %d, v48
    """ % (K1_S0, K1_S0))
    for sl in range(1, 4):
        a("v_add_u32 v%d, %d, v28" % (28 + sl, sl * K1_SLOT))
        a("v_add_u32 v%d, %d, v48" % (48 + sl, sl * K1_SLOT))
    for r in list(range(32, 36)) + list(range(52, 56)):
        a("v_mov_b32 v%d, 0" % r)
    a("s_waitcnt lgkmcnt(0)")
    if layer == 0:
        srd(a, 4, 20, 21, 0, 2 * MB)
    else:
        srd(a, 4, 24, 25, X2_OFF, 2 * MB)
    srd(a, 8, 22, 23, 0, 512 * 3072)
    srd(a, 16, 24, 25, ST_OFF[layer], 32768)

    def issue(c):
        sl = (c & 3) * K1_SLOT
        a("s_mov_b32 s34, %d" % (128 * c))
        for i in range(3):
            a("s_add_u32 m0, s52, %d" % (sl + 1024 * i))
            a("s_nop 0")
            a("buffer_load_dwordx4 v%d, s[4:7], s34 offen lds" % (2 + i))
        for i in range(6):
            a("s_add_u32 s34, s%d, %d" % (46 + i, c * 64 * 3072))
            a("s_add_u32 m0, s53, %d" % (sl + 1024 * i))
            a("s_nop 0")
            a("buffer_load_dwordx4 v%d, s[8:11], s34 offen lds" % (5 + (i & 1)))

    a("""
    v_lshlrev_b32 v10, 4, v0
    s_lshl_b32 s34, s2, 7
    v_add_u32 v10, s34, v10
    v_cmp_gt_u32 vcc, 8, v0
    v_mov_b32 v11, 0x7ffffff0
    s_nop 0
    v_cndmask_b32 v10, v11, v10, vcc
    buffer_store_dwordx4 v[32:35], v10, s[16:19], 0 offen
    """)
    for c in range(3):
        issue(c)
    for c in range(8):
        issued_hi = min(c + 2, 7)
        need = min(c + 1, 7)
        a("s_waitcnt vmcnt(%d)" % (9 * (issued_hi - need)))
        a("s_barrier")
        if c + 3 < 8:
            issue(c + 3)
        a("ds_read_b128 v[40:43], v%d" % (28 + (c & 3)))
        a("ds_read_b128 v[56:59], v%d" % (48 + (c & 3)))
        a("s_waitcnt lgkmcnt(0)")
        for op in stats_ops(40, 32, 36) + stats_ops(56, 52, 36):
            a(op)
    stats_fin(32, 44)
    stats_fin(52, 45)
    a("""
    s_waitcnt lgkmcnt(0)
    s_barrier
    s_endpgm
    """)
    a.label("L_%s_mm" % name)
    a("""
    v_and_b32 v10, 15, v1
    v_lshrrev_b32 v11, 4, v1
    v_bfe_u32 v12, v10, 1, 3
    v_xor_b32 v12, v12, v11
    v_lshlrev_b32 v12, 4, v12
    v_lshl_add_u32 v16, v10, 7, v12
    v_add_u32 v16, %d, v16
    v_xor_b32 v20, 64, v16
    """ % K1_S0)
    a("""
    v_bfe_u32 v10, v1, 2, 2
    v_lshl_add_u32 v12, v11, 3, v10
    v_lshlrev_b32 v12, 7, v12
    v_lshrrev_b32 v13, 1, v10
    v_and_b32 v14, 1, v11
    v_lshl_or_b32 v13, v14, 1, v13
    v_xor_b32 v13, s29, v13
    v_lshl_add_u32 v12, v13, 5, v12
    v_and_b32 v13, 3, v1
    v_lshl_add_u32 v24, v13, 3, v12
    v_add_u32 v24, %d, v24
    """ % (K1_S0 + K1_AW))
    a("""
    v_lshrrev_b32 v172, 3, v0
    v_and_b32 v11, 7, v0
    v_lshlrev_b32 v11, 4, v11
    v_lshl_add_u32 v28, v172, 7, v11
    v_add_u32 v28, %d, v28
    """ % K1_S0)
    for sl in range(1, 4):
        for b in (16, 20, 24, 28):
            a("v_add_u32 v%d, %d, v%d" % (b + sl, sl * K1_SLOT, b))
    for r in range(32, 36):
        a("v_mov_b32 v%d, 0" % r)
    for r in range(36, 40):
        a("v_mov_b32 v%d, 0x%x" % (r, ONES_BF))
    a("s_waitcnt lgkmcnt(0)")
    srd(a, 12, 24, 25, O_OFF, 2 * MB)
    AF = [40, 60]
    BF = [80, 92]
    ACC = 104
    QA, KA, VA, CS = ACC, ACC + 16, ACC + 36, ACC + 56

    def reads(c, sp):
        sl = c & 3
        st = sp
        o = []
        for seg in range(3):
            off = seg * 8192 + sp * 4096
            o.append("ds_read_b64_tr_b16 %s, v%d offset:%d" % (vr(BF[st] + 4 * seg, 2), 24 + sl, off))
            o.append("ds_read_b64_tr_b16 %s, v%d offset:%d" % (vr(BF[st] + 4 * seg + 2, 2), 24 + sl, off + 512))
        for t in (1, 2, 3, 4, 0):
            o.append("ds_read_b128 %s, v%d offset:%d" % (vr(AF[st] + 4 * t, 4), (16 if sp == 0 else 20) + sl, t * 2048))
        return o

    def mfmas(first, st, fill=()):
        A, B = AF[st], BF[st]
        mf = []
        for t in range(4):
            mf.append((QA + 4 * t, vr(B, 4), vr(A + 4 * (t + 1), 4)))
        for t in range(5):
            mf.append((KA + 4 * t, vr(B + 4, 4), vr(A + 4 * t, 4)))
        for t in range(5):
            mf.append((VA + 4 * t, vr(A + 4 * t, 4), vr(B + 8, 4)))
        mf.append((CS, vr(B, 4), "v[36:39]"))
        mf.append((CS + 4, vr(B + 4, 4), "v[36:39]"))
        mf.append((CS + 8, "v[36:39]", vr(B + 8, 4)))
        fi = 0
        for (acc, x, y) in mf:
            a("v_mfma_f32_16x16x32_bf16 %s, %s, %s, %s" % (vr(acc, 4), x, y, "0" if first else vr(acc, 4)))
            n = 0
            while fi < len(fill) and n < 2:
                n += 2 if fill[fi].startswith("ds_") else 1
                a(fill[fi]); fi += 1
        while fi < len(fill):
            a(fill[fi]); fi += 1

    for c in range(8):
        a("s_barrier")
        if c == 0:
            for x in reads(0, 0):
                a(x)
        a("s_waitcnt lgkmcnt(0)")
        mfmas(c == 0, 0, reads(c, 1) + ["ds_read_b128 v[176:179], v%d" % (28 + (c & 3))])
        a("s_waitcnt lgkmcnt(0)")
        mfmas(False, 1, (reads(c + 1, 0) if c < 7 else []) + stats_ops(176, 32, 180))
    stats_fin(32, 172)
    a("s_waitcnt lgkmcnt(0)")
    a("s_barrier")
    a("""
    v_and_b32 v10, 15, v1
    v_lshlrev_b32 v10, 2, v10
    v_lshrrev_b32 v11, 4, v1
    v_lshlrev_b32 v11, 4, v11
    """)
    for t in range(5):
        a("ds_read_b32 v%d, v10 offset:%d" % (40 + t, K1_MISC + 64 * t))
        a("ds_read_b32 v%d, v10 offset:%d" % (45 + t, K1_MISC + 512 + 64 * t))
    for t in range(5):
        a("ds_read_b128 %s, v11 offset:%d" % (vr(52 + 8 * t, 4), K1_MISC + 64 * t))
        a("ds_read_b128 %s, v11 offset:%d" % (vr(56 + 8 * t, 4), K1_MISC + 512 + 64 * t))
    a("""
    v_and_b32 v188, 15, v1
    v_lshrrev_b32 v189, 4, v1
    v_and_b32 v190, 1, v1
    v_lshl_add_u32 v189, v189, 2, v190
    v_cmp_eq_u32 s[44:45], 1, v190
    v_cmp_le_u32 s[46:47], v189, v188
    v_add_u32 v189, 2, v189
    v_cmp_le_u32 s[48:49], v189, v188
    v_lshlrev_b32 v190, 4, v190
    s_cmp_eq_u32 s27, 0
    s_cselect_b32 s35, 0x%x, 0
    v_mov_b32 v191, s35
    v_mov_b32 v193, 0
    v_cndmask_b32 v192, v191, v193, s[46:47]
    v_cndmask_b32 v191, v191, v193, s[48:49]
    s_mov_b32 s42, 0x%x
    """ % (f2u(-1e30), f2u(0.25 * LOG2E)))
    a("s_waitcnt lgkmcnt(0)")
    QF, KF, VF = 196, 204, 214

    def norm(acc, cs_regs, m_regs, i_regs, dst):
        for r in range(4):
            a("v_fma_f32 v%d, -v%d, v%d, v%d" % (acc + r, m_regs[r], cs_regs[r], acc + r))
        for r in range(4):
            a("v_mul_f32 v%d, v%d, v%d" % (acc + r, i_regs[r], acc + r))
        a("v_cvt_pk_bf16_f32 v%d, v%d, v%d" % (dst, acc, acc + 1))
        a("v_cvt_pk_bf16_f32 v%d, v%d, v%d" % (dst + 1, acc + 2, acc + 3))

    for t in range(4):
        norm(QA + 4 * t, [CS + r for r in range(4)], [41 + t] * 4, [46 + t] * 4, QF + 2 * t)
    for t in range(5):
        norm(KA + 4 * t, [CS + 4 + r for r in range(4)], [40 + t] * 4, [45 + t] * 4, KF + 2 * t)
    for t in range(5):
        norm(VA + 4 * t, [CS + 8] * 4, [52 + 8 * t + r for r in range(4)], [56 + 8 * t + r for r in range(4)], VF + 2 * t)
    a("s_nop 1")
    SS = 104
    for t in range(4):
        q = vr(QF + 2 * t, 2)
        a("v_mfma_f32_16x16x16_bf16 %s, %s, %s, 0" % (vr(SS + 8 * t, 4), vr(KF + 2 * t, 2), q))
        a("v_mfma_f32_16x16x16_bf16 %s, %s, %s, 0" % (vr(SS + 8 * t + 4, 4), vr(KF + 2 * t + 2, 2), q))
    a("s_nop 7")
    E = 140
    for u in range(4):
        Sp, Sc = SS + 8 * u, SS + 8 * u + 4
        a("v_cndmask_b32 v194, v%d, v%d, s[44:45]" % (Sc, Sc + 1))
        a("v_cndmask_b32 v195, v%d, v%d, s[44:45]" % (Sp, Sp + 1))
        a("v_cndmask_b32 v%d, v195, v194, s[46:47]" % (E + 2 * u))
        a("v_cndmask_b32 v194, v%d, v%d, s[44:45]" % (Sc + 2, Sc + 3))
        a("v_cndmask_b32 v195, v%d, v%d, s[44:45]" % (Sp + 2, Sp + 3))
        a("v_cndmask_b32 v%d, v195, v194, s[48:49]" % (E + 1 + 2 * u))
    for u in range(4):
        a("v_cvt_pk_bf16_f32 v194, v%d, v%d" % (E + 2 * u, E + 1 + 2 * u))
        a("v_lshlrev_b32 v%d, 16, v194" % (E + 2 * u))
        a("v_and_b32 v%d, 0xffff0000, v194" % (E + 1 + 2 * u))
        b0, b1 = (192, 191) if u == 0 else (193, 193)
        a("v_fma_f32 v%d, v%d, s42, v%d" % (E + 2 * u, E + 2 * u, b0))
        a("v_fma_f32 v%d, v%d, s42, v%d" % (E + 1 + 2 * u, E + 1 + 2 * u, b1))
        a("v_max_f32 v%d, v%d, v%d" % (148 + u, E + 2 * u, E + 1 + 2 * u))
    bfly(a, "v_max_f32", [148, 149, 150, 151], [152, 153, 154, 155])
    for u in range(4):
        a("v_sub_f32 v%d, v%d, v%d" % (E + 2 * u, E + 2 * u, 148 + u))
        a("v_sub_f32 v%d, v%d, v%d" % (E + 1 + 2 * u, E + 1 + 2 * u, 148 + u))
        a("v_exp_f32 v%d, v%d" % (E + 2 * u, E + 2 * u))
        a("v_exp_f32 v%d, v%d" % (E + 1 + 2 * u, E + 1 + 2 * u))
    a("s_nop 0")
    for u in range(4):
        a("v_add_f32 v%d, v%d, v%d" % (148 + u, E + 2 * u, E + 1 + 2 * u))
    bfly(a, "v_add_f32", [148, 149, 150, 151], [152, 153, 154, 155])
    for u in range(4):
        a("v_rcp_f32 v%d, v%d" % (148 + u, 148 + u))
    a("s_nop 0")
    for u in range(4):
        a("v_mul_f32 v%d, v%d, v%d" % (E + 2 * u, E + 2 * u, 148 + u))
        a("v_mul_f32 v%d, v%d, v%d" % (E + 1 + 2 * u, E + 1 + 2 * u, 148 + u))
        a("v_cvt_pk_bf16_f32 v194, v%d, v%d" % (E + 2 * u, E + 1 + 2 * u))
        a("v_and_b32 v195, 0xffff, v194")
        a("v_lshlrev_b32 v195, v190, v195")
        a("v_lshrrev_b32 v194, 16, v194")
        a("v_lshlrev_b32 v194, v190, v194")
        P = 156 + 4 * u
        a("v_cndmask_b32 v%d, v195, v193, s[46:47]" % (P + 0))
        a("v_cndmask_b32 v%d, v194, v193, s[48:49]" % (P + 1))
        a("v_cndmask_b32 v%d, v193, v195, s[46:47]" % (P + 2))
        a("v_cndmask_b32 v%d, v193, v194, s[48:49]" % (P + 3))
    a("s_nop 1")
    for u in range(4):
        a("v_mfma_f32_16x16x32_bf16 %s, %s, %s, 0" % (vr(172 + 4 * u, 4), vr(VF + 2 * u, 4), vr(156 + 4 * u, 4)))
    a("""
    v_and_b32 v10, 15, v1
    v_lshlrev_b32 v10, 10, v10
    v_lshrrev_b32 v11, 4, v1
    v_lshl_add_u32 v10, v11, 3, v10
    s_lshl_b32 s34, s27, 16
    s_lshl_b32 s35, s29, 5
    s_add_u32 s34, s34, s35
    s_add_u32 s34, s34, s32
    v_add_u32 v10, s34, v10
    s_nop 2
    """)
    for u in range(4):
        a("v_cvt_pk_bf16_f32 v%d, v%d, v%d" % (40 + 2 * u, 172 + 4 * u, 173 + 4 * u))
        a("v_cvt_pk_bf16_f32 v%d, v%d, v%d" % (41 + 2 * u, 174 + 4 * u, 175 + 4 * u))
        a("s_mov_b32 s34, %d" % (16384 * u))
        a("buffer_store_dwordx2 %s, v10, s[12:15], s34 offen" % vr(40 + 2 * u, 2))
    a.label("L_%s_end" % name)
    a("s_endpgm")
    return name, a.text() + kdesc(name, 224, 0)


K2_CH = 16384
K2_LDS2 = 8 * K2_CH


def gen_k2(layer):
    a = Asm()
    name = "k2l%d_kernel" % layer
    khead(a, name)
    a("s_cmp_ge_u32 s2, 256")
    a("s_cbranch_scc1 L_%s_end" % name)
    a("s_load_dwordx2 s[20:21], s[0:1], 0")
    a("s_load_dwordx2 s[22:23], s[0:1], 16")
    a("s_load_dwordx2 s[24:25], s[0:1], 80")
    a("s_load_dwordx2 s[36:37], s[0:1], 32")
    a("""
    s_and_b32 s3, s2, 7
    s_lshr_b32 s26, s2, 3
    s_and_b32 s27, s3, 3
    s_lshl_b32 s27, s27, 3
    s_and_b32 s30, s26, 7
    s_add_u32 s27, s27, s30
    s_lshr_b32 s28, s3, 2
    s_lshl_b32 s28, s28, 2
    s_lshr_b32 s30, s26, 3
    s_add_u32 s28, s28, s30
    v_lshrrev_b32 v1, 6, v0
    s_nop 0
    v_readfirstlane_b32 s29, v1
    v_and_b32 v1, 63, v0
    s_cmp_lt_u32 s29, 4
    s_cbranch_scc1 L_%s_mm
    """ % name)
    a("s_sub_u32 s29, s29, 4")
    a("""
    v_lshrrev_b32 v10, 3, v1
    v_and_b32 v11, 7, v1
    s_lshl_b32 s30, s27, 6
    s_lshl_b32 s31, s29, 4
    s_add_u32 s30, s30, s31
    v_add_u32 v12, s30, v10
    v_lshlrev_b32 v12, 10, v12
    v_lshrrev_b32 v13, 1, v10
    v_xor_b32 v13, v13, v11
    v_lshl_add_u32 v2, v13, 4, v12
    v_xor_b32 v13, 4, v13
    v_add_u32 v12, 8192, v12
    v_lshl_add_u32 v3, v13, 4, v12
    v_add_u32 v12, s31, v10
    v_lshlrev_b32 v12, 10, v12
    s_lshl_b32 s32, s28, 7
    v_add_u32 v12, s32, v12
    v_bfe_u32 v13, v10, 1, 1
    v_lshlrev_b32 v13, 1, v13
    v_xor_b32 v13, v13, v11
    v_lshl_add_u32 v4, v13, 4, v12
    v_xor_b32 v13, 4, v13
    v_add_u32 v12, 8192, v12
    v_lshl_add_u32 v5, v13, 4, v12
    s_lshl_b32 s52, s29, 11
    """)
    a("s_waitcnt lgkmcnt(0)")
    srd(a, 4, 24, 25, O_OFF, 2 * MB)
    srd(a, 8, 22, 23, 0, 512 * 1024)
    for c in range(8):
        a("s_mov_b32 s34, %d" % (128 * c))
        a("s_mov_b32 s35, %d" % (65536 * c))
        for i in range(2):
            a("s_add_u32 m0, s52, %d" % (c * K2_CH + 1024 * i))
            a("s_nop 0")
            a("buffer_load_dwordx4 v%d, s[4:7], s34 offen lds" % (2 + i))
        for i in range(2):
            a("s_add_u32 m0, s52, %d" % (c * K2_CH + 8192 + 1024 * i))
            a("s_nop 0")
            a("buffer_load_dwordx4 v%d, s[8:11], s35 offen lds" % (4 + i))
    for j in range(4):
        a("s_waitcnt vmcnt(%d)" % (8 * (3 - j)))
        a("s_barrier")
    a("s_endpgm")
    a.label("L_%s_mm" % name)
    a("""
    s_lshr_b32 s30, s29, 1
    s_and_b32 s31, s29, 1
    v_and_b32 v10, 15, v1
    v_lshrrev_b32 v11, 4, v1
    v_bfe_u32 v12, v10, 1, 3
    v_xor_b32 v12, v12, v11
    v_lshlrev_b32 v12, 4, v12
    v_lshl_add_u32 v16, v10, 7, v12
    s_lshl_b32 s34, s30, 12
    v_add_u32 v16, s34, v16
    v_xor_b32 v17, 64, v16
    v_add_u32 v18, 65536, v16
    v_add_u32 v19, 65536, v17
    v_bfe_u32 v10, v1, 2, 2
    v_lshl_add_u32 v12, v11, 3, v10
    v_lshlrev_b32 v12, 7, v12
    v_lshrrev_b32 v13, 1, v10
    v_and_b32 v14, 1, v11
    v_lshl_or_b32 v13, v14, 1, v13
    s_lshl_b32 s34, s31, 1
    v_xor_b32 v13, s34, v13
    v_and_b32 v14, 3, v1
    v_lshl_add_u32 v12, v14, 3, v12
    v_add_u32 v12, 8192, v12
    v_lshl_add_u32 v20, v13, 5, v12
    v_xor_b32 v13, 1, v13
    v_lshl_add_u32 v21, v13, 5, v12
    v_add_u32 v22, 65536, v20
    v_add_u32 v23, 65536, v21
    """)
    a("""
    s_lshl_b32 s34, s27, 6
    s_lshl_b32 s35, s30, 5
    s_add_u32 s34, s34, s35
    v_and_b32 v2, 15, v1
    v_add_u32 v2, s34, v2
    v_lshlrev_b32 v2, 10, v2
    v_lshrrev_b32 v10, 4, v1
    v_lshlrev_b32 v10, 3, v10
    s_lshl_b32 s35, s28, 7
    s_lshl_b32 s38, s31, 6
    s_add_u32 s35, s35, s38
    v_add_u32 v13, s35, v10
    v_add_u32 v9, v2, v13
    v_add_u32 v12, 0x4000, v9
    """)
    a("s_waitcnt lgkmcnt(0)")
    if layer == 0:
        srd(a, 12, 20, 21, 0, 2 * MB)
    else:
        srd(a, 12, 24, 25, X2_OFF, 2 * MB)
    srd(a, 16, 24, 25, X1_OFF, 2 * MB)
    srd(a, 40, 24, 25, ST_OFF[layer], 32768)
    srd(a, 44, 36, 37, 0, 1024)
    for ti, vo in enumerate((9, 12)):
        for ct in range(2):
            a("buffer_load_dwordx2 %s, v%d, s[12:15], 0 offen offset:%d" % (vr(48 + 4 * ti + 2 * ct, 2), vo, 32 * ct))
    for ct in range(2):
        a("buffer_load_dwordx2 %s, v13, s[44:47], 0 offen offset:%d" % (vr(56 + 2 * ct, 2), 32 * ct))
    FR = [96, 112]

    def reads(s):
        c, sp = s >> 1, s & 1
        hi = 2 if c >= 4 else 0
        co = (c & 3) * K2_CH
        F = FR[s & 1]
        o = []
        for ct in range(2):
            o.append("ds_read_b64_tr_b16 %s, v%d offset:%d" % (vr(F + 8 + 4 * ct, 2), 20 + ct + hi, co + sp * 4096))
            o.append("ds_read_b64_tr_b16 %s, v%d offset:%d" % (vr(F + 10 + 4 * ct, 2), 20 + ct + hi, co + sp * 4096 + 512))
        for t in range(2):
            o.append("ds_read_b128 %s, v%d offset:%d" % (vr(F + 4 * t, 4), 16 + sp + hi, co + t * 2048))
        return o

    for s in range(16):
        if (s & 3) == 0:
            a("s_barrier")
            for x in reads(s):
                a(x)
        a("s_waitcnt lgkmcnt(0)")
        fill = reads(s + 1) if (s & 3) != 3 else []
        F = FR[s & 1]
        fi = 0
        for ti in range(2):
            for ct in range(2):
                acc = 32 + 4 * (2 * ti + ct)
                a("v_mfma_f32_16x16x32_bf16 %s, %s, %s, %s" % (vr(acc, 4), vr(F + 8 + 4 * ct, 4), vr(F + 4 * ti, 4), "0" if s == 0 else vr(acc, 4)))
                for _ in range(2):
                    if fi < len(fill):
                        a(fill[fi]); fi += 1
    a("s_waitcnt vmcnt(0)")
    a("s_nop 7")
    for ct in range(2):
        for j in range(2):
            a("v_lshlrev_b32 v%d, 16, v%d" % (64 + 4 * ct + 2 * j, 56 + 2 * ct + j))
            a("v_and_b32 v%d, 0xffff0000, v%d" % (65 + 4 * ct + 2 * j, 56 + 2 * ct + j))
    for ti in range(2):
        S, Q, D = 80 + 4 * ti, 81 + 4 * ti, 82 + 4 * ti
        for ct in range(2):
            acc = 32 + 4 * (2 * ti + ct)
            xr = 48 + 4 * ti + 2 * ct
            for j in range(2):
                a("v_cvt_pk_bf16_f32 v72, v%d, v%d" % (acc + 2 * j, acc + 2 * j + 1))
                a("v_lshlrev_b32 v73, 16, v72")
                a("v_and_b32 v74, 0xffff0000, v72")
                a("v_lshlrev_b32 v75, 16, v%d" % (xr + j))
                a("v_and_b32 v76, 0xffff0000, v%d" % (xr + j))
                a("v_add_f32 v73, v73, v75")
                a("v_add_f32 v74, v74, v76")
                a("v_cvt_pk_bf16_f32 v%d, v73, v74" % (xr + j))
                a("v_lshlrev_b32 v73, 16, v%d" % (xr + j))
                a("v_and_b32 v74, 0xffff0000, v%d" % (xr + j))
                w0, w1 = 64 + 4 * ct + 2 * j, 65 + 4 * ct + 2 * j
                if ct == 0 and j == 0:
                    a("v_add_f32 v%d, v73, v74" % S)
                    a("v_mul_f32 v%d, v73, v73" % Q)
                    a("v_mul_f32 v%d, v73, v%d" % (D, w0))
                else:
                    a("v_add_f32 v%d, v%d, v73" % (S, S))
                    a("v_add_f32 v%d, v%d, v74" % (S, S))
                    a("v_fma_f32 v%d, v73, v73, v%d" % (Q, Q))
                    a("v_fma_f32 v%d, v73, v%d, v%d" % (D, w0, D))
                a("v_fma_f32 v%d, v74, v74, v%d" % (Q, Q))
                a("v_fma_f32 v%d, v74, v%d, v%d" % (D, w1, D))
            a("buffer_store_dwordx2 %s, v%d, s[16:19], 0 offen offset:%d" % (vr(xr, 2), (9, 12)[ti], 32 * ct))
    bfly(a, "v_add_f32", [80, 81, 82, 84, 85, 86], [88, 89, 90, 91, 92, 93])
    a("""
    v_lshrrev_b32 v88, 4, v1
    v_cmp_eq_u32 s[48:49], 1, v88
    v_cmp_eq_u32 s[50:51], 2, v88
    v_cmp_eq_u32 s[52:53], 3, v88
    v_lshrrev_b32 v89, 6, v2
    v_lshl_add_u32 v89, v88, 2, v89
    v_add_u32 v90, 256, v89
    """)
    for ti in range(2):
        S = 80 + 4 * ti
        a("v_cndmask_b32 v%d, v%d, v%d, s[48:49]" % (S, S, S + 1))
        a("v_cndmask_b32 v%d, v%d, v%d, s[50:51]" % (S, S, S + 2))
    a("s_andn2_b64 exec, exec, s[52:53]")
    for ti in range(2):
        S = 80 + 4 * ti
        a("buffer_atomic_add_f32 v%d, v%d, s[40:43], 0 offen" % (S, 89 + ti))
    a.label("L_%s_end" % name)
    a("s_endpgm")
    return name, a.text() + kdesc(name, 128, 0)


SLAB_OFF = [8 * MB, 8 * MB + 524288]
K3_G = 0
K3_U = 65536
K3_MS2 = 131072
K3_XS2 = K3_MS2 + 16384
K3_H = K3_XS2 + 8 * 1040 + 64
K3_HP = 144
K3_CAND2 = K3_H + 16 * K3_HP
K3_SEL2 = K3_CAND2 + 128
K3_LDS2 = K3_SEL2 + 128
K3_WDP = 1056


def norm_pair(a, src, vm, vinv, mode, T=50):
    a("v_lshlrev_b32 v%d, 16, v%d" % (T, src))
    a("v_and_b32 v%d, 0xffff0000, v%d" % (T + 1, src))
    a("v_sub_f32 v%d, v%d, v%d" % (T + 2, T, vm))
    a("v_sub_f32 v%d, v%d, v%d" % (T + 3, T + 1, vm))
    a("v_cvt_pk_bf16_f32 v%d, v%d, v%d" % (T + 4, T + 2, T + 3))
    a("v_lshlrev_b32 v%d, 16, v%d" % (T + 2, T + 4))
    a("v_and_b32 v%d, 0xffff0000, v%d" % (T + 3, T + 4))
    a("v_mul_f32 v%d, v%d, v%d" % (T + 2, T + 2, vinv))
    a("v_mul_f32 v%d, v%d, v%d" % (T + 3, T + 3, vinv))
    if mode == "xn":
        a("v_cvt_pk_bf16_f32 v%d, v%d, v%d" % (src, T + 2, T + 3))
    else:
        a("v_cvt_pk_bf16_f32 v%d, v%d, v%d" % (T + 4, T + 2, T + 3))
        a("v_lshlrev_b32 v%d, 16, v%d" % (T + 2, T + 4))
        a("v_and_b32 v%d, 0xffff0000, v%d" % (T + 3, T + 4))
        a("v_add_f32 v%d, v%d, v%d" % (T + 2, T + 2, T))
        a("v_add_f32 v%d, v%d, v%d" % (T + 3, T + 3, T + 1))
        a("v_cvt_pk_bf16_f32 v%d, v%d, v%d" % (src, T + 2, T + 3))


def gen_k3(layer):
    a = Asm()
    name = "k3l%d_kernel" % layer
    khead(a, name)
    a("s_cmp_ge_u32 s2, 256")
    a("s_cbranch_scc1 L_%s_end" % name)
    a("s_load_dwordx4 s[20:23], s[0:1], 32")
    a("s_load_dwordx4 s[28:31], s[0:1], 48")
    a("s_load_dwordx2 s[24:25], s[0:1], 80")
    a("s_load_dwordx2 s[26:27], s[0:1], 64")
    a("""
    v_lshrrev_b32 v1, 6, v0
    s_nop 0
    v_readfirstlane_b32 s33, v1
    v_and_b32 v1, 63, v0
    s_lshl_b32 s32, s2, 7
    s_mov_b32 s56, 0x%x
    s_mov_b32 s57, 0x%x
    s_mov_b32 s58, 0x%x
    s_cmp_lt_u32 s33, 4
    s_cbranch_scc1 L_%s_mm
    """ % (f2u(1.0 / 512), f2u(1e-5), ONES_BF, name))
    sc = {"r512": 56, "eps": 57}
    a("s_sub_u32 s33, s33, 4")
    a("v_and_b32 v0, 255, v0")
    a("s_waitcnt lgkmcnt(0)")
    srd(a, 4, 24, 25, ST_OFF[layer], 32768)
    srd(a, 8, 24, 25, X1_OFF, 2 * MB)
    if layer == 0:
        srd(a, 12, 24, 25, X2_OFF, 2 * MB)
    else:
        srd(a, 12, 26, 27, 0, 2 * MB)
    a("""
    s_lshl_b32 s34, s2, 13
    v_lshlrev_b32 v4, 4, v0
    v_add_u32 v4, s34, v4
    v_add_u32 v5, 4096, v4
    s_lshl_b32 s34, s2, 3
    s_add_u32 s34, s34, s33
    s_lshl_b32 s34, s34, 4
    v_mov_b32 v6, s34
    buffer_load_dwordx4 v[8:11], v6, s[4:7], 0 offen
    buffer_load_dwordx4 v[12:15], v6, s[4:7], 0 offen offset:64
    buffer_load_dwordx4 v[100:103], v4, s[8:11], 0 offen
    buffer_load_dwordx4 v[104:107], v5, s[8:11], 0 offen
    """)
    a("s_cmp_ge_u32 s2, 28")
    a("s_cbranch_scc1 L_%s_x2only" % name)
    srd(a, 36, 22, 23, 0, 512 * 3584)
    srd(a, 40, 28, 29, 0, 512 * 3584)
    srd(a, 44, 30, 31, 0, 1792 * 1024)
    a("""
    v_lshrrev_b32 v20, 3, v1
    v_and_b32 v21, 7, v1
    s_lshl_b32 s35, s33, 7
    v_add_u32 v22, s35, v20
    v_mul_u32_u24 v22, 3584, v22
    v_add_u32 v22, s32, v22
    v_bfe_u32 v23, v20, 1, 1
    v_lshlrev_b32 v23, 1, v23
    v_xor_b32 v23, v23, v21
    v_lshl_add_u32 v2, v23, 4, v22
    v_xor_b32 v23, 4, v23
    v_lshl_add_u32 v3, v23, 4, v22
    s_lshl_b32 s52, s33, 14
    """)
    for i in range(16):
        a("s_mov_b32 s34, %d" % (8 * i * 3584))
        a("s_add_u32 m0, s52, %d" % (K3_G + 1024 * i))
        a("s_nop 0")
        a("buffer_load_dwordx4 v%d, s[36:39], s34 offen lds" % (2 + (i & 1)))
        a("s_add_u32 m0, s52, %d" % (K3_U + 1024 * i))
        a("s_nop 0")
        a("buffer_load_dwordx4 v%d, s[40:43], s34 offen lds" % (2 + (i & 1)))
    a("""
    s_lshl_b32 s34, s2, 16
    s_lshl_b32 s35, s33, 14
    s_add_u32 s34, s34, s35
    v_lshlrev_b32 v7, 4, v1
    v_add_u32 v7, s34, v7
    """)
    for i in range(16):
        a("s_mov_b32 s34, %d" % (1024 * i))
        a("buffer_load_dwordx4 %s, v7, s[44:47], s34 offen" % vr(112 + 4 * i, 4))
    a("s_waitcnt vmcnt(48)")
    a("s_branch L_%s_x2" % name)
    a.label("L_%s_x2only" % name)
    a("s_waitcnt vmcnt(0)")
    a.label("L_%s_x2" % name)
    ln_finalize(a, 8, 9, 40, 41, 42, sc)
    ln_finalize(a, 12, 13, 43, 44, 45, sc)
    for r in range(4):
        norm_pair(a, 100 + r, 40, 41, "x2")
    a("buffer_store_dwordx4 v[100:103], v4, s[12:15], 0 offen")
    for r in range(4):
        norm_pair(a, 104 + r, 43, 44, "x2")
    a("buffer_store_dwordx4 v[104:107], v5, s[12:15], 0 offen")
    a("s_cmp_ge_u32 s2, 28")
    a("s_cbranch_scc1 L_%s_end" % name)
    a("s_barrier")
    a("s_waitcnt vmcnt(18)")
    a("s_barrier")
    a("""
    s_mul_i32 s34, s33, %d
    v_lshlrev_b32 v7, 4, v1
    v_add_u32 v7, s34, v7
    """ % (16 * K3_WDP))
    a("s_waitcnt vmcnt(2)")
    a("s_barrier")
    for i in range(16):
        pos = (i & 3) | ((i & 4) << 1) | ((i & 8) >> 1)
        a("ds_write_b128 v7, %s offset:%d" % (vr(112 + 4 * i, 4), K3_G + pos * K3_WDP))
    a("s_waitcnt lgkmcnt(0)")
    a("s_barrier")
    a("s_endpgm")
    a.label("L_%s_mm" % name)
    a("s_cmp_ge_u32 s2, 28")
    a("s_cbranch_scc1 L_%s_end" % name)
    a("s_waitcnt lgkmcnt(0)")
    srd(a, 4, 24, 25, ST_OFF[layer], 32768)
    srd(a, 8, 24, 25, X1_OFF, 2 * MB)
    srd(a, 16, 20, 21, 0, 1024)
    srd(a, 44, 24, 25, SEL_OFF[layer], 64)
    srd(a, 48, 24, 25, XS_OFF[layer], 8192)
    srd(a, 52, 24, 25, SLAB_OFF[layer], 28 * 16384)
    a("v_lshlrev_b32 v2, 7, v0")
    for i in range(8):
        a("buffer_load_dwordx4 %s, v2, s[4:7], 0 offen offset:%d" % (vr(64 + 4 * i, 4), 16 * i))
    a("v_lshlrev_b32 v3, 4, v1")
    a("buffer_load_dwordx4 v[96:99], v3, s[16:19], 0 offen")
    a("s_waitcnt vmcnt(0)")
    a("v_mov_b32 v8, 0")
    for r in range(4):
        a("v_dot2_f32_bf16 v8, v%d, s58, v8" % (96 + r))
    a("s_nop 2")
    for sh in (1, 2, 4, 8):
        a("v_add_f32_dpp v8, v8, v8 row_ror:%d row_mask:0xf bank_mask:0xf" % sh)
        a("s_nop 1")
    bfly(a, "v_add_f32", [8], [9])
    a("v_lshlrev_b32 v10, 6, v0")
    a("v_lshlrev_b32 v11, 3, v0")
    a("v_sub_u32 v11, 2047, v11")
    a("v_add_u32 v10, %d, v10" % K3_MS2)
    for i in range(8):
        b = 64 + 4 * i
        ln_finalize(a, b, b + 1, 12, 13, 14, sc)
        a("v_fma_f32 v15, -v12, v8, v%d" % (b + 2))
        a("v_mul_f32 v15, v15, v13")
        a("v_cvt_pk_bf16_f32 v15, v15, v15")
        a("v_lshlrev_b32 v15, 16, v15")
        a("v_ashrrev_i32 v16, 31, v15")
        a("v_or_b32 v16, 0x80000000, v16")
        a("v_xor_b32 v15, v15, v16")
        a("v_and_b32 v15, 0xffff0000, v15")
        a("v_subrev_u32 v16, %d, v11" % i)
        a("v_or_b32 v%d, v15, v16" % (20 + i))
        a("v_mov_b32 v%d, v12" % (b))
        a("v_mov_b32 v%d, v13" % (b + 1))
        a("ds_write_b64 v10, %s offset:%d" % (vr(b, 2), 8 * i))
    net = [(0, 1), (2, 3), (4, 5), (6, 7), (0, 2), (1, 3), (4, 6), (5, 7), (1, 2), (5, 6),
           (0, 4), (1, 5), (2, 6), (3, 7), (2, 4), (3, 5), (1, 2), (3, 4), (5, 6)]
    for (i, j) in net:
        a("v_max_u32 v12, v%d, v%d" % (20 + i, 20 + j))
        a("v_min_u32 v%d, v%d, v%d" % (20 + j, 20 + i, 20 + j))
        a("v_mov_b32 v%d, v12" % (20 + i))
    a("v_mov_b32 v30, 0")
    a("v_mov_b32 v31, 0")
    for rd in range(8):
        a("v_mov_b32 v12, v20")
        a("s_nop 1")
        for sh in (1, 2, 4, 8):
            a("v_max_u32_dpp v12, v12, v12 row_ror:%d row_mask:0xf bank_mask:0xf" % sh)
            a("s_nop 1")
        bfly(a, "v_max_u32", [12], [13])
        a("v_cmp_eq_u32 vcc, v12, v20")
        a("v_cmp_eq_u32 s[60:61], %d, v1" % rd)
        a("s_nop 0")
        for i in range(7):
            a("v_cndmask_b32 v%d, v%d, v%d, vcc" % (20 + i, 20 + i, 21 + i))
        a("v_cndmask_b32 v27, v27, v31, vcc")
        a("v_cndmask_b32 v30, v30, v12, s[60:61]")
    a("""
    s_lshl_b32 s34, s33, 5
    v_lshlrev_b32 v12, 2, v1
    v_add_u32 v12, s34, v12
    v_add_u32 v12, %d, v12
    v_cmp_gt_u32 vcc, 8, v1
    s_and_saveexec_b64 s[62:63], vcc
    ds_write_b32 v12, v30
    s_mov_b64 exec, s[62:63]
    s_waitcnt lgkmcnt(0)
    s_barrier
    """ % K3_CAND2)
    a("v_and_b32 v12, 31, v1")
    a("v_lshlrev_b32 v12, 2, v12")
    a("v_add_u32 v12, %d, v12" % K3_CAND2)
    a("ds_read_b32 v30, v12")
    a("v_mov_b32 v13, %d" % K3_CAND2)
    for i in range(8):
        a("ds_read_b128 %s, v13 offset:%d" % (vr(32 + 4 * i, 4), 16 * i))
    a("v_mov_b32 v14, 0")
    a("s_waitcnt lgkmcnt(0)")
    for i in range(32):
        a("v_cmp_gt_u32 vcc, v%d, v30" % (32 + i))
        a("v_addc_co_u32 v14, vcc, 0, v14, vcc")
    a("""
    v_cmp_gt_u32 vcc, 8, v14
    v_cmp_gt_u32 s[60:61], 32, v1
    s_and_b64 vcc, vcc, s[60:61]
    v_lshlrev_b32 v14, 2, v14
    v_add_u32 v14, %d, v14
    s_and_saveexec_b64 s[62:63], vcc
    ds_write_b32 v14, v30
    s_mov_b64 exec, s[62:63]
    s_waitcnt lgkmcnt(0)
    v_lshrrev_b32 v12, 5, v0
    v_lshlrev_b32 v12, 2, v12
    v_add_u32 v12, %d, v12
    ds_read_b32 v31, v12
    s_waitcnt lgkmcnt(0)
    v_and_b32 v13, 0xffff, v31
    v_sub_u32 v13, 2047, v13
    v_lshlrev_b32 v14, 10, v13
    v_and_b32 v15, 31, v0
    v_lshl_add_u32 v14, v15, 5, v14
    buffer_load_dwordx4 v[32:35], v14, s[8:11], 0 offen
    buffer_load_dwordx4 v[36:39], v14, s[8:11], 0 offen offset:16
    v_lshlrev_b32 v16, 3, v13
    v_add_u32 v16, %d, v16
    ds_read_b64 v[40:41], v16
    """ % (K3_SEL2, K3_SEL2, K3_MS2))
    a("""
    v_lshrrev_b32 v12, 5, v0
    v_mul_u32_u24 v12, 1040, v12
    v_lshl_add_u32 v12, v15, 5, v12
    v_add_u32 v12, %d, v12
    v_lshrrev_b32 v11, 4, v1
    v_bfe_u32 v10, v1, 2, 2
    v_lshl_add_u32 v17, v11, 3, v10
    v_lshlrev_b32 v17, 7, v17
    v_lshrrev_b32 v18, 1, v10
    v_and_b32 v19, 1, v11
    v_lshl_or_b32 v18, v19, 1, v18
    v_xor_b32 v18, s33, v18
    v_lshl_add_u32 v17, v18, 5, v17
    v_and_b32 v18, 3, v1
    v_lshl_add_u32 v8, v18, 3, v17
    v_add_u32 v9, %d, v8
    v_and_b32 v17, 7, v1
    v_mul_u32_u24 v17, 1040, v17
    v_lshl_add_u32 v17, v11, 4, v17
    v_add_u32 v17, %d, v17
    """ % (K3_XS2, K3_U, K3_XS2))
    a("s_waitcnt vmcnt(0) lgkmcnt(0)")
    for r in range(8):
        norm_pair(a, 32 + r, 40, 41, "xn")
    a("ds_write_b128 v12, v[32:35]")
    a("ds_write_b128 v12, v[36:39] offset:16")
    a("s_cmp_lg_u32 s2, 0")
    a("s_cbranch_scc1 L_%s_nopub" % name)
    a("""
    v_lshlrev_b32 v12, 5, v0
    buffer_store_dwordx4 v[32:35], v12, s[48:51], 0 offen
    buffer_store_dwordx4 v[36:39], v12, s[48:51], 0 offen offset:16
    v_and_b32 v51, 0xffff0000, v31
    v_ashrrev_i32 v50, 31, v51
    v_not_b32 v50, v50
    v_or_b32 v50, 0x80000000, v50
    v_xor_b32 v51, v51, v50
    v_and_b32 v51, 0xffff0000, v51
    v_mul_f32 v52, 0x%x, v51
    v_exp_f32 v52, v52
    s_nop 0
    v_add_f32 v52, 1.0, v52
    v_rcp_f32 v52, v52
    s_nop 0
    v_cvt_pk_bf16_f32 v52, v52, v52
    v_lshlrev_b32 v52, 16, v52
    v_lshrrev_b32 v12, 5, v0
    v_lshlrev_b32 v12, 2, v12
    v_and_b32 v15, 31, v0
    v_cmp_eq_u32 vcc, 0, v15
    v_mov_b32 v53, 0x7ffffff0
    s_nop 0
    v_cndmask_b32 v12, v53, v12, vcc
    buffer_store_dword v13, v12, s[44:47], 0 offen
    buffer_store_dword v52, v12, s[44:47], 0 offen offset:32
    """ % f2u(-LOG2E))
    a.label("L_%s_nopub" % name)
    a("s_waitcnt lgkmcnt(0)")
    a("s_barrier")
    FR = [64, 76]

    def rd(s):
        F = FR[s & 1]
        return ["ds_read_b64_tr_b16 %s, v8 offset:%d" % (vr(F, 2), 4096 * s),
                "ds_read_b64_tr_b16 %s, v8 offset:%d" % (vr(F + 2, 2), 4096 * s + 512),
                "ds_read_b64_tr_b16 %s, v9 offset:%d" % (vr(F + 4, 2), 4096 * s),
                "ds_read_b64_tr_b16 %s, v9 offset:%d" % (vr(F + 6, 2), 4096 * s + 512),
                "ds_read_b128 %s, v17 offset:%d" % (vr(F + 8, 4), 64 * s)]
    for x in rd(0):
        a(x)
    for s in range(16):
        if s < 15:
            for x in rd(s + 1):
                a(x)
            a("s_waitcnt lgkmcnt(5)")
        else:
            a("s_waitcnt lgkmcnt(0)")
        F = FR[s & 1]
        a("v_mfma_f32_16x16x32_bf16 v[96:99], %s, %s, %s" % (vr(F, 4), vr(F + 8, 4), "0" if s == 0 else "v[96:99]"))
        a("v_mfma_f32_16x16x32_bf16 v[100:103], %s, %s, %s" % (vr(F + 4, 4), vr(F + 8, 4), "0" if s == 0 else "v[100:103]"))
    a("s_mov_b32 s34, 0x%x" % f2u(-LOG2E))
    a("""
    v_and_b32 v10, 15, v1
    v_mul_u32_u24 v10, %d, v10
    v_lshrrev_b32 v11, 4, v1
    v_lshl_add_u32 v12, v11, 3, v10
    s_lshl_b32 s35, s33, 5
    v_add_u32 v12, s35, v12
    v_add_u32 v12, %d, v12
    v_lshl_add_u32 v13, v11, 4, v10
    v_add_u32 v13, %d, v13
    """ % (K3_HP, K3_H, K3_H))
    for r in range(4):
        rbf(a, 96 + r)
        rbf(a, 100 + r)
    for r in range(4):
        a("v_mul_f32 v%d, s34, v%d" % (104 + r, 96 + r))
        a("v_exp_f32 v%d, v%d" % (104 + r, 104 + r))
    a("s_nop 0")
    for r in range(4):
        a("v_add_f32 v%d, 1.0, v%d" % (104 + r, 104 + r))
        a("v_rcp_f32 v%d, v%d" % (104 + r, 104 + r))
    a("s_nop 0")
    for r in range(4):
        a("v_mul_f32 v%d, v%d, v%d" % (96 + r, 96 + r, 104 + r))
        rbf(a, 96 + r)
        a("v_mul_f32 v%d, v%d, v%d" % (96 + r, 96 + r, 100 + r))
    a("v_cvt_pk_bf16_f32 v96, v96, v97")
    a("v_cvt_pk_bf16_f32 v97, v98, v99")
    a("ds_write_b64 v12, v[96:97]")
    a("s_waitcnt lgkmcnt(0)")
    a("s_barrier")
    a("ds_read_b128 v[64:67], v13")
    a("ds_read_b128 v[68:71], v13 offset:64")
    a("""
    v_lshrrev_b32 v10, 5, v1
    v_lshlrev_b32 v8, 4, v10
    v_bfe_u32 v10, v1, 4, 1
    v_lshl_add_u32 v8, v10, 2, v8
    v_bfe_u32 v10, v1, 2, 2
    v_add_u32 v8, v8, v10
    v_mul_u32_u24 v8, %d, v8
    v_and_b32 v10, 3, v1
    v_lshl_add_u32 v8, v10, 3, v8
    s_lshl_b32 s35, s33, 8
    v_add_u32 v8, s35, v8
    v_and_b32 v10, 15, v1
    v_lshlrev_b32 v14, 11, v10
    v_lshrrev_b32 v11, 4, v1
    v_lshl_add_u32 v14, v11, 4, v14
    s_lshl_b32 s35, s33, 9
    s_lshl_b32 s36, s2, 14
    s_add_u32 s35, s35, s36
    v_add_u32 v14, s35, v14
    v_cmp_gt_u32 vcc, 8, v10
    v_mov_b32 v15, 0x7ffffff0
    s_nop 0
    v_cndmask_b32 v14, v15, v14, vcc
    """ % K3_WDP)
    a("s_barrier")
    for ct in range(8):
        for s in range(2):
            b = 128 + 8 * ct + 4 * s
            a("ds_read_b64_tr_b16 %s, v8 offset:%d" % (vr(b, 2), K3_G + 32 * s * K3_WDP + 32 * ct))
            a("ds_read_b64_tr_b16 %s, v8 offset:%d" % (vr(b + 2, 2), K3_G + (32 * s + 8) * K3_WDP + 32 * ct))
    a("s_waitcnt lgkmcnt(0)")
    for ct in range(8):
        b = 128 + 8 * ct
        a("v_mfma_f32_16x16x32_bf16 %s, %s, v[64:67], 0" % (vr(72 + 4 * ct, 4), vr(b, 4)))
        a("v_mfma_f32_16x16x32_bf16 %s, %s, v[68:71], %s" % (vr(72 + 4 * ct, 4), vr(b + 4, 4), vr(72 + 4 * ct, 4)))
    a("s_nop 7")
    for ct in range(8):
        a("buffer_store_dwordx4 %s, v14, s[52:55], 0 offen offset:%d" % (vr(72 + 4 * ct, 4), 64 * ct))
    a.label("L_%s_end" % name)
    a("s_endpgm")
    return name, a.text() + kdesc(name, 192, 0)


def gen_k4(layer):
    a = Asm()
    name = "k4l%d_kernel" % layer
    khead(a, name)
    a("s_cmp_ge_u32 s2, 8")
    a("s_cbranch_scc1 L_%s_end" % name)
    a("s_load_dwordx2 s[24:25], s[0:1], 80")
    a("s_load_dwordx2 s[26:27], s[0:1], 64")
    a("s_waitcnt lgkmcnt(0)")
    srd(a, 4, 24, 25, SLAB_OFF[layer], 28 * 16384)
    srd(a, 8, 24, 25, X1_OFF, 2 * MB)
    if layer == 0:
        srd(a, 12, 24, 25, X2_OFF, 2 * MB)
    else:
        srd(a, 12, 26, 27, 0, 2 * MB)
    srd(a, 16, 24, 25, SEL_OFF[layer], 64)
    srd(a, 20, 24, 25, XS_OFF[layer], 8192)
    a("""
    s_lshl_b32 s3, s2, 2
    v_mov_b32 v2, s3
    buffer_load_dword v3, v2, s[16:19], 0 offen
    buffer_load_dword v4, v2, s[16:19], 0 offen offset:32
    s_lshl_b32 s3, s2, 10
    v_lshlrev_b32 v5, 2, v0
    v_add_u32 v6, s3, v5
    buffer_load_dword v7, v6, s[20:23], 0 offen
    s_lshl_b32 s3, s2, 11
    v_lshlrev_b32 v8, 3, v0
    v_add_u32 v8, s3, v8
    """)
    for p in range(28):
        a("s_mov_b32 s3, %d" % (16384 * p))
        a("buffer_load_dwordx2 %s, v8, s[4:7], s3 offen" % vr(16 + 2 * p, 2))
    a("s_waitcnt vmcnt(30)")
    a("v_lshl_add_u32 v9, v3, 10, v5")
    a("buffer_load_dword v10, v9, s[8:11], 0 offen")
    a("s_waitcnt vmcnt(1)")
    for p in range(1, 28):
        a("v_add_f32 v16, v16, v%d" % (16 + 2 * p))
        a("v_add_f32 v17, v17, v%d" % (17 + 2 * p))
    a("""
    v_cvt_pk_bf16_f32 v40, v16, v17
    v_lshlrev_b32 v41, 16, v40
    v_and_b32 v42, 0xffff0000, v40
    v_mul_f32 v41, v41, v4
    v_mul_f32 v42, v42, v4
    v_cvt_pk_bf16_f32 v40, v41, v42
    v_lshlrev_b32 v41, 16, v40
    v_and_b32 v42, 0xffff0000, v40
    v_lshlrev_b32 v43, 16, v7
    v_and_b32 v44, 0xffff0000, v7
    v_add_f32 v41, v41, v43
    v_add_f32 v42, v42, v44
    v_cvt_pk_bf16_f32 v40, v41, v42
    v_lshlrev_b32 v41, 16, v40
    v_and_b32 v42, 0xffff0000, v40
    s_waitcnt vmcnt(0)
    v_lshlrev_b32 v43, 16, v10
    v_and_b32 v44, 0xffff0000, v10
    v_add_f32 v41, v41, v43
    v_add_f32 v42, v42, v44
    v_cvt_pk_bf16_f32 v40, v41, v42
    buffer_store_dword v40, v9, s[12:15], 0 offen
    """)
    a.label("L_%s_end" % name)
    a("s_endpgm")
    return name, a.text() + kdesc(name, 80, 0)


def build_parts():
    parts = []
    launches = []
    for layer in range(2):
        for g, grid, blk, lds in ((gen_k1, 256, 512, K1_LDS2), (gen_k2, 256, 512, K2_LDS2), (gen_k3, 256, 512, K3_LDS2), (gen_k4, 8, 256, 0)):
            n, t = g(layer)
            parts.append(t)
            launches.append("; @launch kernel=%s grid=(%d,1,1) block=(%d,1,1) lds=%d" % (n, grid, blk, lds))
    return parts, launches


def main(out):
    parts, launches = build_parts()
    txt = HEADER + "\n".join(launches) + "\n" + '.amdgcn_target "amdgcn-amd-amdhsa--gfx950"\n' + "\n".join(parts)
    open(out, "w").write(txt)


if __name__ == "__main__":
    main(sys.argv[1] if len(sys.argv) > 1 else "interleave_layers__sliding_local_dilated__moe_arch_mod__prompt.s")
```

```python
from gen import *
import gen

K1_MISC = 0
K1_S0 = 1024
K1_SLOT = 36864
K1_AW = 12288
K1_LDS2 = K1_S0 + 4 * K1_SLOT


def gen_k1(layer):
    a = Asm()
    name = "k1l%d_kernel" % layer
    khead(a, name)
    a("s_cmp_ge_u32 s2, 256")
    a("s_cbranch_scc1 L_%s_end" % name)
    a("s_load_dwordx4 s[20:23], s[0:1], 0")
    a("s_load_dwordx2 s[24:25], s[0:1], 80")
    a("""
    s_and_b32 s3, s2, 7
    s_lshr_b32 s26, s2, 3
    s_and_b32 s27, s3, 3
    s_lshl_b32 s27, s27, 3
    s_and_b32 s30, s26, 7
    s_add_u32 s27, s27, s30
    s_lshr_b32 s28, s3, 2
    s_lshl_b32 s28, s28, 2
    s_lshr_b32 s30, s26, 3
    s_add_u32 s28, s28, s30
    v_lshrrev_b32 v1, 6, v0
    s_nop 0
    v_readfirstlane_b32 s29, v1
    v_and_b32 v1, 63, v0
    s_lshl_b32 s32, s28, 7
    s_mov_b32 s40, 0x%x
    s_mov_b32 s41, 0x%x
    s_cmp_lt_u32 s29, 4
    s_cbranch_scc1 L_%s_mm
    """ % (f2u(1.0 / 512), f2u(1e-5), name))
    sc = {"r512": 40, "eps": 41}

    def stats_ops(src, acc, t):
        ops = []
        for r in range(4):
            ops.append("v_lshlrev_b32 v%d, 16, v%d" % (t, src + r))
            ops.append("v_and_b32 v%d, 0xffff0000, v%d" % (t + 1, src + r))
            ops.append("v_add_f32 v%d, v%d, v%d" % (acc, acc, t))
            ops.append("v_add_f32 v%d, v%d, v%d" % (acc + 1, acc + 1, t + 1))
            ops.append("v_fma_f32 v%d, v%d, v%d, v%d" % (acc + 2, t, t, acc + 2))
            ops.append("v_fma_f32 v%d, v%d, v%d, v%d" % (acc + 3, t + 1, t + 1, acc + 3))
        return ops

    def stats_fin(acc, vrow):
        a("v_add_f32 v%d, v%d, v%d" % (acc, acc, acc + 1))
        a("v_add_f32 v%d, v%d, v%d" % (acc + 2, acc + 2, acc + 3))
        for m in ("quad_perm:[1,0,3,2]", "quad_perm:[2,3,0,1]", "row_half_mirror"):
            a("s_nop 1")
            a("v_add_f32_dpp v%d, v%d, v%d %s row_mask:0xf bank_mask:0xf" % (acc, acc, acc, m))
            a("v_add_f32_dpp v%d, v%d, v%d %s row_mask:0xf bank_mask:0xf" % (acc + 2, acc + 2, acc + 2, m))
        ln_finalize(a, acc, acc + 2, acc + 1, acc + 3, 36, sc)
        a("v_lshlrev_b32 v%d, 2, v%d" % (vrow, vrow))
        a("ds_write_b32 v%d, v%d offset:%d" % (vrow, acc + 1, K1_MISC))
        a("ds_write_b32 v%d, v%d offset:%d" % (vrow, acc + 3, K1_MISC + 512))

    a("s_sub_u32 s29, s29, 4")
    a("v_and_b32 v0, 255, v0")
    a("""
    s_lshl_b32 s30, s27, 6
    s_sub_u32 s30, s30, 16
    s_mul_i32 s31, s29, 24
    v_lshrrev_b32 v10, 3, v1
    v_add_u32 v10, s31, v10
    v_and_b32 v11, 7, v1
    """)
    for i in range(3):
        a("v_add_u32 v12, %d, v10" % (8 * i))
        a("v_bfe_u32 v13, v12, 1, 3")
        a("v_xor_b32 v13, v13, v11")
        a("v_add_u32 v14, s30, v12")
        a("v_lshlrev_b32 v14, 10, v14")
        a("v_lshl_add_u32 v%d, v13, 4, v14" % (2 + i))
        a("v_cmp_gt_u32 vcc, 80, v12")
        a("v_mov_b32 v13, 0x7ff00000")
        a("s_nop 0")
        a("v_cndmask_b32 v%d, v13, v%d, vcc" % (2 + i, 2 + i))
    a("""
    v_lshrrev_b32 v10, 3, v1
    v_mul_u32_u24 v12, 3072, v10
    v_bfe_u32 v13, v10, 1, 1
    v_lshlrev_b32 v13, 1, v13
    v_xor_b32 v13, v13, v11
    v_lshl_add_u32 v5, v13, 4, v12
    v_xor_b32 v13, 4, v13
    v_lshl_add_u32 v6, v13, 4, v12
    """)
    a("s_mul_i32 s31, s29, 6")
    for i in range(6):
        a("s_add_u32 s34, s31, %d" % i)
        a("s_and_b32 s35, s34, 7")
        a("s_mul_i32 s35, s35, 24576")
        a("s_lshr_b32 s34, s34, 3")
        a("s_lshl_b32 s34, s34, 10")
        a("s_add_u32 s35, s35, s34")
        a("s_add_u32 s%d, s35, s32" % (46 + i))
    a("s_mul_i32 s52, s29, 3072")
    a("s_add_u32 s52, s52, %d" % K1_S0)
    a("s_mul_i32 s53, s29, 6144")
    a("s_add_u32 s53, s53, %d" % (K1_S0 + K1_AW))
    a("""
    v_lshrrev_b32 v10, 3, v0
    v_and_b32 v11, 7, v0
    v_lshlrev_b32 v11, 4, v11
    v_add_u32 v44, 32, v10
    v_lshl_add_u32 v28, v44, 7, v11
    v_add_u32 v28, %d, v28
    v_add_u32 v45, 64, v10
    v_min_u32 v45, 79, v45
    v_lshl_add_u32 v48, v45, 7, v11
    v_add_u32 v48, %d, v48
    """ % (K1_S0, K1_S0))
    for sl in range(1, 4):
        a("v_add_u32 v%d, %d, v28" % (28 + sl, sl * K1_SLOT))
        a("v_add_u32 v%d, %d, v48" % (48 + sl, sl * K1_SLOT))
    for r in list(range(32, 36)) + list(range(52, 56)):
        a("v_mov_b32 v%d, 0" % r)
    a("s_waitcnt lgkmcnt(0)")
    if layer == 0:
        srd(a, 4, 20, 21, 0, 2 * MB)
    else:
        srd(a, 4, 24, 25, X2_OFF, 2 * MB)
    srd(a, 8, 22, 23, 0, 512 * 3072)
    srd(a, 16, 24, 25, ST_OFF[layer], 49152)

    def issue(c):
        sl = (c & 3) * K1_SLOT
        a("s_mov_b32 s34, %d" % (128 * c))
        for i in range(3):
            a("s_add_u32 m0, s52, %d" % (sl + 1024 * i))
            a("s_nop 0")
            a("buffer_load_dwordx4 v%d, s[4:7], s34 offen lds" % (2 + i))
        for i in range(6):
            a("s_add_u32 s34, s%d, %d" % (46 + i, c * 64 * 3072))
            a("s_add_u32 m0, s53, %d" % (sl + 1024 * i))
            a("s_nop 0")
            a("buffer_load_dwordx4 v%d, s[8:11], s34 offen lds" % (5 + (i & 1)))

    a("""
    v_lshlrev_b32 v10, 4, v0
    s_lshl_b32 s34, s2, 6
    s_add_u32 s34, s34, 32640
    v_add_u32 v12, s34, v10
    s_lshl_b32 s34, s2, 7
    v_add_u32 v10, s34, v10
    v_cmp_gt_u32 vcc, 12, v0
    v_mov_b32 v11, 0x7ffffff0
    s_nop 0
    v_cndmask_b32 v12, v11, v12, vcc
    v_cmp_gt_u32 vcc, 8, v0
    s_nop 1
    v_cndmask_b32 v10, v12, v10, vcc
    buffer_store_dwordx4 v[32:35], v10, s[16:19], 0 offen
    """)
    for c in range(3):
        issue(c)
    for c in range(8):
        issued_hi = min(c + 2, 7)
        need = min(c + 1, 7)
        a("s_waitcnt vmcnt(%d)" % (9 * (issued_hi - need)))
        a("s_barrier")
        if c + 3 < 8:
            issue(c + 3)
        a("ds_read_b128 v[40:43], v%d" % (28 + (c & 3)))
        a("ds_read_b128 v[56:59], v%d" % (48 + (c & 3)))
        a("s_waitcnt lgkmcnt(0)")
        for op in stats_ops(40, 32, 36) + stats_ops(56, 52, 36):
            a(op)
    stats_fin(32, 44)
    stats_fin(52, 45)
    a("""
    s_waitcnt lgkmcnt(0)
    s_barrier
    s_endpgm
    """)
    a.label("L_%s_mm" % name)
    a("""
    v_and_b32 v10, 15, v1
    v_lshrrev_b32 v11, 4, v1
    v_bfe_u32 v12, v10, 1, 3
    v_xor_b32 v12, v12, v11
    v_lshlrev_b32 v12, 4, v12
    v_lshl_add_u32 v16, v10, 7, v12
    v_add_u32 v16, %d, v16
    v_xor_b32 v20, 64, v16
    """ % K1_S0)
    a("""
    v_bfe_u32 v10, v1, 2, 2
    v_lshl_add_u32 v12, v11, 3, v10
    v_lshlrev_b32 v12, 7, v12
    v_lshrrev_b32 v13, 1, v10
    v_and_b32 v14, 1, v11
    v_lshl_or_b32 v13, v14, 1, v13
    v_xor_b32 v13, s29, v13
    v_lshl_add_u32 v12, v13, 5, v12
    v_and_b32 v13, 3, v1
    v_lshl_add_u32 v24, v13, 3, v12
    v_add_u32 v24, %d, v24
    """ % (K1_S0 + K1_AW))
    a("""
    v_lshrrev_b32 v172, 3, v0
    v_and_b32 v11, 7, v0
    v_lshlrev_b32 v11, 4, v11
    v_lshl_add_u32 v28, v172, 7, v11
    v_add_u32 v28, %d, v28
    """ % K1_S0)
    for sl in range(1, 4):
        for b in (16, 20, 24, 28):
            a("v_add_u32 v%d, %d, v%d" % (b + sl, sl * K1_SLOT, b))
    for r in range(32, 36):
        a("v_mov_b32 v%d, 0" % r)
    for r in range(36, 40):
        a("v_mov_b32 v%d, 0x%x" % (r, ONES_BF))
    a("s_waitcnt lgkmcnt(0)")
    srd(a, 12, 24, 25, O_OFF, 2 * MB)
    AF = [40, 60]
    BF = [80, 92]
    ACC = 104
    QA, KA, VA, CS = ACC, ACC + 16, ACC + 36, ACC + 56

    def reads(c, sp):
        sl = c & 3
        st = sp
        o = []
        for seg in range(3):
            off = seg * 8192 + sp * 4096
            o.append("ds_read_b64_tr_b16 %s, v%d offset:%d" % (vr(BF[st] + 4 * seg, 2), 24 + sl, off))
            o.append("ds_read_b64_tr_b16 %s, v%d offset:%d" % (vr(BF[st] + 4 * seg + 2, 2), 24 + sl, off + 512))
        for t in (1, 2, 3, 4, 0):
            o.append("ds_read_b128 %s, v%d offset:%d" % (vr(AF[st] + 4 * t, 4), (16 if sp == 0 else 20) + sl, t * 2048))
        return o

    def mfmas(first, st, fill=()):
        A, B = AF[st], BF[st]
        mf = []
        for t in range(4):
            mf.append((QA + 4 * t, vr(B, 4), vr(A + 4 * (t + 1), 4)))
        for t in range(5):
            mf.append((KA + 4 * t, vr(B + 4, 4), vr(A + 4 * t, 4)))
        for t in range(5):
            mf.append((VA + 4 * t, vr(A + 4 * t, 4), vr(B + 8, 4)))
        mf.append((CS, vr(B, 4), "v[36:39]"))
        mf.append((CS + 4, vr(B + 4, 4), "v[36:39]"))
        mf.append((CS + 8, "v[36:39]", vr(B + 8, 4)))
        fi = 0
        for (acc, x, y) in mf:
            a("v_mfma_f32_16x16x32_bf16 %s, %s, %s, %s" % (vr(acc, 4), x, y, "0" if first else vr(acc, 4)))
            n = 0
            while fi < len(fill) and n < 2:
                n += 2 if fill[fi].startswith("ds_") else 1
                a(fill[fi]); fi += 1
        while fi < len(fill):
            a(fill[fi]); fi += 1

    for c in range(8):
        a("s_barrier")
        if c == 0:
            for x in reads(0, 0):
                a(x)
        a("s_waitcnt lgkmcnt(0)")
        mfmas(c == 0, 0, reads(c, 1) + ["ds_read_b128 v[176:179], v%d" % (28 + (c & 3))])
        a("s_waitcnt lgkmcnt(0)")
        mfmas(False, 1, (reads(c + 1, 0) if c < 7 else []) + stats_ops(176, 32, 180))
    stats_fin(32, 172)
    a("s_waitcnt lgkmcnt(0)")
    a("s_barrier")
    a("""
    v_and_b32 v10, 15, v1
    v_lshlrev_b32 v10, 2, v10
    v_lshrrev_b32 v11, 4, v1
    v_lshlrev_b32 v11, 4, v11
    """)
    for t in range(5):
        a("ds_read_b32 v%d, v10 offset:%d" % (40 + t, K1_MISC + 64 * t))
        a("ds_read_b32 v%d, v10 offset:%d" % (45 + t, K1_MISC + 512 + 64 * t))
    for t in range(5):
        a("ds_read_b128 %s, v11 offset:%d" % (vr(52 + 8 * t, 4), K1_MISC + 64 * t))
        a("ds_read_b128 %s, v11 offset:%d" % (vr(56 + 8 * t, 4), K1_MISC + 512 + 64 * t))
    a("""
    v_and_b32 v188, 15, v1
    v_lshrrev_b32 v189, 4, v1
    v_and_b32 v190, 1, v1
    v_lshl_add_u32 v189, v189, 2, v190
    v_cmp_eq_u32 s[44:45], 1, v190
    v_cmp_le_u32 s[46:47], v189, v188
    v_add_u32 v189, 2, v189
    v_cmp_le_u32 s[48:49], v189, v188
    v_lshlrev_b32 v190, 4, v190
    s_cmp_eq_u32 s27, 0
    s_cselect_b32 s35, 0x%x, 0
    v_mov_b32 v191, s35
    v_mov_b32 v193, 0
    v_cndmask_b32 v192, v191, v193, s[46:47]
    v_cndmask_b32 v191, v191, v193, s[48:49]
    s_mov_b32 s42, 0x%x
    """ % (f2u(-1e30), f2u(0.25 * LOG2E)))
    a("s_waitcnt lgkmcnt(0)")
    QF, KF, VF = 196, 204, 214

    def norm(acc, cs_regs, m_regs, i_regs, dst):
        for r in range(4):
            a("v_fma_f32 v%d, -v%d, v%d, v%d" % (acc + r, m_regs[r], cs_regs[r], acc + r))
        for r in range(4):
            a("v_mul_f32 v%d, v%d, v%d" % (acc + r, i_regs[r], acc + r))
        a("v_cvt_pk_bf16_f32 v%d, v%d, v%d" % (dst, acc, acc + 1))
        a("v_cvt_pk_bf16_f32 v%d, v%d, v%d" % (dst + 1, acc + 2, acc + 3))

    for t in range(4):
        norm(QA + 4 * t, [CS + r for r in range(4)], [41 + t] * 4, [46 + t] * 4, QF + 2 * t)
    for t in range(5):
        norm(KA + 4 * t, [CS + 4 + r for r in range(4)], [40 + t] * 4, [45 + t] * 4, KF + 2 * t)
    for t in range(5):
        norm(VA + 4 * t, [CS + 8] * 4, [52 + 8 * t + r for r in range(4)], [56 + 8 * t + r for r in range(4)], VF + 2 * t)
    a("s_nop 1")
    SS = 104
    for t in range(4):
        q = vr(QF + 2 * t, 2)
        a("v_mfma_f32_16x16x16_bf16 %s, %s, %s, 0" % (vr(SS + 8 * t, 4), vr(KF + 2 * t, 2), q))
        a("v_mfma_f32_16x16x16_bf16 %s, %s, %s, 0" % (vr(SS + 8 * t + 4, 4), vr(KF + 2 * t + 2, 2), q))
    a("s_nop 7")
    E = 140
    for u in range(4):
        Sp, Sc = SS + 8 * u, SS + 8 * u + 4
        a("v_cndmask_b32 v194, v%d, v%d, s[44:45]" % (Sc, Sc + 1))
        a("v_cndmask_b32 v195, v%d, v%d, s[44:45]" % (Sp, Sp + 1))
        a("v_cndmask_b32 v%d, v195, v194, s[46:47]" % (E + 2 * u))
        a("v_cndmask_b32 v194, v%d, v%d, s[44:45]" % (Sc + 2, Sc + 3))
        a("v_cndmask_b32 v195, v%d, v%d, s[44:45]" % (Sp + 2, Sp + 3))
        a("v_cndmask_b32 v%d, v195, v194, s[48:49]" % (E + 1 + 2 * u))
    for u in range(4):
        a("v_cvt_pk_bf16_f32 v194, v%d, v%d" % (E + 2 * u, E + 1 + 2 * u))
        a("v_lshlrev_b32 v%d, 16, v194" % (E + 2 * u))
        a("v_and_b32 v%d, 0xffff0000, v194" % (E + 1 + 2 * u))
        b0, b1 = (192, 191) if u == 0 else (193, 193)
        a("v_fma_f32 v%d, v%d, s42, v%d" % (E + 2 * u, E + 2 * u, b0))
        a("v_fma_f32 v%d, v%d, s42, v%d" % (E + 1 + 2 * u, E + 1 + 2 * u, b1))
        a("v_max_f32 v%d, v%d, v%d" % (148 + u, E + 2 * u, E + 1 + 2 * u))
    bfly(a, "v_max_f32", [148, 149, 150, 151], [152, 153, 154, 155])
    for u in range(4):
        a("v_sub_f32 v%d, v%d, v%d" % (E + 2 * u, E + 2 * u, 148 + u))
        a("v_sub_f32 v%d, v%d, v%d" % (E + 1 + 2 * u, E + 1 + 2 * u, 148 + u))
        a("v_exp_f32 v%d, v%d" % (E + 2 * u, E + 2 * u))
        a("v_exp_f32 v%d, v%d" % (E + 1 + 2 * u, E + 1 + 2 * u))
    a("s_nop 0")
    for u in range(4):
        a("v_add_f32 v%d, v%d, v%d" % (148 + u, E + 2 * u, E + 1 + 2 * u))
    bfly(a, "v_add_f32", [148, 149, 150, 151], [152, 153, 154, 155])
    for u in range(4):
        a("v_rcp_f32 v%d, v%d" % (148 + u, 148 + u))
    a("s_nop 0")
    for u in range(4):
        a("v_mul_f32 v%d, v%d, v%d" % (E + 2 * u, E + 2 * u, 148 + u))
        a("v_mul_f32 v%d, v%d, v%d" % (E + 1 + 2 * u, E + 1 + 2 * u, 148 + u))
        a("v_cvt_pk_bf16_f32 v194, v%d, v%d" % (E + 2 * u, E + 1 + 2 * u))
        a("v_and_b32 v195, 0xffff, v194")
        a("v_lshlrev_b32 v195, v190, v195")
        a("v_lshrrev_b32 v194, 16, v194")
        a("v_lshlrev_b32 v194, v190, v194")
        P = 156 + 4 * u
        a("v_cndmask_b32 v%d, v195, v193, s[46:47]" % (P + 0))
        a("v_cndmask_b32 v%d, v194, v193, s[48:49]" % (P + 1))
        a("v_cndmask_b32 v%d, v193, v195, s[46:47]" % (P + 2))
        a("v_cndmask_b32 v%d, v193, v194, s[48:49]" % (P + 3))
    a("s_nop 1")
    for u in range(4):
        a("v_mfma_f32_16x16x32_bf16 %s, %s, %s, 0" % (vr(172 + 4 * u, 4), vr(VF + 2 * u, 4), vr(156 + 4 * u, 4)))
    a("""
    v_and_b32 v10, 15, v1
    v_lshlrev_b32 v10, 10, v10
    v_lshrrev_b32 v11, 4, v1
    v_lshl_add_u32 v10, v11, 3, v10
    s_lshl_b32 s34, s27, 16
    s_lshl_b32 s35, s29, 5
    s_add_u32 s34, s34, s35
    s_add_u32 s34, s34, s32
    v_add_u32 v10, s34, v10
    s_nop 2
    """)
    for u in range(4):
        a("v_cvt_pk_bf16_f32 v%d, v%d, v%d" % (40 + 2 * u, 172 + 4 * u, 173 + 4 * u))
        a("v_cvt_pk_bf16_f32 v%d, v%d, v%d" % (41 + 2 * u, 174 + 4 * u, 175 + 4 * u))
        a("s_mov_b32 s34, %d" % (16384 * u))
        a("buffer_store_dwordx2 %s, v10, s[12:15], s34 offen" % vr(40 + 2 * u, 2))
    a.label("L_%s_end" % name)
    a("s_endpgm")
    return name, a.text() + kdesc(name, 224, 0)


K2_CH = 16384
PREFETCH = True
DRY = False
K2_LDS2 = 8 * K2_CH


def gen_k2(layer):
    a = Asm()
    name = "k2l%d_kernel" % layer
    khead(a, name)
    a("s_cmp_ge_u32 s2, 256")
    a("s_cbranch_scc1 L_%s_end" % name)
    a("s_load_dwordx2 s[20:21], s[0:1], 0")
    a("s_load_dwordx2 s[22:23], s[0:1], 16")
    a("s_load_dwordx2 s[24:25], s[0:1], 80")
    a("s_load_dwordx2 s[36:37], s[0:1], 32")
    a("""
    s_and_b32 s3, s2, 7
    s_lshr_b32 s26, s2, 3
    s_and_b32 s27, s3, 3
    s_lshl_b32 s27, s27, 3
    s_and_b32 s30, s26, 7
    s_add_u32 s27, s27, s30
    s_lshr_b32 s28, s3, 2
    s_lshl_b32 s28, s28, 2
    s_lshr_b32 s30, s26, 3
    s_add_u32 s28, s28, s30
    v_lshrrev_b32 v1, 6, v0
    s_nop 0
    v_readfirstlane_b32 s29, v1
    v_and_b32 v1, 63, v0
    s_cmp_lt_u32 s29, 4
    s_cbranch_scc1 L_%s_mm
    """ % name)
    a("s_sub_u32 s29, s29, 4")
    a("""
    v_lshrrev_b32 v10, 3, v1
    v_and_b32 v11, 7, v1
    s_lshl_b32 s30, s27, 6
    s_lshl_b32 s31, s29, 4
    s_add_u32 s30, s30, s31
    v_add_u32 v12, s30, v10
    v_lshlrev_b32 v12, 10, v12
    v_lshrrev_b32 v13, 1, v10
    v_xor_b32 v13, v13, v11
    v_lshl_add_u32 v2, v13, 4, v12
    v_xor_b32 v13, 4, v13
    v_add_u32 v12, 8192, v12
    v_lshl_add_u32 v3, v13, 4, v12
    v_add_u32 v12, s31, v10
    v_lshlrev_b32 v12, 10, v12
    s_lshl_b32 s32, s28, 7
    v_add_u32 v12, s32, v12
    v_bfe_u32 v13, v10, 1, 1
    v_lshlrev_b32 v13, 1, v13
    v_xor_b32 v13, v13, v11
    v_lshl_add_u32 v4, v13, 4, v12
    v_xor_b32 v13, 4, v13
    v_add_u32 v12, 8192, v12
    v_lshl_add_u32 v5, v13, 4, v12
    s_lshl_b32 s52, s29, 11
    """)
    a("s_waitcnt lgkmcnt(0)")
    srd(a, 4, 24, 25, O_OFF, 2 * MB)
    srd(a, 8, 22, 23, 0, 512 * 1024)
    for c in range(8):
        a("s_mov_b32 s34, %d" % (128 * c))
        a("s_mov_b32 s35, %d" % (65536 * c))
        for i in range(2):
            a("s_add_u32 m0, s52, %d" % (c * K2_CH + 1024 * i))
            a("s_nop 0")
            a("buffer_load_dwordx4 v%d, s[4:7], s34 offen lds" % (2 + i))
        for i in range(2):
            a("s_add_u32 m0, s52, %d" % (c * K2_CH + 8192 + 1024 * i))
            a("s_nop 0")
            a("buffer_load_dwordx4 v%d, s[8:11], s35 offen lds" % (4 + i))
    npf = 0
    if layer == 0 and PREFETCH:
        a("s_load_dwordx4 s[56:59], s[0:1], 40")
        a("s_load_dwordx2 s[60:61], s[0:1], 56")
        a("""
        s_lshr_b32 s34, s2, 3
        s_and_b32 s34, s34, 3
        s_lshl_b32 s34, s34, 3
        s_add_u32 s34, s34, s3
        s_lshr_b32 s35, s2, 5
        s_lshl_b32 s35, s35, 2
        s_add_u32 s35, s35, s29
        v_lshrrev_b32 v10, 3, v1
        s_lshl_b32 s38, s35, 4
        v_add_u32 v10, s38, v10
        v_mul_u32_u24 v10, 3584, v10
        v_and_b32 v11, 7, v1
        v_lshl_add_u32 v10, v11, 4, v10
        s_lshl_b32 s38, s34, 7
        v_add_u32 v10, s38, v10
        s_lshl_b32 s38, s34, 16
        s_lshl_b32 s39, s35, 11
        s_add_u32 s38, s38, s39
        v_lshlrev_b32 v11, 4, v1
        v_add_u32 v11, s38, v11
        s_waitcnt lgkmcnt(0)
        """)
        srd(a, 40, 56, 57, 0, 512 * 3584)
        srd(a, 44, 58, 59, 0, 512 * 3584)
        srd(a, 48, 60, 61, 0, 1792 * 1024)
        a("s_mov_b32 s38, %d" % (8 * 3584))
        a("buffer_load_dwordx4 v[12:15], v10, s[40:43], 0 offen")
        a("buffer_load_dwordx4 v[16:19], v10, s[40:43], s38 offen")
        a("buffer_load_dwordx4 v[20:23], v10, s[44:47], 0 offen")
        a("buffer_load_dwordx4 v[24:27], v10, s[44:47], s38 offen")
        a("buffer_load_dwordx4 v[28:31], v11, s[48:51], 0 offen")
        a("buffer_load_dwordx4 v[32:35], v11, s[48:51], 0 offen offset:1024")
        npf = 6
    for j in range(4):
        a("s_waitcnt vmcnt(%d)" % (8 * (3 - j) + npf))
        a("s_barrier")
    a("s_endpgm")
    a.label("L_%s_mm" % name)
    a("""
    s_lshr_b32 s30, s29, 1
    s_and_b32 s31, s29, 1
    v_and_b32 v10, 15, v1
    v_lshrrev_b32 v11, 4, v1
    v_bfe_u32 v12, v10, 1, 3
    v_xor_b32 v12, v12, v11
    v_lshlrev_b32 v12, 4, v12
    v_lshl_add_u32 v16, v10, 7, v12
    s_lshl_b32 s34, s30, 12
    v_add_u32 v16, s34, v16
    v_xor_b32 v17, 64, v16
    v_add_u32 v18, 65536, v16
    v_add_u32 v19, 65536, v17
    v_bfe_u32 v10, v1, 2, 2
    v_lshl_add_u32 v12, v11, 3, v10
    v_lshlrev_b32 v12, 7, v12
    v_lshrrev_b32 v13, 1, v10
    v_and_b32 v14, 1, v11
    v_lshl_or_b32 v13, v14, 1, v13
    s_lshl_b32 s34, s31, 1
    v_xor_b32 v13, s34, v13
    v_and_b32 v14, 3, v1
    v_lshl_add_u32 v12, v14, 3, v12
    v_add_u32 v12, 8192, v12
    v_lshl_add_u32 v20, v13, 5, v12
    v_xor_b32 v13, 1, v13
    v_lshl_add_u32 v21, v13, 5, v12
    v_add_u32 v22, 65536, v20
    v_add_u32 v23, 65536, v21
    """)
    a("""
    s_lshl_b32 s34, s27, 6
    s_lshl_b32 s35, s30, 5
    s_add_u32 s34, s34, s35
    v_and_b32 v2, 15, v1
    v_add_u32 v2, s34, v2
    v_lshlrev_b32 v2, 10, v2
    v_lshrrev_b32 v10, 4, v1
    v_lshlrev_b32 v10, 3, v10
    s_lshl_b32 s35, s28, 7
    s_lshl_b32 s38, s31, 6
    s_add_u32 s35, s35, s38
    v_add_u32 v13, s35, v10
    v_add_u32 v9, v2, v13
    v_add_u32 v12, 0x4000, v9
    """)
    a("s_waitcnt lgkmcnt(0)")
    if layer == 0:
        srd(a, 12, 20, 21, 0, 2 * MB)
    else:
        srd(a, 12, 24, 25, X2_OFF, 2 * MB)
    srd(a, 16, 24, 25, X1_OFF, 2 * MB)
    srd(a, 40, 24, 25, ST_OFF[layer], 32768)
    srd(a, 44, 36, 37, 0, 1024)
    for ti, vo in enumerate((9, 12)):
        for ct in range(2):
            a("buffer_load_dwordx2 %s, v%d, s[12:15], 0 offen offset:%d" % (vr(48 + 4 * ti + 2 * ct, 2), vo, 32 * ct))
    for ct in range(2):
        a("buffer_load_dwordx2 %s, v13, s[44:47], 0 offen offset:%d" % (vr(56 + 2 * ct, 2), 32 * ct))
    FR = [96, 112]

    def reads(s):
        c, sp = s >> 1, s & 1
        hi = 2 if c >= 4 else 0
        co = (c & 3) * K2_CH
        F = FR[s & 1]
        o = []
        for ct in range(2):
            o.append("ds_read_b64_tr_b16 %s, v%d offset:%d" % (vr(F + 8 + 4 * ct, 2), 20 + ct + hi, co + sp * 4096))
            o.append("ds_read_b64_tr_b16 %s, v%d offset:%d" % (vr(F + 10 + 4 * ct, 2), 20 + ct + hi, co + sp * 4096 + 512))
        for t in range(2):
            o.append("ds_read_b128 %s, v%d offset:%d" % (vr(F + 4 * t, 4), 16 + sp + hi, co + t * 2048))
        return o

    for s in range(16):
        if (s & 3) == 0:
            a("s_barrier")
            for x in reads(s):
                a(x)
        a("s_waitcnt lgkmcnt(0)")
        fill = reads(s + 1) if (s & 3) != 3 else []
        F = FR[s & 1]
        fi = 0
        for ti in range(2):
            for ct in range(2):
                acc = 32 + 4 * (2 * ti + ct)
                a("v_mfma_f32_16x16x32_bf16 %s, %s, %s, %s" % (vr(acc, 4), vr(F + 8 + 4 * ct, 4), vr(F + 4 * ti, 4), "0" if s == 0 else vr(acc, 4)))
                for _ in range(2):
                    if fi < len(fill):
                        a(fill[fi]); fi += 1
    a("s_waitcnt vmcnt(0)")
    a("s_nop 7")
    for ct in range(2):
        for j in range(2):
            a("v_lshlrev_b32 v%d, 16, v%d" % (64 + 4 * ct + 2 * j, 56 + 2 * ct + j))
            a("v_and_b32 v%d, 0xffff0000, v%d" % (65 + 4 * ct + 2 * j, 56 + 2 * ct + j))
    for ti in range(2):
        S, Q, D = 80 + 4 * ti, 81 + 4 * ti, 82 + 4 * ti
        for ct in range(2):
            acc = 32 + 4 * (2 * ti + ct)
            xr = 48 + 4 * ti + 2 * ct
            for j in range(2):
                a("v_cvt_pk_bf16_f32 v72, v%d, v%d" % (acc + 2 * j, acc + 2 * j + 1))
                a("v_lshlrev_b32 v73, 16, v72")
                a("v_and_b32 v74, 0xffff0000, v72")
                a("v_lshlrev_b32 v75, 16, v%d" % (xr + j))
                a("v_and_b32 v76, 0xffff0000, v%d" % (xr + j))
                a("v_add_f32 v73, v73, v75")
                a("v_add_f32 v74, v74, v76")
                a("v_cvt_pk_bf16_f32 v%d, v73, v74" % (xr + j))
                a("v_lshlrev_b32 v73, 16, v%d" % (xr + j))
                a("v_and_b32 v74, 0xffff0000, v%d" % (xr + j))
                w0, w1 = 64 + 4 * ct + 2 * j, 65 + 4 * ct + 2 * j
                if ct == 0 and j == 0:
                    a("v_add_f32 v%d, v73, v74" % S)
                    a("v_mul_f32 v%d, v73, v73" % Q)
                    a("v_mul_f32 v%d, v73, v%d" % (D, w0))
                else:
                    a("v_add_f32 v%d, v%d, v73" % (S, S))
                    a("v_add_f32 v%d, v%d, v74" % (S, S))
                    a("v_fma_f32 v%d, v73, v73, v%d" % (Q, Q))
                    a("v_fma_f32 v%d, v73, v%d, v%d" % (D, w0, D))
                a("v_fma_f32 v%d, v74, v74, v%d" % (Q, Q))
                a("v_fma_f32 v%d, v74, v%d, v%d" % (D, w1, D))
            a("buffer_store_dwordx2 %s, v%d, s[16:19], 0 offen offset:%d" % (vr(xr, 2), (9, 12)[ti], 32 * ct))
    bfly(a, "v_add_f32", [80, 81, 82, 84, 85, 86], [88, 89, 90, 91, 92, 93])
    a("""
    v_lshrrev_b32 v88, 4, v1
    v_cmp_eq_u32 s[48:49], 1, v88
    v_cmp_eq_u32 s[50:51], 2, v88
    v_cmp_eq_u32 s[52:53], 3, v88
    v_lshrrev_b32 v89, 6, v2
    v_lshl_add_u32 v89, v88, 2, v89
    v_add_u32 v90, 256, v89
    """)
    for ti in range(2):
        S = 80 + 4 * ti
        a("v_cndmask_b32 v%d, v%d, v%d, s[48:49]" % (S, S, S + 1))
        a("v_cndmask_b32 v%d, v%d, v%d, s[50:51]" % (S, S, S + 2))
    a("s_andn2_b64 exec, exec, s[52:53]")
    for ti in range(2):
        S = 80 + 4 * ti
        a("buffer_atomic_add_f32 v%d, v%d, s[40:43], 0 offen" % (S, 89 + ti))
    a.label("L_%s_end" % name)
    a("s_endpgm")
    return name, a.text() + kdesc(name, 128, 0)


SLAB_OFF = [8 * MB, 8 * MB + 524288]
K3_G = 0
K3_U = 65536
K3_MS2 = 131072
K3_XS2 = K3_MS2 + 16384
K3_H = K3_XS2 + 8 * 1040 + 64
K3_HP = 144
K3_CAND2 = K3_H + 16 * K3_HP
K3_SEL2 = K3_CAND2 + 128
K3_FLG = K3_SEL2 + 128
K3_LDS2 = K3_FLG + 64
K3_WDP = 1056


def norm_pair(a, src, vm, vinv, mode, T=50):
    a("v_lshlrev_b32 v%d, 16, v%d" % (T, src))
    a("v_and_b32 v%d, 0xffff0000, v%d" % (T + 1, src))
    a("v_sub_f32 v%d, v%d, v%d" % (T + 2, T, vm))
    a("v_sub_f32 v%d, v%d, v%d" % (T + 3, T + 1, vm))
    a("v_cvt_pk_bf16_f32 v%d, v%d, v%d" % (T + 4, T + 2, T + 3))
    a("v_lshlrev_b32 v%d, 16, v%d" % (T + 2, T + 4))
    a("v_and_b32 v%d, 0xffff0000, v%d" % (T + 3, T + 4))
    a("v_mul_f32 v%d, v%d, v%d" % (T + 2, T + 2, vinv))
    a("v_mul_f32 v%d, v%d, v%d" % (T + 3, T + 3, vinv))
    if mode == "xn":
        a("v_cvt_pk_bf16_f32 v%d, v%d, v%d" % (src, T + 2, T + 3))
    else:
        a("v_cvt_pk_bf16_f32 v%d, v%d, v%d" % (T + 4, T + 2, T + 3))
        a("v_lshlrev_b32 v%d, 16, v%d" % (T + 2, T + 4))
        a("v_and_b32 v%d, 0xffff0000, v%d" % (T + 3, T + 4))
        a("v_add_f32 v%d, v%d, v%d" % (T + 2, T + 2, T))
        a("v_add_f32 v%d, v%d, v%d" % (T + 3, T + 3, T + 1))
        a("v_cvt_pk_bf16_f32 v%d, v%d, v%d" % (src, T + 2, T + 3))


def gen_k3(layer):
    a = Asm()
    name = "k3l%d_kernel" % layer
    khead(a, name)
    a("s_cmp_ge_u32 s2, 256")
    a("s_cbranch_scc1 L_%s_end" % name)
    a("s_load_dwordx4 s[20:23], s[0:1], 32")
    a("s_load_dwordx4 s[28:31], s[0:1], 48")
    a("s_load_dwordx2 s[24:25], s[0:1], 80")
    a("s_load_dwordx2 s[26:27], s[0:1], 64")
    a("s_load_dwordx2 s[64:65], s[0:1], 72")
    a("""
    v_lshrrev_b32 v1, 6, v0
    s_nop 0
    v_readfirstlane_b32 s33, v1
    v_and_b32 v1, 63, v0
    s_lshl_b32 s32, s2, 7
    s_mov_b32 s56, 0x%x
    s_mov_b32 s57, 0x%x
    s_mov_b32 s58, 0x%x
    s_cmp_lt_u32 s33, 4
    s_cbranch_scc1 L_%s_mm
    """ % (f2u(1.0 / 512), f2u(1e-5), ONES_BF, name))
    sc = {"r512": 56, "eps": 57}
    a("s_sub_u32 s33, s33, 4")
    a("v_and_b32 v0, 255, v0")
    a("s_waitcnt lgkmcnt(0)")
    srd(a, 4, 24, 25, ST_OFF[layer], 32768)
    srd(a, 8, 24, 25, X1_OFF, 2 * MB)
    if layer == 0:
        srd(a, 12, 24, 25, X2_OFF, 2 * MB)
    else:
        srd(a, 12, 26, 27, 0, 2 * MB)
    srd(a, 48, 64, 65, 0, 256)
    a("""
    s_lshl_b32 s34, s2, 13
    v_lshlrev_b32 v4, 4, v0
    v_add_u32 v4, s34, v4
    v_add_u32 v5, 4096, v4
    s_lshl_b32 s34, s2, 3
    s_add_u32 s34, s34, s33
    s_lshl_b32 s34, s34, 4
    v_mov_b32 v6, s34
    buffer_load_dwordx4 v[8:11], v6, s[4:7], 0 offen
    buffer_load_dwordx4 v[12:15], v6, s[4:7], 0 offen offset:64
    buffer_load_dwordx4 v[100:103], v4, s[8:11], 0 offen
    buffer_load_dwordx4 v[104:107], v5, s[8:11], 0 offen
    """)
    a("s_cmp_ge_u32 s2, 28")
    a("s_cbranch_scc1 L_%s_x2only" % name)
    a("s_barrier")
    srd(a, 36, 22, 23, 0, 512 * 3584)
    srd(a, 40, 28, 29, 0, 512 * 3584)
    srd(a, 44, 30, 31, 0, 1792 * 1024)
    a("""
    v_lshrrev_b32 v20, 3, v1
    v_and_b32 v21, 7, v1
    s_lshl_b32 s35, s33, 7
    v_add_u32 v22, s35, v20
    v_mul_u32_u24 v22, 3584, v22
    v_add_u32 v22, s32, v22
    v_bfe_u32 v23, v20, 1, 1
    v_lshlrev_b32 v23, 1, v23
    v_xor_b32 v23, v23, v21
    v_lshl_add_u32 v2, v23, 4, v22
    v_xor_b32 v23, 4, v23
    v_lshl_add_u32 v3, v23, 4, v22
    s_lshl_b32 s52, s33, 14
    """)
    for i in range(16):
        a("s_mov_b32 s34, %d" % (8 * i * 3584))
        a("s_add_u32 m0, s52, %d" % (K3_G + 1024 * i))
        a("s_nop 0")
        a("buffer_load_dwordx4 v%d, s[36:39], s34 offen lds" % (2 + (i & 1)))
        a("s_add_u32 m0, s52, %d" % (K3_U + 1024 * i))
        a("s_nop 0")
        a("buffer_load_dwordx4 v%d, s[40:43], s34 offen lds" % (2 + (i & 1)))
    a("""
    s_lshl_b32 s34, s2, 16
    s_lshl_b32 s35, s33, 14
    s_add_u32 s34, s34, s35
    v_lshlrev_b32 v7, 4, v1
    v_add_u32 v7, s34, v7
    """)
    for i in range(16):
        a("s_mov_b32 s34, %d" % (1024 * i))
        a("buffer_load_dwordx4 %s, v7, s[44:47], s34 offen" % vr(112 + 4 * i, 4))
    a("s_waitcnt vmcnt(48)")
    a("s_branch L_%s_x2" % name)
    a.label("L_%s_x2only" % name)
    a("s_waitcnt vmcnt(0)")
    a.label("L_%s_x2" % name)
    ln_finalize(a, 8, 9, 40, 41, 42, sc)
    ln_finalize(a, 12, 13, 43, 44, 45, sc)
    for r in range(4):
        norm_pair(a, 100 + r, 40, 41, "x2")
    a("buffer_store_dwordx4 v[100:103], v4, s[12:15], 0 offen sc1")
    for r in range(4):
        norm_pair(a, 104 + r, 43, 44, "x2")
    a("buffer_store_dwordx4 v[104:107], v5, s[12:15], 0 offen sc1")
    a("s_cmp_lt_u32 s2, 28")
    a("s_cbranch_scc1 L_%s_ffnl" % name)
    a("s_waitcnt vmcnt(0)")
    a("s_barrier")
    a("""
    s_cmp_lg_u32 s33, 0
    s_cbranch_scc1 L_%s_nosig%d
    v_mov_b32 v10, 0
    v_mov_b32 v11, 1
    v_cmp_eq_u32 vcc, 0, v1
    s_and_saveexec_b64 s[34:35], vcc
    buffer_atomic_add v11, v10, s[48:51], 0 offen
    s_mov_b64 exec, s[34:35]
    """ % (name, 0))
    a.label("L_%s_nosig%d" % (name, 0))
    a("s_endpgm")
    a.label("L_%s_ffnl" % name)
    a("s_waitcnt vmcnt(18)")
    a("s_barrier")
    a("""
    s_mul_i32 s34, s33, %d
    v_lshlrev_b32 v7, 4, v1
    v_add_u32 v7, s34, v7
    """ % (16 * K3_WDP))
    a("s_waitcnt vmcnt(0)")
    a("s_barrier")
    a("""
    s_cmp_lg_u32 s33, 0
    s_cbranch_scc1 L_%s_nosig%d
    v_mov_b32 v10, 0
    v_mov_b32 v11, 1
    v_cmp_eq_u32 vcc, 0, v1
    s_and_saveexec_b64 s[34:35], vcc
    buffer_atomic_add v11, v10, s[48:51], 0 offen
    s_mov_b64 exec, s[34:35]
    """ % (name, 1))
    a.label("L_%s_nosig%d" % (name, 1))
    for i in range(16):
        pos = (i & 3) | ((i & 4) << 1) | ((i & 8) >> 1)
        a("ds_write_b128 v7, %s offset:%d" % (vr(112 + 4 * i, 4), K3_G + pos * K3_WDP))
    a("s_waitcnt lgkmcnt(0)")
    a("s_barrier")
    a("s_endpgm")
    a.label("L_%s_mm" % name)
    a("s_cmp_ge_u32 s2, 28")
    a("s_cbranch_scc1 L_%s_end" % name)
    a("""
    s_lshl_b32 s34, s33, 2
    v_mov_b32 v2, s34
    v_add_u32 v2, %d, v2
    v_mov_b32 v3, 0
    ds_write_b32 v2, v3
    """ % K3_FLG)
    a("s_setprio 3")
    a("s_waitcnt lgkmcnt(0)")
    a("s_barrier")
    srd(a, 4, 24, 25, ST_OFF[layer], 32768)
    srd(a, 8, 24, 25, X1_OFF, 2 * MB)
    srd(a, 16, 20, 21, 0, 1024)
    srd(a, 44, 24, 25, SEL_OFF[layer], 64)
    srd(a, 48, 24, 25, XS_OFF[layer], 8192)
    srd(a, 52, 24, 25, ST_OFF[layer] + 32768, 16384)
    srd(a, 36, 64, 65, 0, 256)
    if layer == 0:
        srd(a, 12, 24, 25, X2_OFF, 2 * MB)
    else:
        srd(a, 12, 26, 27, 0, 2 * MB)
    a("v_lshlrev_b32 v2, 7, v0")
    for i in range(8):
        a("buffer_load_dwordx4 %s, v2, s[4:7], 0 offen offset:%d" % (vr(64 + 4 * i, 4), 16 * i))
    a("v_lshlrev_b32 v3, 4, v1")
    a("buffer_load_dwordx4 v[96:99], v3, s[16:19], 0 offen")
    if DRY:
        a("s_mov_b32 s99, 0")
        a("s_mov_b64 exec, 0")
        a("s_branch L_%s_r1" % name)
        a.label("L_%s_r0" % name)
    a("s_waitcnt vmcnt(0)")
    a.label("L_%s_r1" % name)
    a("v_mov_b32 v8, 0")
    for r in range(4):
        a("v_dot2_f32_bf16 v8, v%d, s58, v8" % (96 + r))
    a("s_nop 2")
    for sh in (1, 2, 4, 8):
        a("v_add_f32_dpp v8, v8, v8 row_ror:%d row_mask:0xf bank_mask:0xf" % sh)
        a("s_nop 1")
    bfly(a, "v_add_f32", [8], [9])
    a("v_lshlrev_b32 v10, 6, v0")
    a("v_lshlrev_b32 v11, 3, v0")
    a("v_sub_u32 v11, 2047, v11")
    a("v_add_u32 v10, %d, v10" % K3_MS2)
    a("s_mov_b32 s59, 0xffff0000")
    a("s_mov_b32 s34, 0")
    a("s_mov_b32 s35, 0")
    a.label("L_%s_rl" % name)
    a("""
    s_set_gpr_idx_on s34, gpr_idx(SRC0)
    s_nop 0
    v_mov_b32 v2, v64
    v_mov_b32 v3, v65
    v_mov_b32 v4, v66
    s_set_gpr_idx_off
    """)
    ln_finalize(a, 2, 3, 12, 13, 14, sc)
    a("""
    v_fma_f32 v15, -v12, v8, v4
    v_mul_f32 v15, v15, v13
    v_cvt_pk_bf16_f32 v15, v15, v15
    v_lshlrev_b32 v15, 16, v15
    v_ashrrev_i32 v16, 31, v15
    v_or_b32 v16, 0x80000000, v16
    v_xor_b32 v15, v15, v16
    v_and_or_b32 v15, v15, s59, v11
    ds_write_b64 v10, v[12:13]
    v_add_u32 v10, 8, v10
    v_subrev_u32 v11, 1, v11
    s_set_gpr_idx_on s35, gpr_idx(DST)
    s_nop 0
    v_mov_b32 v20, v15
    s_set_gpr_idx_off
    s_add_u32 s34, s34, 4
    s_add_u32 s35, s35, 1
    s_cmp_lt_u32 s35, 8
    s_cbranch_scc1 L_%s_rl
    """ % name)
    net = [(0, 1), (2, 3), (4, 5), (6, 7), (0, 2), (1, 3), (4, 6), (5, 7), (1, 2), (5, 6),
           (0, 4), (1, 5), (2, 6), (3, 7), (2, 4), (3, 5), (1, 2), (3, 4), (5, 6)]
    for (i, j) in net:
        a("v_max_u32 v12, v%d, v%d" % (20 + i, 20 + j))
        a("v_min_u32 v%d, v%d, v%d" % (20 + j, 20 + i, 20 + j))
        a("v_mov_b32 v%d, v12" % (20 + i))
    a("v_mov_b32 v30, 0")
    a("v_mov_b32 v31, 0")
    a("s_mov_b32 s34, 0")
    a.label("L_%s_rd" % name)
    a("v_mov_b32 v12, v20")
    a("s_nop 1")
    for sh in (1, 2, 4, 8):
        a("v_max_u32_dpp v12, v12, v12 row_ror:%d row_mask:0xf bank_mask:0xf" % sh)
        a("s_nop 1")
    bfly(a, "v_max_u32", [12], [13])
    a("v_cmp_eq_u32 vcc, v12, v20")
    a("v_cmp_eq_u32 s[60:61], s34, v1")
    a("s_add_u32 s34, s34, 1")
    for i in range(7):
        a("v_cndmask_b32 v%d, v%d, v%d, vcc" % (20 + i, 20 + i, 21 + i))
    a("v_cndmask_b32 v27, v27, v31, vcc")
    a("v_cndmask_b32 v30, v30, v12, s[60:61]")
    a("s_cmp_lt_u32 s34, 8")
    a("s_cbranch_scc1 L_%s_rd" % name)
    if DRY:
        a("s_cmp_eq_u32 s99, 0")
        a("s_cbranch_scc0 L_%s_r2" % name)
        a("s_mov_b32 s99, 1")
        a("s_mov_b64 exec, -1")
        a("s_branch L_%s_r0" % name)
        a.label("L_%s_r2" % name)
    a("""
    s_lshl_b32 s34, s33, 5
    v_lshlrev_b32 v12, 2, v1
    v_add_u32 v12, s34, v12
    v_add_u32 v12, %d, v12
    v_cmp_gt_u32 vcc, 8, v1
    s_and_saveexec_b64 s[62:63], vcc
    ds_write_b32 v12, v30
    s_mov_b64 exec, s[62:63]
    s_lshl_b32 s34, s33, 2
    v_mov_b32 v12, s34
    v_add_u32 v12, %d, v12
    v_mov_b32 v13, 1
    ds_write_b32 v12, v13
    v_mov_b32 v12, %d
    """ % (K3_CAND2, K3_FLG, K3_FLG))
    a.label("L_%s_poll" % name)
    a("""
    ds_read_b128 v[32:35], v12
    s_waitcnt lgkmcnt(0)
    v_and_b32 v32, v32, v33
    v_and_b32 v34, v34, v35
    v_and_b32 v32, v32, v34
    v_cmp_eq_u32 vcc, 1, v32
    s_cbranch_vccz L_%s_poll
    """ % name)
    a("v_and_b32 v12, 31, v1")
    a("v_lshlrev_b32 v12, 2, v12")
    a("v_add_u32 v12, %d, v12" % K3_CAND2)
    a("ds_read_b32 v30, v12")
    a("v_mov_b32 v13, %d" % K3_CAND2)
    for i in range(8):
        a("ds_read_b128 %s, v13 offset:%d" % (vr(32 + 4 * i, 4), 16 * i))
    a("v_mov_b32 v14, 0")
    a("s_waitcnt lgkmcnt(0)")
    for i in range(32):
        a("v_cmp_gt_u32 vcc, v%d, v30" % (32 + i))
        a("v_addc_co_u32 v14, vcc, 0, v14, vcc")
    a("""
    v_cmp_gt_u32 vcc, 8, v14
    v_cmp_gt_u32 s[60:61], 32, v1
    s_and_b64 vcc, vcc, s[60:61]
    v_lshlrev_b32 v14, 2, v14
    v_add_u32 v14, %d, v14
    s_and_saveexec_b64 s[62:63], vcc
    ds_write_b32 v14, v30
    s_mov_b64 exec, s[62:63]
    s_waitcnt lgkmcnt(0)
    v_lshrrev_b32 v12, 5, v0
    v_lshlrev_b32 v12, 2, v12
    v_add_u32 v12, %d, v12
    ds_read_b32 v31, v12
    s_waitcnt lgkmcnt(0)
    v_and_b32 v13, 0xffff, v31
    v_sub_u32 v13, 2047, v13
    v_lshlrev_b32 v14, 10, v13
    v_and_b32 v15, 31, v0
    v_lshl_add_u32 v14, v15, 5, v14
    buffer_load_dwordx4 v[32:35], v14, s[8:11], 0 offen
    buffer_load_dwordx4 v[36:39], v14, s[8:11], 0 offen offset:16
    v_lshlrev_b32 v16, 3, v13
    v_add_u32 v16, %d, v16
    ds_read_b64 v[40:41], v16
    """ % (K3_SEL2, K3_SEL2, K3_MS2))
    a("""
    v_lshrrev_b32 v12, 5, v0
    v_mul_u32_u24 v12, 1040, v12
    v_lshl_add_u32 v12, v15, 5, v12
    v_add_u32 v12, %d, v12
    v_lshrrev_b32 v11, 4, v1
    v_bfe_u32 v10, v1, 2, 2
    v_lshl_add_u32 v17, v11, 3, v10
    v_lshlrev_b32 v17, 7, v17
    v_lshrrev_b32 v18, 1, v10
    v_and_b32 v19, 1, v11
    v_lshl_or_b32 v18, v19, 1, v18
    v_xor_b32 v18, s33, v18
    v_lshl_add_u32 v17, v18, 5, v17
    v_and_b32 v18, 3, v1
    v_lshl_add_u32 v8, v18, 3, v17
    v_add_u32 v9, %d, v8
    v_and_b32 v17, 7, v1
    v_mul_u32_u24 v17, 1040, v17
    v_lshl_add_u32 v17, v11, 4, v17
    v_add_u32 v17, %d, v17
    """ % (K3_XS2, K3_U, K3_XS2))
    a("v_mov_b32 v121, v14")
    a("s_waitcnt vmcnt(0) lgkmcnt(0)")
    for r in range(8):
        a("v_mov_b32 v%d, v%d" % (112 + r, 32 + r))
        norm_pair(a, 32 + r, 40, 41, "xn")
    a("ds_write_b128 v12, v[32:35]")
    a("ds_write_b128 v12, v[36:39] offset:16")
    a("""
    v_and_b32 v51, 0xffff0000, v31
    v_ashrrev_i32 v50, 31, v51
    v_not_b32 v50, v50
    v_or_b32 v50, 0x80000000, v50
    v_xor_b32 v51, v51, v50
    v_and_b32 v51, 0xffff0000, v51
    v_mul_f32 v52, 0x%x, v51
    v_exp_f32 v52, v52
    s_nop 0
    v_add_f32 v52, 1.0, v52
    v_rcp_f32 v52, v52
    s_nop 0
    v_cvt_pk_bf16_f32 v52, v52, v52
    v_lshlrev_b32 v120, 16, v52
    """ % f2u(-LOG2E))
    a("s_waitcnt lgkmcnt(0)")
    a("s_barrier")
    FR = [64, 76]

    def rd(s):
        F = FR[s & 1]
        return ["ds_read_b64_tr_b16 %s, v8 offset:%d" % (vr(F, 2), 4096 * s),
                "ds_read_b64_tr_b16 %s, v8 offset:%d" % (vr(F + 2, 2), 4096 * s + 512),
                "ds_read_b64_tr_b16 %s, v9 offset:%d" % (vr(F + 4, 2), 4096 * s),
                "ds_read_b64_tr_b16 %s, v9 offset:%d" % (vr(F + 6, 2), 4096 * s + 512),
                "ds_read_b128 %s, v17 offset:%d" % (vr(F + 8, 4), 64 * s)]
    for x in rd(0):
        a(x)
    for r in range(96, 104):
        a("v_mov_b32 v%d, 0" % r)
    a("s_mov_b32 s34, 0")
    a.label("L_%s_gu" % name)
    for x in rd(1):
        a(x)
    a("s_waitcnt lgkmcnt(5)")
    a("v_mfma_f32_16x16x32_bf16 v[96:99], %s, %s, v[96:99]" % (vr(64, 4), vr(72, 4)))
    a("v_mfma_f32_16x16x32_bf16 v[100:103], %s, %s, v[100:103]" % (vr(68, 4), vr(72, 4)))
    for x in rd(2):
        a(x)
    a("s_waitcnt lgkmcnt(5)")
    a("v_mfma_f32_16x16x32_bf16 v[96:99], %s, %s, v[96:99]" % (vr(76, 4), vr(84, 4)))
    a("v_mfma_f32_16x16x32_bf16 v[100:103], %s, %s, v[100:103]" % (vr(80, 4), vr(84, 4)))
    a("""
    v_add_u32 v8, 8192, v8
    v_add_u32 v9, 8192, v9
    v_add_u32 v17, 128, v17
    s_add_u32 s34, s34, 1
    s_cmp_lt_u32 s34, 8
    s_cbranch_scc1 L_%s_gu
    s_waitcnt lgkmcnt(0)
    """ % name)
    a("s_mov_b32 s34, 0x%x" % f2u(-LOG2E))
    a("""
    v_and_b32 v10, 15, v1
    v_mul_u32_u24 v10, %d, v10
    v_lshrrev_b32 v11, 4, v1
    v_lshl_add_u32 v12, v11, 3, v10
    s_lshl_b32 s35, s33, 5
    v_add_u32 v12, s35, v12
    v_add_u32 v12, %d, v12
    v_lshl_add_u32 v13, v11, 4, v10
    v_add_u32 v13, %d, v13
    """ % (K3_HP, K3_H, K3_H))
    for r in range(4):
        rbf(a, 96 + r)
        rbf(a, 100 + r)
    for r in range(4):
        a("v_mul_f32 v%d, s34, v%d" % (104 + r, 96 + r))
        a("v_exp_f32 v%d, v%d" % (104 + r, 104 + r))
    a("s_nop 0")
    for r in range(4):
        a("v_add_f32 v%d, 1.0, v%d" % (104 + r, 104 + r))
        a("v_rcp_f32 v%d, v%d" % (104 + r, 104 + r))
    a("s_nop 0")
    for r in range(4):
        a("v_mul_f32 v%d, v%d, v%d" % (96 + r, 96 + r, 104 + r))
        rbf(a, 96 + r)
        a("v_mul_f32 v%d, v%d, v%d" % (96 + r, 96 + r, 100 + r))
    a("v_cvt_pk_bf16_f32 v96, v96, v97")
    a("v_cvt_pk_bf16_f32 v97, v98, v99")
    a("ds_write_b64 v12, v[96:97]")
    a("s_waitcnt lgkmcnt(0)")
    a("s_barrier")
    a("ds_read_b128 v[64:67], v13")
    a("ds_read_b128 v[68:71], v13 offset:64")
    a("""
    v_lshrrev_b32 v10, 5, v1
    v_lshlrev_b32 v8, 4, v10
    v_bfe_u32 v10, v1, 4, 1
    v_lshl_add_u32 v8, v10, 2, v8
    v_bfe_u32 v10, v1, 2, 2
    v_add_u32 v8, v8, v10
    v_mul_u32_u24 v8, %d, v8
    v_and_b32 v10, 3, v1
    v_lshl_add_u32 v8, v10, 3, v8
    s_lshl_b32 s35, s33, 8
    v_add_u32 v8, s35, v8
    v_and_b32 v10, 15, v1
    v_lshlrev_b32 v14, 11, v10
    v_lshrrev_b32 v11, 4, v1
    v_lshl_add_u32 v14, v11, 4, v14
    s_lshl_b32 s35, s33, 9
    v_add_u32 v14, s35, v14
    v_cmp_gt_u32 s[60:61], 8, v10
    """ % K3_WDP)
    a("s_barrier")
    for ct in range(8):
        for s in range(2):
            b = 128 + 8 * ct + 4 * s
            a("ds_read_b64_tr_b16 %s, v8 offset:%d" % (vr(b, 2), K3_G + 32 * s * K3_WDP + 32 * ct))
            a("ds_read_b64_tr_b16 %s, v8 offset:%d" % (vr(b + 2, 2), K3_G + (32 * s + 8) * K3_WDP + 32 * ct))
    a("s_waitcnt lgkmcnt(0)")
    for ct in range(8):
        b = 128 + 8 * ct
        a("v_mfma_f32_16x16x32_bf16 %s, %s, v[64:67], 0" % (vr(72 + 4 * ct, 4), vr(b, 4)))
        a("v_mfma_f32_16x16x32_bf16 %s, %s, v[68:71], %s" % (vr(72 + 4 * ct, 4), vr(b + 4, 4), vr(72 + 4 * ct, 4)))
    a("s_nop 7")
    a("s_mov_b64 exec, s[60:61]")
    for ct in range(8):
        for r in range(4):
            a("buffer_atomic_add_f32 v%d, v14, s[52:55], 0 offen offset:%d" % (72 + 4 * ct + r, 64 * ct + 4 * r))
    a("s_mov_b64 exec, -1")
    a("""
    v_lshlrev_b32 v10, 6, v0
    v_mov_b32 v16, %d
    s_waitcnt vmcnt(0)
    s_barrier
    s_cmp_lg_u32 s33, 0
    s_cbranch_scc1 L_%s_arr
    v_mov_b32 v11, 128
    v_mov_b32 v12, 1
    v_cmp_eq_u32 vcc, 0, v1
    s_and_saveexec_b64 s[34:35], vcc
    buffer_atomic_add v12, v11, s[36:39], 0 offen sc0
    s_waitcnt vmcnt(0)
    ds_write_b32 v16, v12
    s_mov_b64 exec, s[34:35]
    s_waitcnt lgkmcnt(0)
    """ % (K3_FLG, name))
    a.label("L_%s_arr" % name)
    a("""
    s_barrier
    ds_read_b32 v12, v16
    s_waitcnt lgkmcnt(0)
    v_readfirstlane_b32 s34, v12
    s_cmp_lg_u32 s34, 27
    s_cbranch_scc1 L_%s_end
    v_mov_b32 v11, 0
    """ % name)
    a.label("L_%s_x2w" % name)
    a("""
    buffer_load_dword v12, v11, s[36:39], 0 offen sc1
    s_waitcnt vmcnt(0)
    v_readfirstlane_b32 s34, v12
    s_cmp_lt_u32 s34, 256
    s_cbranch_scc1 L_%s_x2w
    """ % name)
    for q in range(4):
        a("buffer_load_dwordx4 %s, v10, s[52:55], 0 offen offset:%d sc1" % (vr(64 + 4 * q, 4), 16 * q))
    a("s_waitcnt vmcnt(0)")
    for p in range(8):
        a("v_cvt_pk_bf16_f32 v40, v%d, v%d" % (64 + 2 * p, 65 + 2 * p))
        a("v_lshlrev_b32 v41, 16, v40")
        a("v_and_b32 v42, 0xffff0000, v40")
        a("v_mul_f32 v41, v41, v120")
        a("v_mul_f32 v42, v42, v120")
        a("v_cvt_pk_bf16_f32 v40, v41, v42")
        a("v_lshlrev_b32 v41, 16, v40")
        a("v_and_b32 v42, 0xffff0000, v40")
        a("v_lshlrev_b32 v43, 16, v%d" % (32 + p))
        a("v_and_b32 v44, 0xffff0000, v%d" % (32 + p))
        a("v_add_f32 v41, v41, v43")
        a("v_add_f32 v42, v42, v44")
        a("v_cvt_pk_bf16_f32 v40, v41, v42")
        a("v_lshlrev_b32 v41, 16, v40")
        a("v_and_b32 v42, 0xffff0000, v40")
        a("v_lshlrev_b32 v43, 16, v%d" % (112 + p))
        a("v_and_b32 v44, 0xffff0000, v%d" % (112 + p))
        a("v_add_f32 v41, v41, v43")
        a("v_add_f32 v42, v42, v44")
        a("v_cvt_pk_bf16_f32 v%d, v41, v42" % (80 + p))
    a("buffer_store_dwordx4 v[80:83], v121, s[12:15], 0 offen sc1")
    a("buffer_store_dwordx4 v[84:87], v121, s[12:15], 0 offen offset:16 sc1")
    a.label("L_%s_end" % name)
    a("s_endpgm")
    return name, a.text() + kdesc(name, 192, 0)


def gen_k4(layer):
    a = Asm()
    name = "k4l%d_kernel" % layer
    khead(a, name)
    a("s_cmp_ge_u32 s2, 8")
    a("s_cbranch_scc1 L_%s_end" % name)
    a("s_load_dwordx2 s[24:25], s[0:1], 80")
    a("s_load_dwordx2 s[26:27], s[0:1], 64")
    a("s_waitcnt lgkmcnt(0)")
    srd(a, 4, 24, 25, SLAB_OFF[layer], 28 * 16384)
    srd(a, 8, 24, 25, X1_OFF, 2 * MB)
    if layer == 0:
        srd(a, 12, 24, 25, X2_OFF, 2 * MB)
    else:
        srd(a, 12, 26, 27, 0, 2 * MB)
    srd(a, 16, 24, 25, SEL_OFF[layer], 64)
    srd(a, 20, 24, 25, XS_OFF[layer], 8192)
    a("""
    s_lshl_b32 s3, s2, 2
    v_mov_b32 v2, s3
    buffer_load_dword v3, v2, s[16:19], 0 offen
    buffer_load_dword v4, v2, s[16:19], 0 offen offset:32
    s_lshl_b32 s3, s2, 10
    v_lshlrev_b32 v5, 2, v0
    v_add_u32 v6, s3, v5
    buffer_load_dword v7, v6, s[20:23], 0 offen
    s_lshl_b32 s3, s2, 11
    v_lshlrev_b32 v8, 3, v0
    v_add_u32 v8, s3, v8
    """)
    for p in range(28):
        a("s_mov_b32 s3, %d" % (16384 * p))
        a("buffer_load_dwordx2 %s, v8, s[4:7], s3 offen" % vr(16 + 2 * p, 2))
    a("s_waitcnt vmcnt(30)")
    a("v_lshl_add_u32 v9, v3, 10, v5")
    a("buffer_load_dword v10, v9, s[8:11], 0 offen")
    a("s_waitcnt vmcnt(1)")
    for p in range(1, 28):
        a("v_add_f32 v16, v16, v%d" % (16 + 2 * p))
        a("v_add_f32 v17, v17, v%d" % (17 + 2 * p))
    a("""
    v_cvt_pk_bf16_f32 v40, v16, v17
    v_lshlrev_b32 v41, 16, v40
    v_and_b32 v42, 0xffff0000, v40
    v_mul_f32 v41, v41, v4
    v_mul_f32 v42, v42, v4
    v_cvt_pk_bf16_f32 v40, v41, v42
    v_lshlrev_b32 v41, 16, v40
    v_and_b32 v42, 0xffff0000, v40
    v_lshlrev_b32 v43, 16, v7
    v_and_b32 v44, 0xffff0000, v7
    v_add_f32 v41, v41, v43
    v_add_f32 v42, v42, v44
    v_cvt_pk_bf16_f32 v40, v41, v42
    v_lshlrev_b32 v41, 16, v40
    v_and_b32 v42, 0xffff0000, v40
    s_waitcnt vmcnt(0)
    v_lshlrev_b32 v43, 16, v10
    v_and_b32 v44, 0xffff0000, v10
    v_add_f32 v41, v41, v43
    v_add_f32 v42, v42, v44
    v_cvt_pk_bf16_f32 v40, v41, v42
    buffer_store_dword v40, v9, s[12:15], 0 offen
    """)
    a.label("L_%s_end" % name)
    a("s_endpgm")
    return name, a.text() + kdesc(name, 80, 0)


def build_parts():
    parts = []
    launches = []
    for layer in range(2):
        for g, grid, blk, lds in ((gen_k1, 256, 512, K1_LDS2), (gen_k2, 256, 512, K2_LDS2), (gen_k3, 256, 512, K3_LDS2)):
            n, t = g(layer)
            parts.append(t)
            launches.append("; @launch kernel=%s grid=(%d,1,1) block=(%d,1,1) lds=%d" % (n, grid, blk, lds))
    return parts, launches


def main(out):
    parts, launches = build_parts()
    txt = HEADER + "\n".join(launches) + "\n" + '.amdgcn_target "amdgcn-amd-amdhsa--gfx950"\n' + "\n".join(parts)
    open(out, "w").write(txt)


if __name__ == "__main__":
    main(sys.argv[1] if len(sys.argv) > 1 else "interleave_layers__sliding_local_dilated__moe_arch_mod__prompt.s")
```

```python
from gen import *
import gen

K1_MISC = 0
K1_S0 = 1024
K1_SLOT = 36864
K1_AW = 12288
K1_LDS2 = K1_S0 + 4 * K1_SLOT


def gen_k1(layer):
    a = Asm()
    name = "k1l%d_kernel" % layer
    khead(a, name)
    a("s_cmp_ge_u32 s2, 256")
    a("s_cbranch_scc1 L_%s_end" % name)
    a("s_load_dwordx4 s[20:23], s[0:1], 0")
    a("s_load_dwordx2 s[24:25], s[0:1], 80")
    a("""
    s_and_b32 s3, s2, 7
    s_lshr_b32 s26, s2, 3
    s_and_b32 s27, s3, 3
    s_lshl_b32 s27, s27, 3
    s_and_b32 s30, s26, 7
    s_add_u32 s27, s27, s30
    s_lshr_b32 s28, s3, 2
    s_lshl_b32 s28, s28, 2
    s_lshr_b32 s30, s26, 3
    s_add_u32 s28, s28, s30
    v_lshrrev_b32 v1, 6, v0
    s_nop 0
    v_readfirstlane_b32 s29, v1
    v_and_b32 v1, 63, v0
    s_lshl_b32 s32, s28, 7
    s_mov_b32 s40, 0x%x
    s_mov_b32 s41, 0x%x
    s_cmp_lt_u32 s29, 4
    s_cbranch_scc1 L_%s_mm
    """ % (f2u(1.0 / 512), f2u(1e-5), name))
    sc = {"r512": 40, "eps": 41}

    def stats_ops(src, acc, t):
        ops = []
        for r in range(4):
            ops.append("v_lshlrev_b32 v%d, 16, v%d" % (t, src + r))
            ops.append("v_and_b32 v%d, 0xffff0000, v%d" % (t + 1, src + r))
            ops.append("v_add_f32 v%d, v%d, v%d" % (acc, acc, t))
            ops.append("v_add_f32 v%d, v%d, v%d" % (acc + 1, acc + 1, t + 1))
            ops.append("v_fma_f32 v%d, v%d, v%d, v%d" % (acc + 2, t, t, acc + 2))
            ops.append("v_fma_f32 v%d, v%d, v%d, v%d" % (acc + 3, t + 1, t + 1, acc + 3))
        return ops

    def stats_fin(acc, vrow):
        a("v_add_f32 v%d, v%d, v%d" % (acc, acc, acc + 1))
        a("v_add_f32 v%d, v%d, v%d" % (acc + 2, acc + 2, acc + 3))
        for m in ("quad_perm:[1,0,3,2]", "quad_perm:[2,3,0,1]", "row_half_mirror"):
            a("s_nop 1")
            a("v_add_f32_dpp v%d, v%d, v%d %s row_mask:0xf bank_mask:0xf" % (acc, acc, acc, m))
            a("v_add_f32_dpp v%d, v%d, v%d %s row_mask:0xf bank_mask:0xf" % (acc + 2, acc + 2, acc + 2, m))
        ln_finalize(a, acc, acc + 2, acc + 1, acc + 3, 36, sc)
        a("v_lshlrev_b32 v%d, 2, v%d" % (vrow, vrow))
        a("ds_write_b32 v%d, v%d offset:%d" % (vrow, acc + 1, K1_MISC))
        a("ds_write_b32 v%d, v%d offset:%d" % (vrow, acc + 3, K1_MISC + 512))

    a("s_sub_u32 s29, s29, 4")
    a("v_and_b32 v0, 255, v0")
    a("""
    s_lshl_b32 s30, s27, 6
    s_sub_u32 s30, s30, 16
    s_mul_i32 s31, s29, 24
    v_lshrrev_b32 v10, 3, v1
    v_add_u32 v10, s31, v10
    v_and_b32 v11, 7, v1
    """)
    for i in range(3):
        a("v_add_u32 v12, %d, v10" % (8 * i))
        a("v_bfe_u32 v13, v12, 1, 3")
        a("v_xor_b32 v13, v13, v11")
        a("v_add_u32 v14, s30, v12")
        a("v_lshlrev_b32 v14, 10, v14")
        a("v_lshl_add_u32 v%d, v13, 4, v14" % (2 + i))
        a("v_cmp_gt_u32 vcc, 80, v12")
        a("v_mov_b32 v13, 0x7ff00000")
        a("s_nop 0")
        a("v_cndmask_b32 v%d, v13, v%d, vcc" % (2 + i, 2 + i))
    a("""
    v_lshrrev_b32 v10, 3, v1
    v_mul_u32_u24 v12, 3072, v10
    v_bfe_u32 v13, v10, 1, 1
    v_lshlrev_b32 v13, 1, v13
    v_xor_b32 v13, v13, v11
    v_lshl_add_u32 v5, v13, 4, v12
    v_xor_b32 v13, 4, v13
    v_lshl_add_u32 v6, v13, 4, v12
    """)
    a("s_mul_i32 s31, s29, 6")
    for i in range(6):
        a("s_add_u32 s34, s31, %d" % i)
        a("s_and_b32 s35, s34, 7")
        a("s_mul_i32 s35, s35, 24576")
        a("s_lshr_b32 s34, s34, 3")
        a("s_lshl_b32 s34, s34, 10")
        a("s_add_u32 s35, s35, s34")
        a("s_add_u32 s%d, s35, s32" % (46 + i))
    a("s_mul_i32 s52, s29, 3072")
    a("s_add_u32 s52, s52, %d" % K1_S0)
    a("s_mul_i32 s53, s29, 6144")
    a("s_add_u32 s53, s53, %d" % (K1_S0 + K1_AW))
    a("""
    v_lshrrev_b32 v10, 3, v0
    v_and_b32 v11, 7, v0
    v_lshlrev_b32 v11, 4, v11
    v_add_u32 v44, 32, v10
    v_lshl_add_u32 v28, v44, 7, v11
    v_add_u32 v28, %d, v28
    v_add_u32 v45, 64, v10
    v_min_u32 v45, 79, v45
    v_lshl_add_u32 v48, v45, 7, v11
    v_add_u32 v48, %d, v48
    """ % (K1_S0, K1_S0))
    for sl in range(1, 4):
        a("v_add_u32 v%d, %d, v28" % (28 + sl, sl * K1_SLOT))
        a("v_add_u32 v%d, %d, v48" % (48 + sl, sl * K1_SLOT))
    for r in list(range(32, 36)) + list(range(52, 56)):
        a("v_mov_b32 v%d, 0" % r)
    a("s_waitcnt lgkmcnt(0)")
    if layer == 0:
        srd(a, 4, 20, 21, 0, 2 * MB)
    else:
        srd(a, 4, 24, 25, X2_OFF, 2 * MB)
    srd(a, 8, 22, 23, 0, 512 * 3072)
    srd(a, 16, 24, 25, ST_OFF[layer], 49152)

    def issue(c):
        sl = (c & 3) * K1_SLOT
        a("s_mov_b32 s34, %d" % (128 * c))
        for i in range(3):
            a("s_add_u32 m0, s52, %d" % (sl + 1024 * i))
            a("s_nop 0")
            a("buffer_load_dwordx4 v%d, s[4:7], s34 offen lds" % (2 + i))
        for i in range(6):
            a("s_add_u32 s34, s%d, %d" % (46 + i, c * 64 * 3072))
            a("s_add_u32 m0, s53, %d" % (sl + 1024 * i))
            a("s_nop 0")
            a("buffer_load_dwordx4 v%d, s[8:11], s34 offen lds" % (5 + (i & 1)))

    a("""
    v_lshlrev_b32 v10, 4, v0
    s_lshl_b32 s34, s2, 6
    s_add_u32 s34, s34, 32640
    v_add_u32 v12, s34, v10
    s_lshl_b32 s34, s2, 7
    v_add_u32 v10, s34, v10
    v_cmp_gt_u32 vcc, 12, v0
    v_mov_b32 v11, 0x7ffffff0
    s_nop 0
    v_cndmask_b32 v12, v11, v12, vcc
    v_cmp_gt_u32 vcc, 8, v0
    s_nop 1
    v_cndmask_b32 v10, v12, v10, vcc
    buffer_store_dwordx4 v[32:35], v10, s[16:19], 0 offen
    """)
    for c in range(3):
        issue(c)
    for c in range(8):
        issued_hi = min(c + 2, 7)
        need = min(c + 1, 7)
        a("s_waitcnt vmcnt(%d)" % (9 * (issued_hi - need)))
        a("s_barrier")
        if c + 3 < 8:
            issue(c + 3)
        a("ds_read_b128 v[40:43], v%d" % (28 + (c & 3)))
        a("ds_read_b128 v[56:59], v%d" % (48 + (c & 3)))
        a("s_waitcnt lgkmcnt(0)")
        for op in stats_ops(40, 32, 36) + stats_ops(56, 52, 36):
            a(op)
    stats_fin(32, 44)
    stats_fin(52, 45)
    a("""
    s_waitcnt lgkmcnt(0)
    s_barrier
    s_endpgm
    """)
    a.label("L_%s_mm" % name)
    a("""
    v_and_b32 v10, 15, v1
    v_lshrrev_b32 v11, 4, v1
    v_bfe_u32 v12, v10, 1, 3
    v_xor_b32 v12, v12, v11
    v_lshlrev_b32 v12, 4, v12
    v_lshl_add_u32 v16, v10, 7, v12
    v_add_u32 v16, %d, v16
    v_xor_b32 v20, 64, v16
    """ % K1_S0)
    a("""
    v_bfe_u32 v10, v1, 2, 2
    v_lshl_add_u32 v12, v11, 3, v10
    v_lshlrev_b32 v12, 7, v12
    v_lshrrev_b32 v13, 1, v10
    v_and_b32 v14, 1, v11
    v_lshl_or_b32 v13, v14, 1, v13
    v_xor_b32 v13, s29, v13
    v_lshl_add_u32 v12, v13, 5, v12
    v_and_b32 v13, 3, v1
    v_lshl_add_u32 v24, v13, 3, v12
    v_add_u32 v24, %d, v24
    """ % (K1_S0 + K1_AW))
    a("""
    v_lshrrev_b32 v172, 3, v0
    v_and_b32 v11, 7, v0
    v_lshlrev_b32 v11, 4, v11
    v_lshl_add_u32 v28, v172, 7, v11
    v_add_u32 v28, %d, v28
    """ % K1_S0)
    for sl in range(1, 4):
        for b in (16, 20, 24, 28):
            a("v_add_u32 v%d, %d, v%d" % (b + sl, sl * K1_SLOT, b))
    for r in range(32, 36):
        a("v_mov_b32 v%d, 0" % r)
    for r in range(36, 40):
        a("v_mov_b32 v%d, 0x%x" % (r, ONES_BF))
    a("s_waitcnt lgkmcnt(0)")
    srd(a, 12, 24, 25, O_OFF, 2 * MB)
    AF = [40, 60]
    BF = [80, 92]
    ACC = 104
    QA, KA, VA, CS = ACC, ACC + 16, ACC + 36, ACC + 56

    def reads(c, sp):
        sl = c & 3
        st = sp
        o = []
        for seg in range(3):
            off = seg * 8192 + sp * 4096
            o.append("ds_read_b64_tr_b16 %s, v%d offset:%d" % (vr(BF[st] + 4 * seg, 2), 24 + sl, off))
            o.append("ds_read_b64_tr_b16 %s, v%d offset:%d" % (vr(BF[st] + 4 * seg + 2, 2), 24 + sl, off + 512))
        for t in (1, 2, 3, 4, 0):
            o.append("ds_read_b128 %s, v%d offset:%d" % (vr(AF[st] + 4 * t, 4), (16 if sp == 0 else 20) + sl, t * 2048))
        return o

    def mfmas(first, st, fill=()):
        A, B = AF[st], BF[st]
        mf = []
        for t in range(4):
            mf.append((QA + 4 * t, vr(B, 4), vr(A + 4 * (t + 1), 4)))
        for t in range(5):
            mf.append((KA + 4 * t, vr(B + 4, 4), vr(A + 4 * t, 4)))
        for t in range(5):
            mf.append((VA + 4 * t, vr(A + 4 * t, 4), vr(B + 8, 4)))
        mf.append((CS, vr(B, 4), "v[36:39]"))
        mf.append((CS + 4, vr(B + 4, 4), "v[36:39]"))
        mf.append((CS + 8, "v[36:39]", vr(B + 8, 4)))
        fi = 0
        for (acc, x, y) in mf:
            a("v_mfma_f32_16x16x32_bf16 %s, %s, %s, %s" % (vr(acc, 4), x, y, "0" if first else vr(acc, 4)))
            n = 0
            while fi < len(fill) and n < 2:
                n += 2 if fill[fi].startswith("ds_") else 1
                a(fill[fi]); fi += 1
        while fi < len(fill):
            a(fill[fi]); fi += 1

    for c in range(8):
        a("s_barrier")
        if c == 0:
            for x in reads(0, 0):
                a(x)
        a("s_waitcnt lgkmcnt(0)")
        mfmas(c == 0, 0, reads(c, 1) + ["ds_read_b128 v[176:179], v%d" % (28 + (c & 3))])
        a("s_waitcnt lgkmcnt(0)")
        mfmas(False, 1, (reads(c + 1, 0) if c < 7 else []) + stats_ops(176, 32, 180))
    stats_fin(32, 172)
    a("s_waitcnt lgkmcnt(0)")
    a("s_barrier")
    a("""
    v_and_b32 v10, 15, v1
    v_lshlrev_b32 v10, 2, v10
    v_lshrrev_b32 v11, 4, v1
    v_lshlrev_b32 v11, 4, v11
    """)
    for t in range(5):
        a("ds_read_b32 v%d, v10 offset:%d" % (40 + t, K1_MISC + 64 * t))
        a("ds_read_b32 v%d, v10 offset:%d" % (45 + t, K1_MISC + 512 + 64 * t))
    for t in range(5):
        a("ds_read_b128 %s, v11 offset:%d" % (vr(52 + 8 * t, 4), K1_MISC + 64 * t))
        a("ds_read_b128 %s, v11 offset:%d" % (vr(56 + 8 * t, 4), K1_MISC + 512 + 64 * t))
    a("""
    v_and_b32 v188, 15, v1
    v_lshrrev_b32 v189, 4, v1
    v_and_b32 v190, 1, v1
    v_lshl_add_u32 v189, v189, 2, v190
    v_cmp_eq_u32 s[44:45], 1, v190
    v_cmp_le_u32 s[46:47], v189, v188
    v_add_u32 v189, 2, v189
    v_cmp_le_u32 s[48:49], v189, v188
    v_lshlrev_b32 v190, 4, v190
    s_cmp_eq_u32 s27, 0
    s_cselect_b32 s35, 0x%x, 0
    v_mov_b32 v191, s35
    v_mov_b32 v193, 0
    v_cndmask_b32 v192, v191, v193, s[46:47]
    v_cndmask_b32 v191, v191, v193, s[48:49]
    s_mov_b32 s42, 0x%x
    """ % (f2u(-1e30), f2u(0.25 * LOG2E)))
    a("s_waitcnt lgkmcnt(0)")
    QF, KF, VF = 196, 204, 214

    def norm(acc, cs_regs, m_regs, i_regs, dst):
        for r in range(4):
            a("v_fma_f32 v%d, -v%d, v%d, v%d" % (acc + r, m_regs[r], cs_regs[r], acc + r))
        for r in range(4):
            a("v_mul_f32 v%d, v%d, v%d" % (acc + r, i_regs[r], acc + r))
        a("v_cvt_pk_bf16_f32 v%d, v%d, v%d" % (dst, acc, acc + 1))
        a("v_cvt_pk_bf16_f32 v%d, v%d, v%d" % (dst + 1, acc + 2, acc + 3))

    for t in range(4):
        norm(QA + 4 * t, [CS + r for r in range(4)], [41 + t] * 4, [46 + t] * 4, QF + 2 * t)
    for t in range(5):
        norm(KA + 4 * t, [CS + 4 + r for r in range(4)], [40 + t] * 4, [45 + t] * 4, KF + 2 * t)
    for t in range(5):
        norm(VA + 4 * t, [CS + 8] * 4, [52 + 8 * t + r for r in range(4)], [56 + 8 * t + r for r in range(4)], VF + 2 * t)
    a("s_nop 1")
    SS = 104
    for t in range(4):
        q = vr(QF + 2 * t, 2)
        a("v_mfma_f32_16x16x16_bf16 %s, %s, %s, 0" % (vr(SS + 8 * t, 4), vr(KF + 2 * t, 2), q))
        a("v_mfma_f32_16x16x16_bf16 %s, %s, %s, 0" % (vr(SS + 8 * t + 4, 4), vr(KF + 2 * t + 2, 2), q))
    a("s_nop 7")
    E = 140
    for u in range(4):
        Sp, Sc = SS + 8 * u, SS + 8 * u + 4
        a("v_cndmask_b32 v194, v%d, v%d, s[44:45]" % (Sc, Sc + 1))
        a("v_cndmask_b32 v195, v%d, v%d, s[44:45]" % (Sp, Sp + 1))
        a("v_cndmask_b32 v%d, v195, v194, s[46:47]" % (E + 2 * u))
        a("v_cndmask_b32 v194, v%d, v%d, s[44:45]" % (Sc + 2, Sc + 3))
        a("v_cndmask_b32 v195, v%d, v%d, s[44:45]" % (Sp + 2, Sp + 3))
        a("v_cndmask_b32 v%d, v195, v194, s[48:49]" % (E + 1 + 2 * u))
    for u in range(4):
        a("v_cvt_pk_bf16_f32 v194, v%d, v%d" % (E + 2 * u, E + 1 + 2 * u))
        a("v_lshlrev_b32 v%d, 16, v194" % (E + 2 * u))
        a("v_and_b32 v%d, 0xffff0000, v194" % (E + 1 + 2 * u))
        b0, b1 = (192, 191) if u == 0 else (193, 193)
        a("v_fma_f32 v%d, v%d, s42, v%d" % (E + 2 * u, E + 2 * u, b0))
        a("v_fma_f32 v%d, v%d, s42, v%d" % (E + 1 + 2 * u, E + 1 + 2 * u, b1))
        a("v_max_f32 v%d, v%d, v%d" % (148 + u, E + 2 * u, E + 1 + 2 * u))
    bfly(a, "v_max_f32", [148, 149, 150, 151], [152, 153, 154, 155])
    for u in range(4):
        a("v_sub_f32 v%d, v%d, v%d" % (E + 2 * u, E + 2 * u, 148 + u))
        a("v_sub_f32 v%d, v%d, v%d" % (E + 1 + 2 * u, E + 1 + 2 * u, 148 + u))
        a("v_exp_f32 v%d, v%d" % (E + 2 * u, E + 2 * u))
        a("v_exp_f32 v%d, v%d" % (E + 1 + 2 * u, E + 1 + 2 * u))
    a("s_nop 0")
    for u in range(4):
        a("v_add_f32 v%d, v%d, v%d" % (148 + u, E + 2 * u, E + 1 + 2 * u))
    bfly(a, "v_add_f32", [148, 149, 150, 151], [152, 153, 154, 155])
    for u in range(4):
        a("v_rcp_f32 v%d, v%d" % (148 + u, 148 + u))
    a("s_nop 0")
    for u in range(4):
        a("v_mul_f32 v%d, v%d, v%d" % (E + 2 * u, E + 2 * u, 148 + u))
        a("v_mul_f32 v%d, v%d, v%d" % (E + 1 + 2 * u, E + 1 + 2 * u, 148 + u))
        a("v_cvt_pk_bf16_f32 v194, v%d, v%d" % (E + 2 * u, E + 1 + 2 * u))
        a("v_and_b32 v195, 0xffff, v194")
        a("v_lshlrev_b32 v195, v190, v195")
        a("v_lshrrev_b32 v194, 16, v194")
        a("v_lshlrev_b32 v194, v190, v194")
        P = 156 + 4 * u
        a("v_cndmask_b32 v%d, v195, v193, s[46:47]" % (P + 0))
        a("v_cndmask_b32 v%d, v194, v193, s[48:49]" % (P + 1))
        a("v_cndmask_b32 v%d, v193, v195, s[46:47]" % (P + 2))
        a("v_cndmask_b32 v%d, v193, v194, s[48:49]" % (P + 3))
    a("s_nop 1")
    for u in range(4):
        a("v_mfma_f32_16x16x32_bf16 %s, %s, %s, 0" % (vr(172 + 4 * u, 4), vr(VF + 2 * u, 4), vr(156 + 4 * u, 4)))
    a("""
    v_and_b32 v10, 15, v1
    v_lshlrev_b32 v10, 10, v10
    v_lshrrev_b32 v11, 4, v1
    v_lshl_add_u32 v10, v11, 3, v10
    s_lshl_b32 s34, s27, 16
    s_lshl_b32 s35, s29, 5
    s_add_u32 s34, s34, s35
    s_add_u32 s34, s34, s32
    v_add_u32 v10, s34, v10
    s_nop 2
    """)
    for u in range(4):
        a("v_cvt_pk_bf16_f32 v%d, v%d, v%d" % (40 + 2 * u, 172 + 4 * u, 173 + 4 * u))
        a("v_cvt_pk_bf16_f32 v%d, v%d, v%d" % (41 + 2 * u, 174 + 4 * u, 175 + 4 * u))
        a("s_mov_b32 s34, %d" % (16384 * u))
        a("buffer_store_dwordx2 %s, v10, s[12:15], s34 offen" % vr(40 + 2 * u, 2))
    a.label("L_%s_end" % name)
    a("s_endpgm")
    return name, a.text() + kdesc(name, 224, 0)


K2_CH = 16384
PREFETCH = True
DRY = False
K2_LDS2 = 8 * K2_CH


def gen_k2(layer):
    a = Asm()
    name = "k2l%d_kernel" % layer
    khead(a, name)
    a("s_cmp_ge_u32 s2, 256")
    a("s_cbranch_scc1 L_%s_end" % name)
    a("s_load_dwordx2 s[20:21], s[0:1], 0")
    a("s_load_dwordx2 s[22:23], s[0:1], 16")
    a("s_load_dwordx2 s[24:25], s[0:1], 80")
    a("s_load_dwordx2 s[36:37], s[0:1], 32")
    a("""
    s_and_b32 s3, s2, 7
    s_lshr_b32 s26, s2, 3
    s_and_b32 s27, s3, 3
    s_lshl_b32 s27, s27, 3
    s_and_b32 s30, s26, 7
    s_add_u32 s27, s27, s30
    s_lshr_b32 s28, s3, 2
    s_lshl_b32 s28, s28, 2
    s_lshr_b32 s30, s26, 3
    s_add_u32 s28, s28, s30
    v_lshrrev_b32 v1, 6, v0
    s_nop 0
    v_readfirstlane_b32 s29, v1
    v_and_b32 v1, 63, v0
    s_cmp_lt_u32 s29, 4
    s_cbranch_scc1 L_%s_mm
    """ % name)
    a("s_sub_u32 s29, s29, 4")
    a("""
    v_lshrrev_b32 v10, 3, v1
    v_and_b32 v11, 7, v1
    s_lshl_b32 s30, s27, 6
    s_lshl_b32 s31, s29, 4
    s_add_u32 s30, s30, s31
    v_add_u32 v12, s30, v10
    v_lshlrev_b32 v12, 10, v12
    v_lshrrev_b32 v13, 1, v10
    v_xor_b32 v13, v13, v11
    v_lshl_add_u32 v2, v13, 4, v12
    v_xor_b32 v13, 4, v13
    v_add_u32 v12, 8192, v12
    v_lshl_add_u32 v3, v13, 4, v12
    v_add_u32 v12, s31, v10
    v_lshlrev_b32 v12, 10, v12
    s_lshl_b32 s32, s28, 7
    v_add_u32 v12, s32, v12
    v_bfe_u32 v13, v10, 1, 1
    v_lshlrev_b32 v13, 1, v13
    v_xor_b32 v13, v13, v11
    v_lshl_add_u32 v4, v13, 4, v12
    v_xor_b32 v13, 4, v13
    v_add_u32 v12, 8192, v12
    v_lshl_add_u32 v5, v13, 4, v12
    s_lshl_b32 s52, s29, 11
    """)
    a("s_waitcnt lgkmcnt(0)")
    srd(a, 4, 24, 25, O_OFF, 2 * MB)
    srd(a, 8, 22, 23, 0, 512 * 1024)
    for c in range(8):
        a("s_mov_b32 s34, %d" % (128 * c))
        a("s_mov_b32 s35, %d" % (65536 * c))
        for i in range(2):
            a("s_add_u32 m0, s52, %d" % (c * K2_CH + 1024 * i))
            a("s_nop 0")
            a("buffer_load_dwordx4 v%d, s[4:7], s34 offen lds" % (2 + i))
        for i in range(2):
            a("s_add_u32 m0, s52, %d" % (c * K2_CH + 8192 + 1024 * i))
            a("s_nop 0")
            a("buffer_load_dwordx4 v%d, s[8:11], s35 offen lds" % (4 + i))
    npf = 0
    if layer == 0 and PREFETCH:
        a("s_load_dwordx4 s[56:59], s[0:1], 40")
        a("s_load_dwordx2 s[60:61], s[0:1], 56")
        a("""
        s_lshr_b32 s34, s2, 3
        s_and_b32 s34, s34, 3
        s_lshl_b32 s34, s34, 3
        s_add_u32 s34, s34, s3
        s_lshr_b32 s35, s2, 5
        s_lshl_b32 s35, s35, 2
        s_add_u32 s35, s35, s29
        v_lshrrev_b32 v10, 3, v1
        s_lshl_b32 s38, s35, 4
        v_add_u32 v10, s38, v10
        v_mul_u32_u24 v10, 3584, v10
        v_and_b32 v11, 7, v1
        v_lshl_add_u32 v10, v11, 4, v10
        s_lshl_b32 s38, s34, 7
        v_add_u32 v10, s38, v10
        s_lshl_b32 s38, s34, 16
        s_lshl_b32 s39, s35, 11
        s_add_u32 s38, s38, s39
        v_lshlrev_b32 v11, 4, v1
        v_add_u32 v11, s38, v11
        s_waitcnt lgkmcnt(0)
        """)
        srd(a, 40, 56, 57, 0, 512 * 3584)
        srd(a, 44, 58, 59, 0, 512 * 3584)
        srd(a, 48, 60, 61, 0, 1792 * 1024)
        a("s_mov_b32 s38, %d" % (8 * 3584))
        a("buffer_load_dwordx4 v[12:15], v10, s[40:43], 0 offen")
        a("buffer_load_dwordx4 v[16:19], v10, s[40:43], s38 offen")
        a("buffer_load_dwordx4 v[20:23], v10, s[44:47], 0 offen")
        a("buffer_load_dwordx4 v[24:27], v10, s[44:47], s38 offen")
        a("buffer_load_dwordx4 v[28:31], v11, s[48:51], 0 offen")
        a("buffer_load_dwordx4 v[32:35], v11, s[48:51], 0 offen offset:1024")
        npf = 6
    for j in range(4):
        a("s_waitcnt vmcnt(%d)" % (8 * (3 - j) + npf))
        a("s_barrier")
    a("s_endpgm")
    a.label("L_%s_mm" % name)
    a("""
    s_lshr_b32 s30, s29, 1
    s_and_b32 s31, s29, 1
    v_and_b32 v10, 15, v1
    v_lshrrev_b32 v11, 4, v1
    v_bfe_u32 v12, v10, 1, 3
    v_xor_b32 v12, v12, v11
    v_lshlrev_b32 v12, 4, v12
    v_lshl_add_u32 v16, v10, 7, v12
    s_lshl_b32 s34, s30, 12
    v_add_u32 v16, s34, v16
    v_xor_b32 v17, 64, v16
    v_add_u32 v18, 65536, v16
    v_add_u32 v19, 65536, v17
    v_bfe_u32 v10, v1, 2, 2
    v_lshl_add_u32 v12, v11, 3, v10
    v_lshlrev_b32 v12, 7, v12
    v_lshrrev_b32 v13, 1, v10
    v_and_b32 v14, 1, v11
    v_lshl_or_b32 v13, v14, 1, v13
    s_lshl_b32 s34, s31, 1
    v_xor_b32 v13, s34, v13
    v_and_b32 v14, 3, v1
    v_lshl_add_u32 v12, v14, 3, v12
    v_add_u32 v12, 8192, v12
    v_lshl_add_u32 v20, v13, 5, v12
    v_xor_b32 v13, 1, v13
    v_lshl_add_u32 v21, v13, 5, v12
    v_add_u32 v22, 65536, v20
    v_add_u32 v23, 65536, v21
    """)
    a("""
    s_lshl_b32 s34, s27, 6
    s_lshl_b32 s35, s30, 5
    s_add_u32 s34, s34, s35
    v_and_b32 v2, 15, v1
    v_add_u32 v2, s34, v2
    v_lshlrev_b32 v2, 10, v2
    v_lshrrev_b32 v10, 4, v1
    v_lshlrev_b32 v10, 3, v10
    s_lshl_b32 s35, s28, 7
    s_lshl_b32 s38, s31, 6
    s_add_u32 s35, s35, s38
    v_add_u32 v13, s35, v10
    v_add_u32 v9, v2, v13
    v_add_u32 v12, 0x4000, v9
    """)
    a("s_waitcnt lgkmcnt(0)")
    if layer == 0:
        srd(a, 12, 20, 21, 0, 2 * MB)
    else:
        srd(a, 12, 24, 25, X2_OFF, 2 * MB)
    srd(a, 16, 24, 25, X1_OFF, 2 * MB)
    srd(a, 40, 24, 25, ST_OFF[layer], 32768)
    srd(a, 44, 36, 37, 0, 1024)
    for ti, vo in enumerate((9, 12)):
        for ct in range(2):
            a("buffer_load_dwordx2 %s, v%d, s[12:15], 0 offen offset:%d" % (vr(48 + 4 * ti + 2 * ct, 2), vo, 32 * ct))
    for ct in range(2):
        a("buffer_load_dwordx2 %s, v13, s[44:47], 0 offen offset:%d" % (vr(56 + 2 * ct, 2), 32 * ct))
    FR = [96, 112]

    def reads(s):
        c, sp = s >> 1, s & 1
        hi = 2 if c >= 4 else 0
        co = (c & 3) * K2_CH
        F = FR[s & 1]
        o = []
        for ct in range(2):
            o.append("ds_read_b64_tr_b16 %s, v%d offset:%d" % (vr(F + 8 + 4 * ct, 2), 20 + ct + hi, co + sp * 4096))
            o.append("ds_read_b64_tr_b16 %s, v%d offset:%d" % (vr(F + 10 + 4 * ct, 2), 20 + ct + hi, co + sp * 4096 + 512))
        for t in range(2):
            o.append("ds_read_b128 %s, v%d offset:%d" % (vr(F + 4 * t, 4), 16 + sp + hi, co + t * 2048))
        return o

    for s in range(16):
        if (s & 3) == 0:
            a("s_barrier")
            for x in reads(s):
                a(x)
        a("s_waitcnt lgkmcnt(0)")
        fill = reads(s + 1) if (s & 3) != 3 else []
        F = FR[s & 1]
        fi = 0
        for ti in range(2):
            for ct in range(2):
                acc = 32 + 4 * (2 * ti + ct)
                a("v_mfma_f32_16x16x32_bf16 %s, %s, %s, %s" % (vr(acc, 4), vr(F + 8 + 4 * ct, 4), vr(F + 4 * ti, 4), "0" if s == 0 else vr(acc, 4)))
                for _ in range(2):
                    if fi < len(fill):
                        a(fill[fi]); fi += 1
    a("s_waitcnt vmcnt(0)")
    a("s_nop 7")
    for ct in range(2):
        for j in range(2):
            a("v_lshlrev_b32 v%d, 16, v%d" % (64 + 4 * ct + 2 * j, 56 + 2 * ct + j))
            a("v_and_b32 v%d, 0xffff0000, v%d" % (65 + 4 * ct + 2 * j, 56 + 2 * ct + j))
    for ti in range(2):
        S, Q, D = 80 + 4 * ti, 81 + 4 * ti, 82 + 4 * ti
        for ct in range(2):
            acc = 32 + 4 * (2 * ti + ct)
            xr = 48 + 4 * ti + 2 * ct
            for j in range(2):
                a("v_cvt_pk_bf16_f32 v72, v%d, v%d" % (acc + 2 * j, acc + 2 * j + 1))
                a("v_lshlrev_b32 v73, 16, v72")
                a("v_and_b32 v74, 0xffff0000, v72")
                a("v_lshlrev_b32 v75, 16, v%d" % (xr + j))
                a("v_and_b32 v76, 0xffff0000, v%d" % (xr + j))
                a("v_add_f32 v73, v73, v75")
                a("v_add_f32 v74, v74, v76")
                a("v_cvt_pk_bf16_f32 v%d, v73, v74" % (xr + j))
                a("v_lshlrev_b32 v73, 16, v%d" % (xr + j))
                a("v_and_b32 v74, 0xffff0000, v%d" % (xr + j))
                w0, w1 = 64 + 4 * ct + 2 * j, 65 + 4 * ct + 2 * j
                if ct == 0 and j == 0:
                    a("v_add_f32 v%d, v73, v74" % S)
                    a("v_mul_f32 v%d, v73, v73" % Q)
                    a("v_mul_f32 v%d, v73, v%d" % (D, w0))
                else:
                    a("v_add_f32 v%d, v%d, v73" % (S, S))
                    a("v_add_f32 v%d, v%d, v74" % (S, S))
                    a("v_fma_f32 v%d, v73, v73, v%d" % (Q, Q))
                    a("v_fma_f32 v%d, v73, v%d, v%d" % (D, w0, D))
                a("v_fma_f32 v%d, v74, v74, v%d" % (Q, Q))
                a("v_fma_f32 v%d, v74, v%d, v%d" % (D, w1, D))
            a("buffer_store_dwordx2 %s, v%d, s[16:19], 0 offen offset:%d" % (vr(xr, 2), (9, 12)[ti], 32 * ct))
    bfly(a, "v_add_f32", [80, 81, 82, 84, 85, 86], [88, 89, 90, 91, 92, 93])
    a("""
    v_lshrrev_b32 v88, 4, v1
    v_cmp_eq_u32 s[48:49], 1, v88
    v_cmp_eq_u32 s[50:51], 2, v88
    v_cmp_eq_u32 s[52:53], 3, v88
    v_lshrrev_b32 v89, 6, v2
    v_lshl_add_u32 v89, v88, 2, v89
    v_add_u32 v90, 256, v89
    """)
    for ti in range(2):
        S = 80 + 4 * ti
        a("v_cndmask_b32 v%d, v%d, v%d, s[48:49]" % (S, S, S + 1))
        a("v_cndmask_b32 v%d, v%d, v%d, s[50:51]" % (S, S, S + 2))
    a("s_andn2_b64 exec, exec, s[52:53]")
    for ti in range(2):
        S = 80 + 4 * ti
        a("buffer_atomic_add_f32 v%d, v%d, s[40:43], 0 offen" % (S, 89 + ti))
    a.label("L_%s_end" % name)
    a("s_endpgm")
    return name, a.text() + kdesc(name, 128, 0)


SLAB_OFF = [8 * MB, 8 * MB + 524288]
K3_G = 0
K3_U = 65536
K3_MS2 = 131072
K3_XS2 = K3_MS2 + 16384
K3_H = K3_XS2 + 8 * 1040 + 64
K3_HP = 144
K3_CAND2 = K3_H + 16 * K3_HP
K3_SEL2 = K3_CAND2 + 128
K3_FLG = K3_SEL2 + 128
K3_LDS2 = K3_FLG + 64
K3_WDP = 1056


def norm_pair(a, src, vm, vinv, mode, T=50):
    a("v_lshlrev_b32 v%d, 16, v%d" % (T, src))
    a("v_and_b32 v%d, 0xffff0000, v%d" % (T + 1, src))
    a("v_sub_f32 v%d, v%d, v%d" % (T + 2, T, vm))
    a("v_sub_f32 v%d, v%d, v%d" % (T + 3, T + 1, vm))
    a("v_cvt_pk_bf16_f32 v%d, v%d, v%d" % (T + 4, T + 2, T + 3))
    a("v_lshlrev_b32 v%d, 16, v%d" % (T + 2, T + 4))
    a("v_and_b32 v%d, 0xffff0000, v%d" % (T + 3, T + 4))
    a("v_mul_f32 v%d, v%d, v%d" % (T + 2, T + 2, vinv))
    a("v_mul_f32 v%d, v%d, v%d" % (T + 3, T + 3, vinv))
    if mode == "xn":
        a("v_cvt_pk_bf16_f32 v%d, v%d, v%d" % (src, T + 2, T + 3))
    else:
        a("v_cvt_pk_bf16_f32 v%d, v%d, v%d" % (T + 4, T + 2, T + 3))
        a("v_lshlrev_b32 v%d, 16, v%d" % (T + 2, T + 4))
        a("v_and_b32 v%d, 0xffff0000, v%d" % (T + 3, T + 4))
        a("v_add_f32 v%d, v%d, v%d" % (T + 2, T + 2, T))
        a("v_add_f32 v%d, v%d, v%d" % (T + 3, T + 3, T + 1))
        a("v_cvt_pk_bf16_f32 v%d, v%d, v%d" % (src, T + 2, T + 3))


def gen_k3(layer):
    a = Asm()
    name = "k3l%d_kernel" % layer
    khead(a, name)
    a("s_cmp_ge_u32 s2, 256")
    a("s_cbranch_scc1 L_%s_end" % name)
    a("s_load_dwordx4 s[20:23], s[0:1], 32")
    a("s_load_dwordx4 s[28:31], s[0:1], 48")
    a("s_load_dwordx2 s[24:25], s[0:1], 80")
    a("s_load_dwordx2 s[26:27], s[0:1], 64")
    a("s_load_dwordx2 s[64:65], s[0:1], 72")
    a("""
    v_lshrrev_b32 v1, 6, v0
    s_nop 0
    v_readfirstlane_b32 s33, v1
    v_and_b32 v1, 63, v0
    s_lshl_b32 s32, s2, 7
    s_mov_b32 s56, 0x%x
    s_mov_b32 s57, 0x%x
    s_mov_b32 s58, 0x%x
    s_cmp_lt_u32 s33, 4
    s_cbranch_scc1 L_%s_mm
    """ % (f2u(1.0 / 512), f2u(1e-5), ONES_BF, name))
    sc = {"r512": 56, "eps": 57}
    a("s_sub_u32 s33, s33, 4")
    a("v_and_b32 v0, 255, v0")
    a("s_waitcnt lgkmcnt(0)")
    srd(a, 4, 24, 25, ST_OFF[layer], 32768)
    srd(a, 8, 24, 25, X1_OFF, 2 * MB)
    if layer == 0:
        srd(a, 12, 24, 25, X2_OFF, 2 * MB)
    else:
        srd(a, 12, 26, 27, 0, 2 * MB)
    srd(a, 48, 64, 65, 0, 256)
    a("""
    s_lshl_b32 s34, s2, 13
    v_lshlrev_b32 v4, 4, v0
    v_add_u32 v4, s34, v4
    v_add_u32 v5, 4096, v4
    s_lshl_b32 s34, s2, 3
    s_add_u32 s34, s34, s33
    s_lshl_b32 s34, s34, 4
    v_mov_b32 v6, s34
    buffer_load_dwordx4 v[8:11], v6, s[4:7], 0 offen
    buffer_load_dwordx4 v[12:15], v6, s[4:7], 0 offen offset:64
    buffer_load_dwordx4 v[100:103], v4, s[8:11], 0 offen
    buffer_load_dwordx4 v[104:107], v5, s[8:11], 0 offen
    """)
    a("s_cmp_ge_u32 s2, 28")
    a("s_cbranch_scc1 L_%s_x2only" % name)
    a("s_barrier")
    srd(a, 36, 22, 23, 0, 512 * 3584)
    srd(a, 40, 28, 29, 0, 512 * 3584)
    srd(a, 44, 30, 31, 0, 1792 * 1024)
    a("""
    v_lshrrev_b32 v20, 3, v1
    v_and_b32 v21, 7, v1
    s_lshl_b32 s35, s33, 7
    v_add_u32 v22, s35, v20
    v_mul_u32_u24 v22, 3584, v22
    v_add_u32 v22, s32, v22
    v_bfe_u32 v23, v20, 1, 1
    v_lshlrev_b32 v23, 1, v23
    v_xor_b32 v23, v23, v21
    v_lshl_add_u32 v2, v23, 4, v22
    v_xor_b32 v23, 4, v23
    v_lshl_add_u32 v3, v23, 4, v22
    s_lshl_b32 s52, s33, 14
    """)
    for i in range(16):
        a("s_mov_b32 s34, %d" % (8 * i * 3584))
        a("s_add_u32 m0, s52, %d" % (K3_G + 1024 * i))
        a("s_nop 0")
        a("buffer_load_dwordx4 v%d, s[36:39], s34 offen lds" % (2 + (i & 1)))
        a("s_add_u32 m0, s52, %d" % (K3_U + 1024 * i))
        a("s_nop 0")
        a("buffer_load_dwordx4 v%d, s[40:43], s34 offen lds" % (2 + (i & 1)))
    a("""
    s_lshl_b32 s34, s2, 16
    s_lshl_b32 s35, s33, 14
    s_add_u32 s34, s34, s35
    v_lshlrev_b32 v7, 4, v1
    v_add_u32 v7, s34, v7
    """)
    for i in range(16):
        a("s_mov_b32 s34, %d" % (1024 * i))
        a("buffer_load_dwordx4 %s, v7, s[44:47], s34 offen" % vr(112 + 4 * i, 4))
    a("s_waitcnt vmcnt(48)")
    a("s_branch L_%s_x2" % name)
    a.label("L_%s_x2only" % name)
    a("s_waitcnt vmcnt(0)")
    a.label("L_%s_x2" % name)
    ln_finalize(a, 8, 9, 40, 41, 42, sc)
    ln_finalize(a, 12, 13, 43, 44, 45, sc)
    for r in range(4):
        norm_pair(a, 100 + r, 40, 41, "x2")
    a("buffer_store_dwordx4 v[100:103], v4, s[12:15], 0 offen")
    for r in range(4):
        norm_pair(a, 104 + r, 43, 44, "x2")
    a("buffer_store_dwordx4 v[104:107], v5, s[12:15], 0 offen")
    a("s_cmp_ge_u32 s2, 28")
    a("s_cbranch_scc1 L_%s_end" % name)
    a("s_waitcnt vmcnt(18)")
    a("s_barrier")
    a("""
    s_mul_i32 s34, s33, %d
    v_lshlrev_b32 v7, 4, v1
    v_add_u32 v7, s34, v7
    """ % (16 * K3_WDP))
    a("s_waitcnt vmcnt(2)")
    a("s_barrier")
    for i in range(16):
        pos = (i & 3) | ((i & 4) << 1) | ((i & 8) >> 1)
        a("ds_write_b128 v7, %s offset:%d" % (vr(112 + 4 * i, 4), K3_G + pos * K3_WDP))
    a("s_waitcnt lgkmcnt(0)")
    a("s_barrier")
    a("s_endpgm")
    a.label("L_%s_mm" % name)
    a("s_cmp_ge_u32 s2, 28")
    a("s_cbranch_scc1 L_%s_end" % name)
    a("""
    s_lshl_b32 s34, s33, 2
    v_mov_b32 v2, s34
    v_add_u32 v2, %d, v2
    v_mov_b32 v3, 0
    ds_write_b32 v2, v3
    """ % K3_FLG)
    a("s_setprio 3")
    a("s_waitcnt lgkmcnt(0)")
    a("s_barrier")
    srd(a, 4, 24, 25, ST_OFF[layer], 32768)
    srd(a, 8, 24, 25, X1_OFF, 2 * MB)
    srd(a, 16, 20, 21, 0, 1024)
    srd(a, 44, 24, 25, SEL_OFF[layer], 64)
    srd(a, 48, 24, 25, XS_OFF[layer], 8192)
    srd(a, 52, 24, 25, SLAB_OFF[layer], 28 * 16384)
    a("v_lshlrev_b32 v2, 7, v0")
    for i in range(8):
        a("buffer_load_dwordx4 %s, v2, s[4:7], 0 offen offset:%d" % (vr(64 + 4 * i, 4), 16 * i))
    a("v_lshlrev_b32 v3, 4, v1")
    a("buffer_load_dwordx4 v[96:99], v3, s[16:19], 0 offen")
    if DRY:
        a("s_mov_b32 s99, 0")
        a("s_mov_b64 exec, 0")
        a("s_branch L_%s_r1" % name)
        a.label("L_%s_r0" % name)
    a("s_waitcnt vmcnt(0)")
    a.label("L_%s_r1" % name)
    a("v_mov_b32 v8, 0")
    for r in range(4):
        a("v_dot2_f32_bf16 v8, v%d, s58, v8" % (96 + r))
    a("s_nop 2")
    for sh in (1, 2, 4, 8):
        a("v_add_f32_dpp v8, v8, v8 row_ror:%d row_mask:0xf bank_mask:0xf" % sh)
        a("s_nop 1")
    bfly(a, "v_add_f32", [8], [9])
    a("v_lshlrev_b32 v10, 6, v0")
    a("v_lshlrev_b32 v11, 3, v0")
    a("v_sub_u32 v11, 2047, v11")
    a("v_add_u32 v10, %d, v10" % K3_MS2)
    a("s_mov_b32 s59, 0xffff0000")
    a("s_mov_b32 s34, 0")
    a("s_mov_b32 s35, 0")
    a.label("L_%s_rl" % name)
    a("""
    s_set_gpr_idx_on s34, gpr_idx(SRC0)
    s_nop 0
    v_mov_b32 v2, v64
    v_mov_b32 v3, v65
    v_mov_b32 v4, v66
    s_set_gpr_idx_off
    """)
    ln_finalize(a, 2, 3, 12, 13, 14, sc)
    a("""
    v_fma_f32 v15, -v12, v8, v4
    v_mul_f32 v15, v15, v13
    v_cvt_pk_bf16_f32 v15, v15, v15
    v_lshlrev_b32 v15, 16, v15
    v_ashrrev_i32 v16, 31, v15
    v_or_b32 v16, 0x80000000, v16
    v_xor_b32 v15, v15, v16
    v_and_or_b32 v15, v15, s59, v11
    ds_write_b64 v10, v[12:13]
    v_add_u32 v10, 8, v10
    v_subrev_u32 v11, 1, v11
    s_set_gpr_idx_on s35, gpr_idx(DST)
    s_nop 0
    v_mov_b32 v20, v15
    s_set_gpr_idx_off
    s_add_u32 s34, s34, 4
    s_add_u32 s35, s35, 1
    s_cmp_lt_u32 s35, 8
    s_cbranch_scc1 L_%s_rl
    """ % name)
    net = [(0, 1), (2, 3), (4, 5), (6, 7), (0, 2), (1, 3), (4, 6), (5, 7), (1, 2), (5, 6),
           (0, 4), (1, 5), (2, 6), (3, 7), (2, 4), (3, 5), (1, 2), (3, 4), (5, 6)]
    for (i, j) in net:
        a("v_max_u32 v12, v%d, v%d" % (20 + i, 20 + j))
        a("v_min_u32 v%d, v%d, v%d" % (20 + j, 20 + i, 20 + j))
        a("v_mov_b32 v%d, v12" % (20 + i))
    a("v_mov_b32 v30, 0")
    a("v_mov_b32 v31, 0")
    a("s_mov_b32 s34, 0")
    a.label("L_%s_rd" % name)
    a("v_mov_b32 v12, v20")
    a("s_nop 1")
    for sh in (1, 2, 4, 8):
        a("v_max_u32_dpp v12, v12, v12 row_ror:%d row_mask:0xf bank_mask:0xf" % sh)
        a("s_nop 1")
    bfly(a, "v_max_u32", [12], [13])
    a("v_cmp_eq_u32 vcc, v12, v20")
    a("v_cmp_eq_u32 s[60:61], s34, v1")
    a("s_add_u32 s34, s34, 1")
    for i in range(7):
        a("v_cndmask_b32 v%d, v%d, v%d, vcc" % (20 + i, 20 + i, 21 + i))
    a("v_cndmask_b32 v27, v27, v31, vcc")
    a("v_cndmask_b32 v30, v30, v12, s[60:61]")
    a("s_cmp_lt_u32 s34, 8")
    a("s_cbranch_scc1 L_%s_rd" % name)
    if DRY:
        a("s_cmp_eq_u32 s99, 0")
        a("s_cbranch_scc0 L_%s_r2" % name)
        a("s_mov_b32 s99, 1")
        a("s_mov_b64 exec, -1")
        a("s_branch L_%s_r0" % name)
        a.label("L_%s_r2" % name)
    a("""
    s_lshl_b32 s34, s33, 5
    v_lshlrev_b32 v12, 2, v1
    v_add_u32 v12, s34, v12
    v_add_u32 v12, %d, v12
    v_cmp_gt_u32 vcc, 8, v1
    s_and_saveexec_b64 s[62:63], vcc
    ds_write_b32 v12, v30
    s_mov_b64 exec, s[62:63]
    s_lshl_b32 s34, s33, 2
    v_mov_b32 v12, s34
    v_add_u32 v12, %d, v12
    v_mov_b32 v13, 1
    ds_write_b32 v12, v13
    v_mov_b32 v12, %d
    """ % (K3_CAND2, K3_FLG, K3_FLG))
    a.label("L_%s_poll" % name)
    a("""
    ds_read_b128 v[32:35], v12
    s_waitcnt lgkmcnt(0)
    v_and_b32 v32, v32, v33
    v_and_b32 v34, v34, v35
    v_and_b32 v32, v32, v34
    v_cmp_eq_u32 vcc, 1, v32
    s_cbranch_vccz L_%s_poll
    """ % name)
    a("v_and_b32 v12, 31, v1")
    a("v_lshlrev_b32 v12, 2, v12")
    a("v_add_u32 v12, %d, v12" % K3_CAND2)
    a("ds_read_b32 v30, v12")
    a("v_mov_b32 v13, %d" % K3_CAND2)
    for i in range(8):
        a("ds_read_b128 %s, v13 offset:%d" % (vr(32 + 4 * i, 4), 16 * i))
    a("v_mov_b32 v14, 0")
    a("s_waitcnt lgkmcnt(0)")
    for i in range(32):
        a("v_cmp_gt_u32 vcc, v%d, v30" % (32 + i))
        a("v_addc_co_u32 v14, vcc, 0, v14, vcc")
    a("""
    v_cmp_gt_u32 vcc, 8, v14
    v_cmp_gt_u32 s[60:61], 32, v1
    s_and_b64 vcc, vcc, s[60:61]
    v_lshlrev_b32 v14, 2, v14
    v_add_u32 v14, %d, v14
    s_and_saveexec_b64 s[62:63], vcc
    ds_write_b32 v14, v30
    s_mov_b64 exec, s[62:63]
    s_waitcnt lgkmcnt(0)
    v_lshrrev_b32 v12, 5, v0
    v_lshlrev_b32 v12, 2, v12
    v_add_u32 v12, %d, v12
    ds_read_b32 v31, v12
    s_waitcnt lgkmcnt(0)
    v_and_b32 v13, 0xffff, v31
    v_sub_u32 v13, 2047, v13
    v_lshlrev_b32 v14, 10, v13
    v_and_b32 v15, 31, v0
    v_lshl_add_u32 v14, v15, 5, v14
    buffer_load_dwordx4 v[32:35], v14, s[8:11], 0 offen
    buffer_load_dwordx4 v[36:39], v14, s[8:11], 0 offen offset:16
    v_lshlrev_b32 v16, 3, v13
    v_add_u32 v16, %d, v16
    ds_read_b64 v[40:41], v16
    """ % (K3_SEL2, K3_SEL2, K3_MS2))
    a("""
    v_lshrrev_b32 v12, 5, v0
    v_mul_u32_u24 v12, 1040, v12
    v_lshl_add_u32 v12, v15, 5, v12
    v_add_u32 v12, %d, v12
    v_lshrrev_b32 v11, 4, v1
    v_bfe_u32 v10, v1, 2, 2
    v_lshl_add_u32 v17, v11, 3, v10
    v_lshlrev_b32 v17, 7, v17
    v_lshrrev_b32 v18, 1, v10
    v_and_b32 v19, 1, v11
    v_lshl_or_b32 v18, v19, 1, v18
    v_xor_b32 v18, s33, v18
    v_lshl_add_u32 v17, v18, 5, v17
    v_and_b32 v18, 3, v1
    v_lshl_add_u32 v8, v18, 3, v17
    v_add_u32 v9, %d, v8
    v_and_b32 v17, 7, v1
    v_mul_u32_u24 v17, 1040, v17
    v_lshl_add_u32 v17, v11, 4, v17
    v_add_u32 v17, %d, v17
    """ % (K3_XS2, K3_U, K3_XS2))
    a("v_mov_b32 v121, v14")
    a("s_waitcnt vmcnt(0) lgkmcnt(0)")
    for r in range(8):
        norm_pair(a, 32 + r, 40, 41, "xn")
    a("ds_write_b128 v12, v[32:35]")
    a("ds_write_b128 v12, v[36:39] offset:16")
    a("""
    v_and_b32 v51, 0xffff0000, v31
    v_ashrrev_i32 v50, 31, v51
    v_not_b32 v50, v50
    v_or_b32 v50, 0x80000000, v50
    v_xor_b32 v51, v51, v50
    v_and_b32 v51, 0xffff0000, v51
    v_mul_f32 v52, 0x%x, v51
    v_exp_f32 v52, v52
    s_nop 0
    v_add_f32 v52, 1.0, v52
    v_rcp_f32 v52, v52
    s_nop 0
    v_cvt_pk_bf16_f32 v52, v52, v52
    v_lshlrev_b32 v52, 16, v52
    """ % f2u(-LOG2E))
    a("s_cmp_lg_u32 s2, 0")
    a("s_cbranch_scc1 L_%s_nopub" % name)
    a("""
    v_lshlrev_b32 v12, 5, v0
    buffer_store_dwordx4 v[32:35], v12, s[48:51], 0 offen
    buffer_store_dwordx4 v[36:39], v12, s[48:51], 0 offen offset:16
    v_lshrrev_b32 v12, 5, v0
    v_lshlrev_b32 v12, 2, v12
    v_and_b32 v15, 31, v0
    v_cmp_eq_u32 vcc, 0, v15
    v_mov_b32 v53, 0x7ffffff0
    s_nop 0
    v_cndmask_b32 v12, v53, v12, vcc
    buffer_store_dword v13, v12, s[44:47], 0 offen
    buffer_store_dword v52, v12, s[44:47], 0 offen offset:32
    """)
    a.label("L_%s_nopub" % name)
    a("s_waitcnt lgkmcnt(0)")
    a("s_barrier")
    FR = [64, 76]

    def rd(s):
        F = FR[s & 1]
        return ["ds_read_b64_tr_b16 %s, v8 offset:%d" % (vr(F, 2), 4096 * s),
                "ds_read_b64_tr_b16 %s, v8 offset:%d" % (vr(F + 2, 2), 4096 * s + 512),
                "ds_read_b64_tr_b16 %s, v9 offset:%d" % (vr(F + 4, 2), 4096 * s),
                "ds_read_b64_tr_b16 %s, v9 offset:%d" % (vr(F + 6, 2), 4096 * s + 512),
                "ds_read_b128 %s, v17 offset:%d" % (vr(F + 8, 4), 64 * s)]
    for x in rd(0):
        a(x)
    for r in range(96, 104):
        a("v_mov_b32 v%d, 0" % r)
    a("s_mov_b32 s34, 0")
    a.label("L_%s_gu" % name)
    for x in rd(1):
        a(x)
    a("s_waitcnt lgkmcnt(5)")
    a("v_mfma_f32_16x16x32_bf16 v[96:99], %s, %s, v[96:99]" % (vr(64, 4), vr(72, 4)))
    a("v_mfma_f32_16x16x32_bf16 v[100:103], %s, %s, v[100:103]" % (vr(68, 4), vr(72, 4)))
    for x in rd(2):
        a(x)
    a("s_waitcnt lgkmcnt(5)")
    a("v_mfma_f32_16x16x32_bf16 v[96:99], %s, %s, v[96:99]" % (vr(76, 4), vr(84, 4)))
    a("v_mfma_f32_16x16x32_bf16 v[100:103], %s, %s, v[100:103]" % (vr(80, 4), vr(84, 4)))
    a("""
    v_add_u32 v8, 8192, v8
    v_add_u32 v9, 8192, v9
    v_add_u32 v17, 128, v17
    s_add_u32 s34, s34, 1
    s_cmp_lt_u32 s34, 8
    s_cbranch_scc1 L_%s_gu
    s_waitcnt lgkmcnt(0)
    """ % name)
    a("s_mov_b32 s34, 0x%x" % f2u(-LOG2E))
    a("""
    v_and_b32 v10, 15, v1
    v_mul_u32_u24 v10, %d, v10
    v_lshrrev_b32 v11, 4, v1
    v_lshl_add_u32 v12, v11, 3, v10
    s_lshl_b32 s35, s33, 5
    v_add_u32 v12, s35, v12
    v_add_u32 v12, %d, v12
    v_lshl_add_u32 v13, v11, 4, v10
    v_add_u32 v13, %d, v13
    """ % (K3_HP, K3_H, K3_H))
    for r in range(4):
        rbf(a, 96 + r)
        rbf(a, 100 + r)
    for r in range(4):
        a("v_mul_f32 v%d, s34, v%d" % (104 + r, 96 + r))
        a("v_exp_f32 v%d, v%d" % (104 + r, 104 + r))
    a("s_nop 0")
    for r in range(4):
        a("v_add_f32 v%d, 1.0, v%d" % (104 + r, 104 + r))
        a("v_rcp_f32 v%d, v%d" % (104 + r, 104 + r))
    a("s_nop 0")
    for r in range(4):
        a("v_mul_f32 v%d, v%d, v%d" % (96 + r, 96 + r, 104 + r))
        rbf(a, 96 + r)
        a("v_mul_f32 v%d, v%d, v%d" % (96 + r, 96 + r, 100 + r))
    a("v_cvt_pk_bf16_f32 v96, v96, v97")
    a("v_cvt_pk_bf16_f32 v97, v98, v99")
    a("ds_write_b64 v12, v[96:97]")
    a("s_waitcnt lgkmcnt(0)")
    a("s_barrier")
    a("ds_read_b128 v[64:67], v13")
    a("ds_read_b128 v[68:71], v13 offset:64")
    a("""
    v_lshrrev_b32 v10, 5, v1
    v_lshlrev_b32 v8, 4, v10
    v_bfe_u32 v10, v1, 4, 1
    v_lshl_add_u32 v8, v10, 2, v8
    v_bfe_u32 v10, v1, 2, 2
    v_add_u32 v8, v8, v10
    v_mul_u32_u24 v8, %d, v8
    v_and_b32 v10, 3, v1
    v_lshl_add_u32 v8, v10, 3, v8
    s_lshl_b32 s35, s33, 8
    v_add_u32 v8, s35, v8
    v_and_b32 v10, 15, v1
    v_lshlrev_b32 v14, 11, v10
    v_lshrrev_b32 v11, 4, v1
    v_lshl_add_u32 v14, v11, 4, v14
    s_lshl_b32 s35, s33, 9
    s_lshl_b32 s36, s2, 14
    s_add_u32 s35, s35, s36
    v_add_u32 v14, s35, v14
    v_cmp_gt_u32 vcc, 8, v10
    v_mov_b32 v15, 0x7ffffff0
    s_nop 0
    v_cndmask_b32 v14, v15, v14, vcc
    """ % K3_WDP)
    a("s_barrier")
    for ct in range(8):
        for s in range(2):
            b = 128 + 8 * ct + 4 * s
            a("ds_read_b64_tr_b16 %s, v8 offset:%d" % (vr(b, 2), K3_G + 32 * s * K3_WDP + 32 * ct))
            a("ds_read_b64_tr_b16 %s, v8 offset:%d" % (vr(b + 2, 2), K3_G + (32 * s + 8) * K3_WDP + 32 * ct))
    a("s_waitcnt lgkmcnt(0)")
    for ct in range(8):
        b = 128 + 8 * ct
        a("v_mfma_f32_16x16x32_bf16 %s, %s, v[64:67], 0" % (vr(72 + 4 * ct, 4), vr(b, 4)))
        a("v_mfma_f32_16x16x32_bf16 %s, %s, v[68:71], %s" % (vr(72 + 4 * ct, 4), vr(b + 4, 4), vr(72 + 4 * ct, 4)))
    a("s_nop 7")
    for ct in range(8):
        a("buffer_store_dwordx4 %s, v14, s[52:55], 0 offen offset:%d" % (vr(72 + 4 * ct, 4), 64 * ct))
    a.label("L_%s_end" % name)
    a("s_endpgm")
    return name, a.text() + kdesc(name, 192, 0)


def gen_k4(layer):
    a = Asm()
    name = "k4l%d_kernel" % layer
    khead(a, name)
    a("s_cmp_ge_u32 s2, 8")
    a("s_cbranch_scc1 L_%s_end" % name)
    a("s_load_dwordx2 s[24:25], s[0:1], 80")
    a("s_load_dwordx2 s[26:27], s[0:1], 64")
    a("s_waitcnt lgkmcnt(0)")
    srd(a, 4, 24, 25, SLAB_OFF[layer], 28 * 16384)
    srd(a, 8, 24, 25, X1_OFF, 2 * MB)
    if layer == 0:
        srd(a, 12, 24, 25, X2_OFF, 2 * MB)
    else:
        srd(a, 12, 26, 27, 0, 2 * MB)
    srd(a, 16, 24, 25, SEL_OFF[layer], 64)
    srd(a, 20, 24, 25, XS_OFF[layer], 8192)
    a("""
    s_lshl_b32 s3, s2, 2
    v_mov_b32 v2, s3
    buffer_load_dword v3, v2, s[16:19], 0 offen
    buffer_load_dword v4, v2, s[16:19], 0 offen offset:32
    s_lshl_b32 s3, s2, 10
    v_lshlrev_b32 v5, 2, v0
    v_add_u32 v6, s3, v5
    buffer_load_dword v7, v6, s[20:23], 0 offen
    s_lshl_b32 s3, s2, 11
    v_lshlrev_b32 v8, 3, v0
    v_add_u32 v8, s3, v8
    """)
    for p in range(28):
        a("s_mov_b32 s3, %d" % (16384 * p))
        a("buffer_load_dwordx2 %s, v8, s[4:7], s3 offen" % vr(16 + 2 * p, 2))
    a("s_waitcnt vmcnt(30)")
    a("v_lshl_add_u32 v9, v3, 10, v5")
    a("buffer_load_dword v10, v9, s[8:11], 0 offen")
    a("s_waitcnt vmcnt(1)")
    for p in range(1, 28):
        a("v_add_f32 v16, v16, v%d" % (16 + 2 * p))
        a("v_add_f32 v17, v17, v%d" % (17 + 2 * p))
    a("""
    v_cvt_pk_bf16_f32 v40, v16, v17
    v_lshlrev_b32 v41, 16, v40
    v_and_b32 v42, 0xffff0000, v40
    v_mul_f32 v41, v41, v4
    v_mul_f32 v42, v42, v4
    v_cvt_pk_bf16_f32 v40, v41, v42
    v_lshlrev_b32 v41, 16, v40
    v_and_b32 v42, 0xffff0000, v40
    v_lshlrev_b32 v43, 16, v7
    v_and_b32 v44, 0xffff0000, v7
    v_add_f32 v41, v41, v43
    v_add_f32 v42, v42, v44
    v_cvt_pk_bf16_f32 v40, v41, v42
    v_lshlrev_b32 v41, 16, v40
    v_and_b32 v42, 0xffff0000, v40
    s_waitcnt vmcnt(0)
    v_lshlrev_b32 v43, 16, v10
    v_and_b32 v44, 0xffff0000, v10
    v_add_f32 v41, v41, v43
    v_add_f32 v42, v42, v44
    v_cvt_pk_bf16_f32 v40, v41, v42
    buffer_store_dword v40, v9, s[12:15], 0 offen
    """)
    a.label("L_%s_end" % name)
    a("s_endpgm")
    return name, a.text() + kdesc(name, 80, 0)


def build_parts():
    parts = []
    launches = []
    for layer in range(2):
        for g, grid, blk, lds in ((gen_k1, 256, 512, K1_LDS2), (gen_k2, 256, 512, K2_LDS2), (gen_k3, 256, 512, K3_LDS2), (gen_k4, 8, 256, 0)):
            n, t = g(layer)
            parts.append(t)
            launches.append("; @launch kernel=%s grid=(%d,1,1) block=(%d,1,1) lds=%d" % (n, grid, blk, lds))
    return parts, launches


def main(out):
    parts, launches = build_parts()
    txt = HEADER + "\n".join(launches) + "\n" + '.amdgcn_target "amdgcn-amd-amdhsa--gfx950"\n' + "\n".join(parts)
    open(out, "w").write(txt)


if __name__ == "__main__":
    main(sys.argv[1] if len(sys.argv) > 1 else "interleave_layers__sliding_local_dilated__moe_arch_mod__prompt.s")
```

```python
import re, sys
import gen
from gen import *
import gen2
gen2.PREFETCH = False


def share(gfun, base):
    n0, t0 = gfun(0)
    n1, t1 = gfun(1)
    l0 = t0.replace(n0, "KN").split("\n")
    l1 = t1.replace(n1, "KN").split("\n")
    assert len(l0) == len(l1)
    out = []
    i = 0
    body = base + "_body"
    while i < len(l0):
        if l0[i] == l1[i]:
            out.append(l0[i]); i += 1
            continue
        m0 = re.match(r"\s+s_(add_u32|mov_b32) s(\d+), (.*)", l0[i])
        m1 = re.match(r"\s+s_(add_u32|mov_b32) s(\d+), (.*)", l1[i])
        assert m0 and m1 and m0.group(2) == m1.group(2), (l0[i], l1[i])
        d = int(m0.group(2))
        a0, b0 = l0[i], l0[i + 1]
        a1, b1 = l1[i], l1[i + 1]
        out.append(a1.replace("s%d," % d, "s96,", 1))
        out.append(b1.replace("s%d," % (d + 1), "s97,", 1))
        out.append(a0); out.append(b0)
        out.append("    s_cmp_eq_u32 s98, 0")
        out.append("    s_cselect_b32 s%d, s%d, s96" % (d, d))
        out.append("    s_cselect_b32 s%d, s%d, s97" % (d + 1, d + 1))
        i += 2
    txt = "\n".join(out)
    head_end = txt.index("KN:\n") + len("KN:\n")
    desc_start = txt.index('.section .rodata')
    code = txt[head_end:desc_start]
    desc = txt[desc_start:]
    code = code.replace("L_KN", "L_" + base)
    res = ".text\n.globl %s\n.p2align 8\n.type %s,@function\n%s:\n    s_mov_b32 s98, 0\n    s_branch L_%s\n" % (n0, n0, n0, body)
    res += ".globl %s\n.p2align 8\n.type %s,@function\n%s:\n    s_mov_b32 s98, 1\nL_%s:\n" % (n1, n1, n1, body)
    res += code + desc.replace("KN", n0) + desc.replace("KN", n1)
    return n0, n1, res


def build():
    for L in (gen.ST_OFF, gen.SEL_OFF, gen.XS_OFF, gen2.SLAB_OFF):
        L[1] = L[0]
    parts = []
    l0, l1 = [], []
    for g, base, grid, blk, lds in ((gen2.gen_k1, "k1s", 256, 512, gen2.K1_LDS2), (gen2.gen_k2, "k2s", 256, 512, gen2.K2_LDS2),
                                    (gen2.gen_k3, "k3s", 256, 512, gen2.K3_LDS2), (gen2.gen_k4, "k4s", 8, 256, 0)):
        n0, n1, t = share(g, base)
        parts.append(t)
        l0.append("; @launch kernel=%s grid=(%d,1,1) block=(%d,1,1) lds=%d" % (n0, grid, blk, lds))
        l1.append("; @launch kernel=%s grid=(%d,1,1) block=(%d,1,1) lds=%d" % (n1, grid, blk, lds))
    return HEADER + "\n".join(l0 + l1) + "\n" + '.amdgcn_target "amdgcn-amd-amdhsa--gfx950"\n' + "\n".join(parts)


if __name__ == "__main__":
    open(sys.argv[1], "w").write(build())
```

```python
from gen import *
import gen

K1_MISC = 0
K1_S0 = 1024
K1_SLOT = 36864
K1_AW = 12288
K1_LDS2 = K1_S0 + 4 * K1_SLOT


def gen_k1(layer):
    a = Asm()
    name = "k1l%d_kernel" % layer
    khead(a, name)
    a("s_cmp_ge_u32 s2, 256")
    a("s_cbranch_scc1 L_%s_end" % name)
    a("s_load_dwordx4 s[20:23], s[0:1], 0")
    a("s_load_dwordx2 s[24:25], s[0:1], 80")
    a("""
    s_and_b32 s3, s2, 7
    s_lshr_b32 s26, s2, 3
    s_lshl_b32 s27, s3, 2
    s_and_b32 s30, s26, 3
    s_add_u32 s27, s27, s30
    s_lshr_b32 s28, s26, 2
    v_lshrrev_b32 v1, 6, v0
    s_nop 0
    v_readfirstlane_b32 s29, v1
    v_and_b32 v1, 63, v0
    s_lshl_b32 s32, s28, 7
    s_mov_b32 s40, 0x%x
    s_mov_b32 s41, 0x%x
    s_cmp_lt_u32 s29, 4
    s_cbranch_scc1 L_%s_mm
    """ % (f2u(1.0 / 512), f2u(1e-5), name))
    sc = {"r512": 40, "eps": 41}

    def stats_ops(src, acc, t):
        ops = []
        for r in range(4):
            ops.append("v_lshlrev_b32 v%d, 16, v%d" % (t, src + r))
            ops.append("v_and_b32 v%d, 0xffff0000, v%d" % (t + 1, src + r))
            ops.append("v_add_f32 v%d, v%d, v%d" % (acc, acc, t))
            ops.append("v_add_f32 v%d, v%d, v%d" % (acc + 1, acc + 1, t + 1))
            ops.append("v_fma_f32 v%d, v%d, v%d, v%d" % (acc + 2, t, t, acc + 2))
            ops.append("v_fma_f32 v%d, v%d, v%d, v%d" % (acc + 3, t + 1, t + 1, acc + 3))
        return ops

    def stats_fin(acc, vrow):
        a("v_add_f32 v%d, v%d, v%d" % (acc, acc, acc + 1))
        a("v_add_f32 v%d, v%d, v%d" % (acc + 2, acc + 2, acc + 3))
        for m in ("quad_perm:[1,0,3,2]", "quad_perm:[2,3,0,1]", "row_half_mirror"):
            a("s_nop 1")
            a("v_add_f32_dpp v%d, v%d, v%d %s row_mask:0xf bank_mask:0xf" % (acc, acc, acc, m))
            a("v_add_f32_dpp v%d, v%d, v%d %s row_mask:0xf bank_mask:0xf" % (acc + 2, acc + 2, acc + 2, m))
        ln_finalize(a, acc, acc + 2, acc + 1, acc + 3, 36, sc)
        a("v_lshlrev_b32 v%d, 2, v%d" % (vrow, vrow))
        a("ds_write_b32 v%d, v%d offset:%d" % (vrow, acc + 1, K1_MISC))
        a("ds_write_b32 v%d, v%d offset:%d" % (vrow, acc + 3, K1_MISC + 512))

    a("s_sub_u32 s29, s29, 4")
    a("v_and_b32 v0, 255, v0")
    a("""
    s_lshl_b32 s30, s27, 6
    s_sub_u32 s30, s30, 16
    s_mul_i32 s31, s29, 24
    v_lshrrev_b32 v10, 3, v1
    v_add_u32 v10, s31, v10
    v_and_b32 v11, 7, v1
    """)
    for i in range(3):
        a("v_add_u32 v12, %d, v10" % (8 * i))
        a("v_bfe_u32 v13, v12, 1, 3")
        a("v_xor_b32 v13, v13, v11")
        a("v_add_u32 v14, s30, v12")
        a("v_lshlrev_b32 v14, 10, v14")
        a("v_lshl_add_u32 v%d, v13, 4, v14" % (2 + i))
        a("v_cmp_gt_u32 vcc, 80, v12")
        a("v_mov_b32 v13, 0x7ff00000")
        a("s_nop 0")
        a("v_cndmask_b32 v%d, v13, v%d, vcc" % (2 + i, 2 + i))
    a("""
    v_lshrrev_b32 v10, 3, v1
    v_mul_u32_u24 v12, 3072, v10
    v_bfe_u32 v13, v10, 1, 1
    v_lshlrev_b32 v13, 1, v13
    v_xor_b32 v13, v13, v11
    v_lshl_add_u32 v5, v13, 4, v12
    v_xor_b32 v13, 4, v13
    v_lshl_add_u32 v6, v13, 4, v12
    """)
    a("s_mul_i32 s31, s29, 6")
    for i in range(6):
        a("s_add_u32 s34, s31, %d" % i)
        a("s_and_b32 s35, s34, 7")
        a("s_mul_i32 s35, s35, 24576")
        a("s_lshr_b32 s34, s34, 3")
        a("s_lshl_b32 s34, s34, 10")
        a("s_add_u32 s35, s35, s34")
        a("s_add_u32 s%d, s35, s32" % (46 + i))
    a("s_mul_i32 s52, s29, 3072")
    a("s_add_u32 s52, s52, %d" % K1_S0)
    a("s_mul_i32 s53, s29, 6144")
    a("s_add_u32 s53, s53, %d" % (K1_S0 + K1_AW))
    a("""
    v_lshrrev_b32 v10, 3, v0
    v_and_b32 v11, 7, v0
    v_lshlrev_b32 v11, 4, v11
    v_add_u32 v44, 32, v10
    v_lshl_add_u32 v28, v44, 7, v11
    v_add_u32 v28, %d, v28
    v_add_u32 v45, 64, v10
    v_min_u32 v45, 79, v45
    v_lshl_add_u32 v48, v45, 7, v11
    v_add_u32 v48, %d, v48
    """ % (K1_S0, K1_S0))
    for sl in range(1, 4):
        a("v_add_u32 v%d, %d, v28" % (28 + sl, sl * K1_SLOT))
        a("v_add_u32 v%d, %d, v48" % (48 + sl, sl * K1_SLOT))
    for r in list(range(32, 36)) + list(range(52, 56)):
        a("v_mov_b32 v%d, 0" % r)
    a("s_waitcnt lgkmcnt(0)")
    if layer == 0:
        srd(a, 4, 20, 21, 0, 2 * MB)
    else:
        srd(a, 4, 24, 25, X2_OFF, 2 * MB)
    srd(a, 8, 22, 23, 0, 512 * 3072)
    srd(a, 16, 24, 25, ST_OFF[layer], 49152)

    def issue(c):
        sl = (c & 3) * K1_SLOT
        a("s_mov_b32 s34, %d" % (128 * c))
        for i in range(3):
            a("s_add_u32 m0, s52, %d" % (sl + 1024 * i))
            a("s_nop 0")
            a("buffer_load_dwordx4 v%d, s[4:7], s34 offen lds" % (2 + i))
        for i in range(6):
            a("s_add_u32 s34, s%d, %d" % (46 + i, c * 64 * 3072))
            a("s_add_u32 m0, s53, %d" % (sl + 1024 * i))
            a("s_nop 0")
            a("buffer_load_dwordx4 v%d, s[8:11], s34 offen lds" % (5 + (i & 1)))

    a("""
    v_lshlrev_b32 v10, 4, v0
    s_lshl_b32 s34, s2, 6
    s_add_u32 s34, s34, 32640
    v_add_u32 v12, s34, v10
    s_lshl_b32 s34, s2, 7
    v_add_u32 v10, s34, v10
    v_cmp_gt_u32 vcc, 12, v0
    v_mov_b32 v11, 0x7ffffff0
    s_nop 0
    v_cndmask_b32 v12, v11, v12, vcc
    v_cmp_gt_u32 vcc, 8, v0
    s_nop 1
    v_cndmask_b32 v10, v12, v10, vcc
    buffer_store_dwordx4 v[32:35], v10, s[16:19], 0 offen
    """)
    for c in range(3):
        issue(c)
    for c in range(8):
        issued_hi = min(c + 2, 7)
        need = min(c + 1, 7)
        a("s_waitcnt vmcnt(%d)" % (9 * (issued_hi - need)))
        a("s_barrier")
        if c + 3 < 8:
            issue(c + 3)
        a("ds_read_b128 v[40:43], v%d" % (28 + (c & 3)))
        a("ds_read_b128 v[56:59], v%d" % (48 + (c & 3)))
        a("s_waitcnt lgkmcnt(0)")
        for op in stats_ops(40, 32, 36) + stats_ops(56, 52, 36):
            a(op)
    stats_fin(32, 44)
    stats_fin(52, 45)
    a("""
    s_waitcnt lgkmcnt(0)
    s_barrier
    s_endpgm
    """)
    a.label("L_%s_mm" % name)
    a("""
    v_and_b32 v10, 15, v1
    v_lshrrev_b32 v11, 4, v1
    v_bfe_u32 v12, v10, 1, 3
    v_xor_b32 v12, v12, v11
    v_lshlrev_b32 v12, 4, v12
    v_lshl_add_u32 v16, v10, 7, v12
    v_add_u32 v16, %d, v16
    v_xor_b32 v20, 64, v16
    """ % K1_S0)
    a("""
    v_bfe_u32 v10, v1, 2, 2
    v_lshl_add_u32 v12, v11, 3, v10
    v_lshlrev_b32 v12, 7, v12
    v_lshrrev_b32 v13, 1, v10
    v_and_b32 v14, 1, v11
    v_lshl_or_b32 v13, v14, 1, v13
    v_xor_b32 v13, s29, v13
    v_lshl_add_u32 v12, v13, 5, v12
    v_and_b32 v13, 3, v1
    v_lshl_add_u32 v24, v13, 3, v12
    v_add_u32 v24, %d, v24
    """ % (K1_S0 + K1_AW))
    a("""
    v_lshrrev_b32 v172, 3, v0
    v_and_b32 v11, 7, v0
    v_lshlrev_b32 v11, 4, v11
    v_lshl_add_u32 v28, v172, 7, v11
    v_add_u32 v28, %d, v28
    """ % K1_S0)
    for sl in range(1, 4):
        for b in (16, 20, 24, 28):
            a("v_add_u32 v%d, %d, v%d" % (b + sl, sl * K1_SLOT, b))
    for r in range(32, 36):
        a("v_mov_b32 v%d, 0" % r)
    for r in range(36, 40):
        a("v_mov_b32 v%d, 0x%x" % (r, ONES_BF))
    a("s_waitcnt lgkmcnt(0)")
    srd(a, 12, 24, 25, O_OFF, 2 * MB)
    AF = [40, 60]
    BF = [80, 92]
    ACC = 104
    QA, KA, VA, CS = ACC, ACC + 16, ACC + 36, ACC + 56

    def reads(c, sp):
        sl = c & 3
        st = sp
        o = []
        for seg in range(3):
            off = seg * 8192 + sp * 4096
            o.append("ds_read_b64_tr_b16 %s, v%d offset:%d" % (vr(BF[st] + 4 * seg, 2), 24 + sl, off))
            o.append("ds_read_b64_tr_b16 %s, v%d offset:%d" % (vr(BF[st] + 4 * seg + 2, 2), 24 + sl, off + 512))
        for t in (1, 2, 3, 4, 0):
            o.append("ds_read_b128 %s, v%d offset:%d" % (vr(AF[st] + 4 * t, 4), (16 if sp == 0 else 20) + sl, t * 2048))
        return o

    def mfmas(first, st, fill=()):
        A, B = AF[st], BF[st]
        mf = []
        for t in range(4):
            mf.append((QA + 4 * t, vr(B, 4), vr(A + 4 * (t + 1), 4)))
        for t in range(5):
            mf.append((KA + 4 * t, vr(B + 4, 4), vr(A + 4 * t, 4)))
        for t in range(5):
            mf.append((VA + 4 * t, vr(A + 4 * t, 4), vr(B + 8, 4)))
        mf.append((CS, vr(B, 4), "v[36:39]"))
        mf.append((CS + 4, vr(B + 4, 4), "v[36:39]"))
        mf.append((CS + 8, "v[36:39]", vr(B + 8, 4)))
        fi = 0
        for (acc, x, y) in mf:
            a("v_mfma_f32_16x16x32_bf16 %s, %s, %s, %s" % (vr(acc, 4), x, y, "0" if first else vr(acc, 4)))
            n = 0
            while fi < len(fill) and n < 2:
                n += 2 if fill[fi].startswith("ds_") else 1
                a(fill[fi]); fi += 1
        while fi < len(fill):
            a(fill[fi]); fi += 1

    for c in range(8):
        a("s_barrier")
        if c == 0:
            for x in reads(0, 0):
                a(x)
        a("s_waitcnt lgkmcnt(0)")
        mfmas(c == 0, 0, reads(c, 1) + ["ds_read_b128 v[176:179], v%d" % (28 + (c & 3))])
        a("s_waitcnt lgkmcnt(0)")
        mfmas(False, 1, (reads(c + 1, 0) if c < 7 else []) + stats_ops(176, 32, 180))
    stats_fin(32, 172)
    a("s_waitcnt lgkmcnt(0)")
    a("s_barrier")
    a("""
    v_and_b32 v10, 15, v1
    v_lshlrev_b32 v10, 2, v10
    v_lshrrev_b32 v11, 4, v1
    v_lshlrev_b32 v11, 4, v11
    """)
    for t in range(5):
        a("ds_read_b32 v%d, v10 offset:%d" % (40 + t, K1_MISC + 64 * t))
        a("ds_read_b32 v%d, v10 offset:%d" % (45 + t, K1_MISC + 512 + 64 * t))
    for t in range(5):
        a("ds_read_b128 %s, v11 offset:%d" % (vr(52 + 8 * t, 4), K1_MISC + 64 * t))
        a("ds_read_b128 %s, v11 offset:%d" % (vr(56 + 8 * t, 4), K1_MISC + 512 + 64 * t))
    a("""
    v_and_b32 v188, 15, v1
    v_lshrrev_b32 v189, 4, v1
    v_and_b32 v190, 1, v1
    v_lshl_add_u32 v189, v189, 2, v190
    v_cmp_eq_u32 s[44:45], 1, v190
    v_cmp_le_u32 s[46:47], v189, v188
    v_add_u32 v189, 2, v189
    v_cmp_le_u32 s[48:49], v189, v188
    v_lshlrev_b32 v190, 4, v190
    s_cmp_eq_u32 s27, 0
    s_cselect_b32 s35, 0x%x, 0
    v_mov_b32 v191, s35
    v_mov_b32 v193, 0
    v_cndmask_b32 v192, v191, v193, s[46:47]
    v_cndmask_b32 v191, v191, v193, s[48:49]
    s_mov_b32 s42, 0x%x
    """ % (f2u(-1e30), f2u(0.25 * LOG2E)))
    a("s_waitcnt lgkmcnt(0)")
    QF, KF, VF = 196, 204, 214

    def norm(acc, cs_regs, m_regs, i_regs, dst):
        for r in range(4):
            a("v_fma_f32 v%d, -v%d, v%d, v%d" % (acc + r, m_regs[r], cs_regs[r], acc + r))
        for r in range(4):
            a("v_mul_f32 v%d, v%d, v%d" % (acc + r, i_regs[r], acc + r))
        a("v_cvt_pk_bf16_f32 v%d, v%d, v%d" % (dst, acc, acc + 1))
        a("v_cvt_pk_bf16_f32 v%d, v%d, v%d" % (dst + 1, acc + 2, acc + 3))

    for t in range(4):
        norm(QA + 4 * t, [CS + r for r in range(4)], [41 + t] * 4, [46 + t] * 4, QF + 2 * t)
    for t in range(5):
        norm(KA + 4 * t, [CS + 4 + r for r in range(4)], [40 + t] * 4, [45 + t] * 4, KF + 2 * t)
    for t in range(5):
        norm(VA + 4 * t, [CS + 8] * 4, [52 + 8 * t + r for r in range(4)], [56 + 8 * t + r for r in range(4)], VF + 2 * t)
    a("s_nop 1")
    SS = 104
    for t in range(4):
        q = vr(QF + 2 * t, 2)
        a("v_mfma_f32_16x16x16_bf16 %s, %s, %s, 0" % (vr(SS + 8 * t, 4), vr(KF + 2 * t, 2), q))
        a("v_mfma_f32_16x16x16_bf16 %s, %s, %s, 0" % (vr(SS + 8 * t + 4, 4), vr(KF + 2 * t + 2, 2), q))
    a("s_nop 7")
    E = 140
    for u in range(4):
        Sp, Sc = SS + 8 * u, SS + 8 * u + 4
        a("v_cndmask_b32 v194, v%d, v%d, s[44:45]" % (Sc, Sc + 1))
        a("v_cndmask_b32 v195, v%d, v%d, s[44:45]" % (Sp, Sp + 1))
        a("v_cndmask_b32 v%d, v195, v194, s[46:47]" % (E + 2 * u))
        a("v_cndmask_b32 v194, v%d, v%d, s[44:45]" % (Sc + 2, Sc + 3))
        a("v_cndmask_b32 v195, v%d, v%d, s[44:45]" % (Sp + 2, Sp + 3))
        a("v_cndmask_b32 v%d, v195, v194, s[48:49]" % (E + 1 + 2 * u))
    for u in range(4):
        a("v_cvt_pk_bf16_f32 v194, v%d, v%d" % (E + 2 * u, E + 1 + 2 * u))
        a("v_lshlrev_b32 v%d, 16, v194" % (E + 2 * u))
        a("v_and_b32 v%d, 0xffff0000, v194" % (E + 1 + 2 * u))
        b0, b1 = (192, 191) if u == 0 else (193, 193)
        a("v_fma_f32 v%d, v%d, s42, v%d" % (E + 2 * u, E + 2 * u, b0))
        a("v_fma_f32 v%d, v%d, s42, v%d" % (E + 1 + 2 * u, E + 1 + 2 * u, b1))
        a("v_max_f32 v%d, v%d, v%d" % (148 + u, E + 2 * u, E + 1 + 2 * u))
    bfly(a, "v_max_f32", [148, 149, 150, 151], [152, 153, 154, 155])
    for u in range(4):
        a("v_sub_f32 v%d, v%d, v%d" % (E + 2 * u, E + 2 * u, 148 + u))
        a("v_sub_f32 v%d, v%d, v%d" % (E + 1 + 2 * u, E + 1 + 2 * u, 148 + u))
        a("v_exp_f32 v%d, v%d" % (E + 2 * u, E + 2 * u))
        a("v_exp_f32 v%d, v%d" % (E + 1 + 2 * u, E + 1 + 2 * u))
    a("s_nop 0")
    for u in range(4):
        a("v_add_f32 v%d, v%d, v%d" % (148 + u, E + 2 * u, E + 1 + 2 * u))
    bfly(a, "v_add_f32", [148, 149, 150, 151], [152, 153, 154, 155])
    for u in range(4):
        a("v_rcp_f32 v%d, v%d" % (148 + u, 148 + u))
    a("s_nop 0")
    for u in range(4):
        a("v_mul_f32 v%d, v%d, v%d" % (E + 2 * u, E + 2 * u, 148 + u))
        a("v_mul_f32 v%d, v%d, v%d" % (E + 1 + 2 * u, E + 1 + 2 * u, 148 + u))
        a("v_cvt_pk_bf16_f32 v194, v%d, v%d" % (E + 2 * u, E + 1 + 2 * u))
        a("v_and_b32 v195, 0xffff, v194")
        a("v_lshlrev_b32 v195, v190, v195")
        a("v_lshrrev_b32 v194, 16, v194")
        a("v_lshlrev_b32 v194, v190, v194")
        P = 156 + 4 * u
        a("v_cndmask_b32 v%d, v195, v193, s[46:47]" % (P + 0))
        a("v_cndmask_b32 v%d, v194, v193, s[48:49]" % (P + 1))
        a("v_cndmask_b32 v%d, v193, v195, s[46:47]" % (P + 2))
        a("v_cndmask_b32 v%d, v193, v194, s[48:49]" % (P + 3))
    a("s_nop 1")
    for u in range(4):
        a("v_mfma_f32_16x16x32_bf16 %s, %s, %s, 0" % (vr(172 + 4 * u, 4), vr(VF + 2 * u, 4), vr(156 + 4 * u, 4)))
    a("""
    v_and_b32 v10, 15, v1
    v_lshlrev_b32 v10, 10, v10
    v_lshrrev_b32 v11, 4, v1
    v_lshl_add_u32 v10, v11, 3, v10
    s_lshl_b32 s34, s27, 16
    s_lshl_b32 s35, s29, 5
    s_add_u32 s34, s34, s35
    s_add_u32 s34, s34, s32
    v_add_u32 v10, s34, v10
    s_nop 2
    """)
    for u in range(4):
        a("v_cvt_pk_bf16_f32 v%d, v%d, v%d" % (40 + 2 * u, 172 + 4 * u, 173 + 4 * u))
        a("v_cvt_pk_bf16_f32 v%d, v%d, v%d" % (41 + 2 * u, 174 + 4 * u, 175 + 4 * u))
        a("s_mov_b32 s34, %d" % (16384 * u))
        a("buffer_store_dwordx2 %s, v10, s[12:15], s34 offen" % vr(40 + 2 * u, 2))
    a.label("L_%s_end" % name)
    a("s_endpgm")
    return name, a.text() + kdesc(name, 224, 0)


K2_CH = 16384
PREFETCH = True
DRY = False
K2_LDS2 = 8 * K2_CH


def gen_k2(layer):
    a = Asm()
    name = "k2l%d_kernel" % layer
    khead(a, name)
    a("s_cmp_ge_u32 s2, 256")
    a("s_cbranch_scc1 L_%s_end" % name)
    a("s_load_dwordx2 s[20:21], s[0:1], 0")
    a("s_load_dwordx2 s[22:23], s[0:1], 16")
    a("s_load_dwordx2 s[24:25], s[0:1], 80")
    a("s_load_dwordx2 s[36:37], s[0:1], 32")
    a("""
    s_and_b32 s3, s2, 7
    s_lshr_b32 s26, s2, 3
    s_lshl_b32 s27, s3, 2
    s_and_b32 s30, s26, 3
    s_add_u32 s27, s27, s30
    s_lshr_b32 s28, s26, 2
    v_lshrrev_b32 v1, 6, v0
    s_nop 0
    v_readfirstlane_b32 s29, v1
    v_and_b32 v1, 63, v0
    s_cmp_lt_u32 s29, 4
    s_cbranch_scc1 L_%s_mm
    """ % name)
    a("s_sub_u32 s29, s29, 4")
    a("""
    v_lshrrev_b32 v10, 3, v1
    v_and_b32 v11, 7, v1
    s_lshl_b32 s30, s27, 6
    s_lshl_b32 s31, s29, 4
    s_add_u32 s30, s30, s31
    v_add_u32 v12, s30, v10
    v_lshlrev_b32 v12, 10, v12
    v_lshrrev_b32 v13, 1, v10
    v_xor_b32 v13, v13, v11
    v_lshl_add_u32 v2, v13, 4, v12
    v_xor_b32 v13, 4, v13
    v_add_u32 v12, 8192, v12
    v_lshl_add_u32 v3, v13, 4, v12
    v_add_u32 v12, s31, v10
    v_lshlrev_b32 v12, 10, v12
    s_lshl_b32 s32, s28, 7
    v_add_u32 v12, s32, v12
    v_bfe_u32 v13, v10, 1, 1
    v_lshlrev_b32 v13, 1, v13
    v_xor_b32 v13, v13, v11
    v_lshl_add_u32 v4, v13, 4, v12
    v_xor_b32 v13, 4, v13
    v_add_u32 v12, 8192, v12
    v_lshl_add_u32 v5, v13, 4, v12
    s_lshl_b32 s52, s29, 11
    """)
    a("s_waitcnt lgkmcnt(0)")
    srd(a, 4, 24, 25, O_OFF, 2 * MB)
    srd(a, 8, 22, 23, 0, 512 * 1024)
    for c in range(8):
        a("s_mov_b32 s34, %d" % (128 * c))
        a("s_mov_b32 s35, %d" % (65536 * c))
        for i in range(2):
            a("s_add_u32 m0, s52, %d" % (c * K2_CH + 1024 * i))
            a("s_nop 0")
            a("buffer_load_dwordx4 v%d, s[4:7], s34 offen lds" % (2 + i))
        for i in range(2):
            a("s_add_u32 m0, s52, %d" % (c * K2_CH + 8192 + 1024 * i))
            a("s_nop 0")
            a("buffer_load_dwordx4 v%d, s[8:11], s35 offen lds" % (4 + i))
    npf = 0
    if layer == 0 and PREFETCH:
        a("s_load_dwordx4 s[56:59], s[0:1], 40")
        a("s_load_dwordx2 s[60:61], s[0:1], 56")
        a("""
        s_lshr_b32 s34, s2, 3
        s_and_b32 s34, s34, 3
        s_lshl_b32 s34, s34, 3
        s_add_u32 s34, s34, s3
        s_lshr_b32 s35, s2, 5
        s_lshl_b32 s35, s35, 2
        s_add_u32 s35, s35, s29
        v_lshrrev_b32 v10, 3, v1
        s_lshl_b32 s38, s35, 4
        v_add_u32 v10, s38, v10
        v_mul_u32_u24 v10, 3584, v10
        v_and_b32 v11, 7, v1
        v_lshl_add_u32 v10, v11, 4, v10
        s_lshl_b32 s38, s34, 7
        v_add_u32 v10, s38, v10
        s_lshl_b32 s38, s34, 16
        s_lshl_b32 s39, s35, 11
        s_add_u32 s38, s38, s39
        v_lshlrev_b32 v11, 4, v1
        v_add_u32 v11, s38, v11
        s_waitcnt lgkmcnt(0)
        """)
        srd(a, 40, 56, 57, 0, 512 * 3584)
        srd(a, 44, 58, 59, 0, 512 * 3584)
        srd(a, 48, 60, 61, 0, 1792 * 1024)
        a("s_mov_b32 s38, %d" % (8 * 3584))
        a("buffer_load_dwordx4 v[12:15], v10, s[40:43], 0 offen")
        a("buffer_load_dwordx4 v[16:19], v10, s[40:43], s38 offen")
        a("buffer_load_dwordx4 v[20:23], v10, s[44:47], 0 offen")
        a("buffer_load_dwordx4 v[24:27], v10, s[44:47], s38 offen")
        a("buffer_load_dwordx4 v[28:31], v11, s[48:51], 0 offen")
        a("buffer_load_dwordx4 v[32:35], v11, s[48:51], 0 offen offset:1024")
        npf = 6
    for j in range(4):
        a("s_waitcnt vmcnt(%d)" % (8 * (3 - j) + npf))
        a("s_barrier")
    a("s_endpgm")
    a.label("L_%s_mm" % name)
    a("""
    s_lshr_b32 s30, s29, 1
    s_and_b32 s31, s29, 1
    v_and_b32 v10, 15, v1
    v_lshrrev_b32 v11, 4, v1
    v_bfe_u32 v12, v10, 1, 3
    v_xor_b32 v12, v12, v11
    v_lshlrev_b32 v12, 4, v12
    v_lshl_add_u32 v16, v10, 7, v12
    s_lshl_b32 s34, s30, 12
    v_add_u32 v16, s34, v16
    v_xor_b32 v17, 64, v16
    v_add_u32 v18, 65536, v16
    v_add_u32 v19, 65536, v17
    v_bfe_u32 v10, v1, 2, 2
    v_lshl_add_u32 v12, v11, 3, v10
    v_lshlrev_b32 v12, 7, v12
    v_lshrrev_b32 v13, 1, v10
    v_and_b32 v14, 1, v11
    v_lshl_or_b32 v13, v14, 1, v13
    s_lshl_b32 s34, s31, 1
    v_xor_b32 v13, s34, v13
    v_and_b32 v14, 3, v1
    v_lshl_add_u32 v12, v14, 3, v12
    v_add_u32 v12, 8192, v12
    v_lshl_add_u32 v20, v13, 5, v12
    v_xor_b32 v13, 1, v13
    v_lshl_add_u32 v21, v13, 5, v12
    v_add_u32 v22, 65536, v20
    v_add_u32 v23, 65536, v21
    """)
    a("""
    s_lshl_b32 s34, s27, 6
    s_lshl_b32 s35, s30, 5
    s_add_u32 s34, s34, s35
    v_and_b32 v2, 15, v1
    v_add_u32 v2, s34, v2
    v_lshlrev_b32 v2, 10, v2
    v_lshrrev_b32 v10, 4, v1
    v_lshlrev_b32 v10, 3, v10
    s_lshl_b32 s35, s28, 7
    s_lshl_b32 s38, s31, 6
    s_add_u32 s35, s35, s38
    v_add_u32 v13, s35, v10
    v_add_u32 v9, v2, v13
    v_add_u32 v12, 0x4000, v9
    """)
    a("s_waitcnt lgkmcnt(0)")
    if layer == 0:
        srd(a, 12, 20, 21, 0, 2 * MB)
    else:
        srd(a, 12, 24, 25, X2_OFF, 2 * MB)
    srd(a, 16, 24, 25, X1_OFF, 2 * MB)
    srd(a, 40, 24, 25, ST_OFF[layer], 32768)
    srd(a, 44, 36, 37, 0, 1024)
    for ti, vo in enumerate((9, 12)):
        for ct in range(2):
            a("buffer_load_dwordx2 %s, v%d, s[12:15], 0 offen offset:%d" % (vr(48 + 4 * ti + 2 * ct, 2), vo, 32 * ct))
    for ct in range(2):
        a("buffer_load_dwordx2 %s, v13, s[44:47], 0 offen offset:%d" % (vr(56 + 2 * ct, 2), 32 * ct))
    FR = [96, 112]

    def reads(s):
        c, sp = s >> 1, s & 1
        hi = 2 if c >= 4 else 0
        co = (c & 3) * K2_CH
        F = FR[s & 1]
        o = []
        for ct in range(2):
            o.append("ds_read_b64_tr_b16 %s, v%d offset:%d" % (vr(F + 8 + 4 * ct, 2), 20 + ct + hi, co + sp * 4096))
            o.append("ds_read_b64_tr_b16 %s, v%d offset:%d" % (vr(F + 10 + 4 * ct, 2), 20 + ct + hi, co + sp * 4096 + 512))
        for t in range(2):
            o.append("ds_read_b128 %s, v%d offset:%d" % (vr(F + 4 * t, 4), 16 + sp + hi, co + t * 2048))
        return o

    for s in range(16):
        if (s & 3) == 0:
            a("s_barrier")
            for x in reads(s):
                a(x)
        a("s_waitcnt lgkmcnt(0)")
        fill = reads(s + 1) if (s & 3) != 3 else []
        F = FR[s & 1]
        fi = 0
        for ti in range(2):
            for ct in range(2):
                acc = 32 + 4 * (2 * ti + ct)
                a("v_mfma_f32_16x16x32_bf16 %s, %s, %s, %s" % (vr(acc, 4), vr(F + 8 + 4 * ct, 4), vr(F + 4 * ti, 4), "0" if s == 0 else vr(acc, 4)))
                for _ in range(2):
                    if fi < len(fill):
                        a(fill[fi]); fi += 1
    a("s_waitcnt vmcnt(0)")
    a("s_nop 7")
    for ct in range(2):
        for j in range(2):
            a("v_lshlrev_b32 v%d, 16, v%d" % (64 + 4 * ct + 2 * j, 56 + 2 * ct + j))
            a("v_and_b32 v%d, 0xffff0000, v%d" % (65 + 4 * ct + 2 * j, 56 + 2 * ct + j))
    for ti in range(2):
        S, Q, D = 80 + 4 * ti, 81 + 4 * ti, 82 + 4 * ti
        for ct in range(2):
            acc = 32 + 4 * (2 * ti + ct)
            xr = 48 + 4 * ti + 2 * ct
            for j in range(2):
                a("v_cvt_pk_bf16_f32 v72, v%d, v%d" % (acc + 2 * j, acc + 2 * j + 1))
                a("v_lshlrev_b32 v73, 16, v72")
                a("v_and_b32 v74, 0xffff0000, v72")
                a("v_lshlrev_b32 v75, 16, v%d" % (xr + j))
                a("v_and_b32 v76, 0xffff0000, v%d" % (xr + j))
                a("v_add_f32 v73, v73, v75")
                a("v_add_f32 v74, v74, v76")
                a("v_cvt_pk_bf16_f32 v%d, v73, v74" % (xr + j))
                a("v_lshlrev_b32 v73, 16, v%d" % (xr + j))
                a("v_and_b32 v74, 0xffff0000, v%d" % (xr + j))
                w0, w1 = 64 + 4 * ct + 2 * j, 65 + 4 * ct + 2 * j
                if ct == 0 and j == 0:
                    a("v_add_f32 v%d, v73, v74" % S)
                    a("v_mul_f32 v%d, v73, v73" % Q)
                    a("v_mul_f32 v%d, v73, v%d" % (D, w0))
                else:
                    a("v_add_f32 v%d, v%d, v73" % (S, S))
                    a("v_add_f32 v%d, v%d, v74" % (S, S))
                    a("v_fma_f32 v%d, v73, v73, v%d" % (Q, Q))
                    a("v_fma_f32 v%d, v73, v%d, v%d" % (D, w0, D))
                a("v_fma_f32 v%d, v74, v74, v%d" % (Q, Q))
                a("v_fma_f32 v%d, v74, v%d, v%d" % (D, w1, D))
            a("buffer_store_dwordx2 %s, v%d, s[16:19], 0 offen offset:%d" % (vr(xr, 2), (9, 12)[ti], 32 * ct))
    bfly(a, "v_add_f32", [80, 81, 82, 84, 85, 86], [88, 89, 90, 91, 92, 93])
    a("""
    v_lshrrev_b32 v88, 4, v1
    v_cmp_eq_u32 s[48:49], 1, v88
    v_cmp_eq_u32 s[50:51], 2, v88
    v_cmp_eq_u32 s[52:53], 3, v88
    v_lshrrev_b32 v89, 6, v2
    v_lshl_add_u32 v89, v88, 2, v89
    v_add_u32 v90, 256, v89
    """)
    for ti in range(2):
        S = 80 + 4 * ti
        a("v_cndmask_b32 v%d, v%d, v%d, s[48:49]" % (S, S, S + 1))
        a("v_cndmask_b32 v%d, v%d, v%d, s[50:51]" % (S, S, S + 2))
    a("s_andn2_b64 exec, exec, s[52:53]")
    for ti in range(2):
        S = 80 + 4 * ti
        a("buffer_atomic_add_f32 v%d, v%d, s[40:43], 0 offen" % (S, 89 + ti))
    a.label("L_%s_end" % name)
    a("s_endpgm")
    return name, a.text() + kdesc(name, 128, 0)


SLAB_OFF = [8 * MB, 8 * MB + 524288]
K3_G = 0
K3_U = 65536
K3_MS2 = 131072
K3_XS2 = K3_MS2 + 16384
K3_H = K3_XS2 + 8 * 1040 + 64
K3_HP = 144
K3_CAND2 = K3_H + 16 * K3_HP
K3_SEL2 = K3_CAND2 + 128
K3_FLG = K3_SEL2 + 128
K3_LDS2 = K3_FLG + 64
K3_WDP = 1056


def norm_pair(a, src, vm, vinv, mode, T=50):
    a("v_lshlrev_b32 v%d, 16, v%d" % (T, src))
    a("v_and_b32 v%d, 0xffff0000, v%d" % (T + 1, src))
    a("v_sub_f32 v%d, v%d, v%d" % (T + 2, T, vm))
    a("v_sub_f32 v%d, v%d, v%d" % (T + 3, T + 1, vm))
    a("v_cvt_pk_bf16_f32 v%d, v%d, v%d" % (T + 4, T + 2, T + 3))
    a("v_lshlrev_b32 v%d, 16, v%d" % (T + 2, T + 4))
    a("v_and_b32 v%d, 0xffff0000, v%d" % (T + 3, T + 4))
    a("v_mul_f32 v%d, v%d, v%d" % (T + 2, T + 2, vinv))
    a("v_mul_f32 v%d, v%d, v%d" % (T + 3, T + 3, vinv))
    if mode == "xn":
        a("v_cvt_pk_bf16_f32 v%d, v%d, v%d" % (src, T + 2, T + 3))
    else:
        a("v_cvt_pk_bf16_f32 v%d, v%d, v%d" % (T + 4, T + 2, T + 3))
        a("v_lshlrev_b32 v%d, 16, v%d" % (T + 2, T + 4))
        a("v_and_b32 v%d, 0xffff0000, v%d" % (T + 3, T + 4))
        a("v_add_f32 v%d, v%d, v%d" % (T + 2, T + 2, T))
        a("v_add_f32 v%d, v%d, v%d" % (T + 3, T + 3, T + 1))
        a("v_cvt_pk_bf16_f32 v%d, v%d, v%d" % (src, T + 2, T + 3))


def gen_k3(layer):
    a = Asm()
    name = "k3l%d_kernel" % layer
    khead(a, name)
    a("s_cmp_ge_u32 s2, 256")
    a("s_cbranch_scc1 L_%s_end" % name)
    a("s_load_dwordx4 s[20:23], s[0:1], 32")
    a("s_load_dwordx4 s[28:31], s[0:1], 48")
    a("s_load_dwordx2 s[24:25], s[0:1], 80")
    a("s_load_dwordx2 s[26:27], s[0:1], 64")
    a("s_load_dwordx2 s[64:65], s[0:1], 72")
    a("""
    v_lshrrev_b32 v1, 6, v0
    s_nop 0
    v_readfirstlane_b32 s33, v1
    v_and_b32 v1, 63, v0
    s_lshl_b32 s32, s2, 7
    s_mov_b32 s56, 0x%x
    s_mov_b32 s57, 0x%x
    s_mov_b32 s58, 0x%x
    s_cmp_lt_u32 s33, 4
    s_cbranch_scc1 L_%s_mm
    """ % (f2u(1.0 / 512), f2u(1e-5), ONES_BF, name))
    sc = {"r512": 56, "eps": 57}
    a("s_sub_u32 s33, s33, 4")
    a("v_and_b32 v0, 255, v0")
    a("s_waitcnt lgkmcnt(0)")
    srd(a, 4, 24, 25, ST_OFF[layer], 32768)
    srd(a, 8, 24, 25, X1_OFF, 2 * MB)
    if layer == 0:
        srd(a, 12, 24, 25, X2_OFF, 2 * MB)
    else:
        srd(a, 12, 26, 27, 0, 2 * MB)
    srd(a, 48, 64, 65, 0, 256)
    a("""
    s_and_b32 s35, s2, 7
    s_lshl_b32 s35, s35, 5
    s_lshr_b32 s34, s2, 3
    s_add_u32 s35, s35, s34
    s_lshl_b32 s34, s35, 13
    v_lshlrev_b32 v4, 4, v0
    v_add_u32 v4, s34, v4
    v_add_u32 v5, 4096, v4
    s_lshl_b32 s34, s35, 3
    s_add_u32 s34, s34, s33
    s_lshl_b32 s34, s34, 4
    v_mov_b32 v6, s34
    buffer_load_dwordx4 v[8:11], v6, s[4:7], 0 offen
    buffer_load_dwordx4 v[12:15], v6, s[4:7], 0 offen offset:64
    buffer_load_dwordx4 v[100:103], v4, s[8:11], 0 offen
    buffer_load_dwordx4 v[104:107], v5, s[8:11], 0 offen
    """)
    a("s_cmp_ge_u32 s2, 28")
    a("s_cbranch_scc1 L_%s_x2only" % name)
    a("s_barrier")
    srd(a, 36, 22, 23, 0, 512 * 3584)
    srd(a, 40, 28, 29, 0, 512 * 3584)
    srd(a, 44, 30, 31, 0, 1792 * 1024)
    a("""
    v_lshrrev_b32 v20, 3, v1
    v_and_b32 v21, 7, v1
    s_lshl_b32 s35, s33, 7
    v_add_u32 v22, s35, v20
    v_mul_u32_u24 v22, 3584, v22
    v_add_u32 v22, s32, v22
    v_bfe_u32 v23, v20, 1, 1
    v_lshlrev_b32 v23, 1, v23
    v_xor_b32 v23, v23, v21
    v_lshl_add_u32 v2, v23, 4, v22
    v_xor_b32 v23, 4, v23
    v_lshl_add_u32 v3, v23, 4, v22
    s_lshl_b32 s52, s33, 14
    """)
    for i in range(16):
        a("s_mov_b32 s34, %d" % (8 * i * 3584))
        a("s_add_u32 m0, s52, %d" % (K3_G + 1024 * i))
        a("s_nop 0")
        a("buffer_load_dwordx4 v%d, s[36:39], s34 offen lds" % (2 + (i & 1)))
        a("s_add_u32 m0, s52, %d" % (K3_U + 1024 * i))
        a("s_nop 0")
        a("buffer_load_dwordx4 v%d, s[40:43], s34 offen lds" % (2 + (i & 1)))
    a("""
    s_lshl_b32 s34, s2, 16
    s_lshl_b32 s35, s33, 14
    s_add_u32 s34, s34, s35
    v_lshlrev_b32 v7, 4, v1
    v_add_u32 v7, s34, v7
    """)
    for i in range(16):
        a("s_mov_b32 s34, %d" % (1024 * i))
        a("buffer_load_dwordx4 %s, v7, s[44:47], s34 offen" % vr(112 + 4 * i, 4))
    a("s_waitcnt vmcnt(48)")
    a("s_branch L_%s_x2" % name)
    a.label("L_%s_x2only" % name)
    a("s_waitcnt vmcnt(0)")
    a.label("L_%s_x2" % name)
    ln_finalize(a, 8, 9, 40, 41, 42, sc)
    ln_finalize(a, 12, 13, 43, 44, 45, sc)
    for r in range(4):
        norm_pair(a, 100 + r, 40, 41, "x2")
    a("buffer_store_dwordx4 v[100:103], v4, s[12:15], 0 offen")
    for r in range(4):
        norm_pair(a, 104 + r, 43, 44, "x2")
    a("buffer_store_dwordx4 v[104:107], v5, s[12:15], 0 offen")
    a("s_cmp_ge_u32 s2, 28")
    a("s_cbranch_scc1 L_%s_end" % name)
    a("s_waitcnt vmcnt(18)")
    a("s_barrier")
    a("""
    s_mul_i32 s34, s33, %d
    v_lshlrev_b32 v7, 4, v1
    v_add_u32 v7, s34, v7
    """ % (16 * K3_WDP))
    a("s_waitcnt vmcnt(2)")
    a("s_barrier")
    for i in range(16):
        pos = (i & 3) | ((i & 4) << 1) | ((i & 8) >> 1)
        a("ds_write_b128 v7, %s offset:%d" % (vr(112 + 4 * i, 4), K3_G + pos * K3_WDP))
    a("s_waitcnt lgkmcnt(0)")
    a("s_barrier")
    a("s_endpgm")
    a.label("L_%s_mm" % name)
    a("s_cmp_ge_u32 s2, 28")
    a("s_cbranch_scc1 L_%s_end" % name)
    a("""
    s_lshl_b32 s34, s33, 2
    v_mov_b32 v2, s34
    v_add_u32 v2, %d, v2
    v_mov_b32 v3, 0
    ds_write_b32 v2, v3
    """ % K3_FLG)
    a("s_setprio 3")
    a("s_waitcnt lgkmcnt(0)")
    a("s_barrier")
    srd(a, 4, 24, 25, ST_OFF[layer], 32768)
    srd(a, 8, 24, 25, X1_OFF, 2 * MB)
    srd(a, 16, 20, 21, 0, 1024)
    srd(a, 44, 24, 25, SEL_OFF[layer], 64)
    srd(a, 48, 24, 25, XS_OFF[layer], 8192)
    srd(a, 52, 24, 25, SLAB_OFF[layer], 28 * 16384)
    a("v_lshlrev_b32 v2, 7, v0")
    for i in range(8):
        a("buffer_load_dwordx4 %s, v2, s[4:7], 0 offen offset:%d" % (vr(64 + 4 * i, 4), 16 * i))
    a("v_lshlrev_b32 v3, 4, v1")
    a("buffer_load_dwordx4 v[96:99], v3, s[16:19], 0 offen")
    if DRY:
        a("s_mov_b32 s99, 0")
        a("s_mov_b64 exec, 0")
        a("s_branch L_%s_r1" % name)
        a.label("L_%s_r0" % name)
    a("s_waitcnt vmcnt(0)")
    a.label("L_%s_r1" % name)
    a("v_mov_b32 v8, 0")
    for r in range(4):
        a("v_dot2_f32_bf16 v8, v%d, s58, v8" % (96 + r))
    a("s_nop 2")
    for sh in (1, 2, 4, 8):
        a("v_add_f32_dpp v8, v8, v8 row_ror:%d row_mask:0xf bank_mask:0xf" % sh)
        a("s_nop 1")
    bfly(a, "v_add_f32", [8], [9])
    a("v_lshlrev_b32 v10, 6, v0")
    a("v_lshlrev_b32 v11, 3, v0")
    a("v_sub_u32 v11, 2047, v11")
    a("v_add_u32 v10, %d, v10" % K3_MS2)
    a("s_mov_b32 s59, 0xffff0000")
    a("s_mov_b32 s34, 0")
    a("s_mov_b32 s35, 0")
    a.label("L_%s_rl" % name)
    a("""
    s_set_gpr_idx_on s34, gpr_idx(SRC0)
    s_nop 0
    v_mov_b32 v2, v64
    v_mov_b32 v3, v65
    v_mov_b32 v4, v66
    s_set_gpr_idx_off
    """)
    ln_finalize(a, 2, 3, 12, 13, 14, sc)
    a("""
    v_fma_f32 v15, -v12, v8, v4
    v_mul_f32 v15, v15, v13
    v_cvt_pk_bf16_f32 v15, v15, v15
    v_lshlrev_b32 v15, 16, v15
    v_ashrrev_i32 v16, 31, v15
    v_or_b32 v16, 0x80000000, v16
    v_xor_b32 v15, v15, v16
    v_and_or_b32 v15, v15, s59, v11
    ds_write_b64 v10, v[12:13]
    v_add_u32 v10, 8, v10
    v_subrev_u32 v11, 1, v11
    s_set_gpr_idx_on s35, gpr_idx(DST)
    s_nop 0
    v_mov_b32 v20, v15
    s_set_gpr_idx_off
    s_add_u32 s34, s34, 4
    s_add_u32 s35, s35, 1
    s_cmp_lt_u32 s35, 8
    s_cbranch_scc1 L_%s_rl
    """ % name)
    net = [(0, 1), (2, 3), (4, 5), (6, 7), (0, 2), (1, 3), (4, 6), (5, 7), (1, 2), (5, 6),
           (0, 4), (1, 5), (2, 6), (3, 7), (2, 4), (3, 5), (1, 2), (3, 4), (5, 6)]
    for (i, j) in net:
        a("v_max_u32 v12, v%d, v%d" % (20 + i, 20 + j))
        a("v_min_u32 v%d, v%d, v%d" % (20 + j, 20 + i, 20 + j))
        a("v_mov_b32 v%d, v12" % (20 + i))
    a("v_mov_b32 v30, 0")
    a("v_mov_b32 v31, 0")
    a("s_mov_b32 s34, 0")
    a.label("L_%s_rd" % name)
    a("v_mov_b32 v12, v20")
    a("s_nop 1")
    for sh in (1, 2, 4, 8):
        a("v_max_u32_dpp v12, v12, v12 row_ror:%d row_mask:0xf bank_mask:0xf" % sh)
        a("s_nop 1")
    bfly(a, "v_max_u32", [12], [13])
    a("v_cmp_eq_u32 vcc, v12, v20")
    a("v_cmp_eq_u32 s[60:61], s34, v1")
    a("s_add_u32 s34, s34, 1")
    for i in range(7):
        a("v_cndmask_b32 v%d, v%d, v%d, vcc" % (20 + i, 20 + i, 21 + i))
    a("v_cndmask_b32 v27, v27, v31, vcc")
    a("v_cndmask_b32 v30, v30, v12, s[60:61]")
    a("s_cmp_lt_u32 s34, 8")
    a("s_cbranch_scc1 L_%s_rd" % name)
    if DRY:
        a("s_cmp_eq_u32 s99, 0")
        a("s_cbranch_scc0 L_%s_r2" % name)
        a("s_mov_b32 s99, 1")
        a("s_mov_b64 exec, -1")
        a("s_branch L_%s_r0" % name)
        a.label("L_%s_r2" % name)
    a("""
    s_lshl_b32 s34, s33, 5
    v_lshlrev_b32 v12, 2, v1
    v_add_u32 v12, s34, v12
    v_add_u32 v12, %d, v12
    v_cmp_gt_u32 vcc, 8, v1
    s_and_saveexec_b64 s[62:63], vcc
    ds_write_b32 v12, v30
    s_mov_b64 exec, s[62:63]
    s_lshl_b32 s34, s33, 2
    v_mov_b32 v12, s34
    v_add_u32 v12, %d, v12
    v_mov_b32 v13, 1
    ds_write_b32 v12, v13
    v_mov_b32 v12, %d
    """ % (K3_CAND2, K3_FLG, K3_FLG))
    a.label("L_%s_poll" % name)
    a("""
    ds_read_b128 v[32:35], v12
    s_waitcnt lgkmcnt(0)
    v_and_b32 v32, v32, v33
    v_and_b32 v34, v34, v35
    v_and_b32 v32, v32, v34
    v_cmp_eq_u32 vcc, 1, v32
    s_cbranch_vccz L_%s_poll
    """ % name)
    a("v_and_b32 v12, 31, v1")
    a("v_lshlrev_b32 v12, 2, v12")
    a("v_add_u32 v12, %d, v12" % K3_CAND2)
    a("ds_read_b32 v30, v12")
    a("v_mov_b32 v13, %d" % K3_CAND2)
    for i in range(8):
        a("ds_read_b128 %s, v13 offset:%d" % (vr(32 + 4 * i, 4), 16 * i))
    a("v_mov_b32 v14, 0")
    a("s_waitcnt lgkmcnt(0)")
    for i in range(32):
        a("v_cmp_gt_u32 vcc, v%d, v30" % (32 + i))
        a("v_addc_co_u32 v14, vcc, 0, v14, vcc")
    a("""
    v_cmp_gt_u32 vcc, 8, v14
    v_cmp_gt_u32 s[60:61], 32, v1
    s_and_b64 vcc, vcc, s[60:61]
    v_lshlrev_b32 v14, 2, v14
    v_add_u32 v14, %d, v14
    s_and_saveexec_b64 s[62:63], vcc
    ds_write_b32 v14, v30
    s_mov_b64 exec, s[62:63]
    s_waitcnt lgkmcnt(0)
    v_lshrrev_b32 v12, 5, v0
    v_lshlrev_b32 v12, 2, v12
    v_add_u32 v12, %d, v12
    ds_read_b32 v31, v12
    s_waitcnt lgkmcnt(0)
    v_and_b32 v13, 0xffff, v31
    v_sub_u32 v13, 2047, v13
    v_lshlrev_b32 v14, 10, v13
    v_and_b32 v15, 31, v0
    v_lshl_add_u32 v14, v15, 5, v14
    buffer_load_dwordx4 v[32:35], v14, s[8:11], 0 offen
    buffer_load_dwordx4 v[36:39], v14, s[8:11], 0 offen offset:16
    v_lshlrev_b32 v16, 3, v13
    v_add_u32 v16, %d, v16
    ds_read_b64 v[40:41], v16
    """ % (K3_SEL2, K3_SEL2, K3_MS2))
    a("""
    v_lshrrev_b32 v12, 5, v0
    v_mul_u32_u24 v12, 1040, v12
    v_lshl_add_u32 v12, v15, 5, v12
    v_add_u32 v12, %d, v12
    v_lshrrev_b32 v11, 4, v1
    v_bfe_u32 v10, v1, 2, 2
    v_lshl_add_u32 v17, v11, 3, v10
    v_lshlrev_b32 v17, 7, v17
    v_lshrrev_b32 v18, 1, v10
    v_and_b32 v19, 1, v11
    v_lshl_or_b32 v18, v19, 1, v18
    v_xor_b32 v18, s33, v18
    v_lshl_add_u32 v17, v18, 5, v17
    v_and_b32 v18, 3, v1
    v_lshl_add_u32 v8, v18, 3, v17
    v_add_u32 v9, %d, v8
    v_and_b32 v17, 7, v1
    v_mul_u32_u24 v17, 1040, v17
    v_lshl_add_u32 v17, v11, 4, v17
    v_add_u32 v17, %d, v17
    """ % (K3_XS2, K3_U, K3_XS2))
    a("v_mov_b32 v121, v14")
    a("s_waitcnt vmcnt(0) lgkmcnt(0)")
    for r in range(8):
        norm_pair(a, 32 + r, 40, 41, "xn")
    a("ds_write_b128 v12, v[32:35]")
    a("ds_write_b128 v12, v[36:39] offset:16")
    a("""
    v_and_b32 v51, 0xffff0000, v31
    v_ashrrev_i32 v50, 31, v51
    v_not_b32 v50, v50
    v_or_b32 v50, 0x80000000, v50
    v_xor_b32 v51, v51, v50
    v_and_b32 v51, 0xffff0000, v51
    v_mul_f32 v52, 0x%x, v51
    v_exp_f32 v52, v52
    s_nop 0
    v_add_f32 v52, 1.0, v52
    v_rcp_f32 v52, v52
    s_nop 0
    v_cvt_pk_bf16_f32 v52, v52, v52
    v_lshlrev_b32 v52, 16, v52
    """ % f2u(-LOG2E))
    a("s_cmp_lg_u32 s2, 0")
    a("s_cbranch_scc1 L_%s_nopub" % name)
    a("""
    v_lshlrev_b32 v12, 5, v0
    buffer_store_dwordx4 v[32:35], v12, s[48:51], 0 offen
    buffer_store_dwordx4 v[36:39], v12, s[48:51], 0 offen offset:16
    v_lshrrev_b32 v12, 5, v0
    v_lshlrev_b32 v12, 2, v12
    v_and_b32 v15, 31, v0
    v_cmp_eq_u32 vcc, 0, v15
    v_mov_b32 v53, 0x7ffffff0
    s_nop 0
    v_cndmask_b32 v12, v53, v12, vcc
    buffer_store_dword v13, v12, s[44:47], 0 offen
    buffer_store_dword v52, v12, s[44:47], 0 offen offset:32
    """)
    a.label("L_%s_nopub" % name)
    a("s_waitcnt lgkmcnt(0)")
    a("s_barrier")
    FR = [64, 76]

    def rd(s):
        F = FR[s & 1]
        return ["ds_read_b64_tr_b16 %s, v8 offset:%d" % (vr(F, 2), 4096 * s),
                "ds_read_b64_tr_b16 %s, v8 offset:%d" % (vr(F + 2, 2), 4096 * s + 512),
                "ds_read_b64_tr_b16 %s, v9 offset:%d" % (vr(F + 4, 2), 4096 * s),
                "ds_read_b64_tr_b16 %s, v9 offset:%d" % (vr(F + 6, 2), 4096 * s + 512),
                "ds_read_b128 %s, v17 offset:%d" % (vr(F + 8, 4), 64 * s)]
    for x in rd(0):
        a(x)
    for r in range(96, 104):
        a("v_mov_b32 v%d, 0" % r)
    a("s_mov_b32 s34, 0")
    a.label("L_%s_gu" % name)
    for x in rd(1):
        a(x)
    a("s_waitcnt lgkmcnt(5)")
    a("v_mfma_f32_16x16x32_bf16 v[96:99], %s, %s, v[96:99]" % (vr(64, 4), vr(72, 4)))
    a("v_mfma_f32_16x16x32_bf16 v[100:103], %s, %s, v[100:103]" % (vr(68, 4), vr(72, 4)))
    for x in rd(2):
        a(x)
    a("s_waitcnt lgkmcnt(5)")
    a("v_mfma_f32_16x16x32_bf16 v[96:99], %s, %s, v[96:99]" % (vr(76, 4), vr(84, 4)))
    a("v_mfma_f32_16x16x32_bf16 v[100:103], %s, %s, v[100:103]" % (vr(80, 4), vr(84, 4)))
    a("""
    v_add_u32 v8, 8192, v8
    v_add_u32 v9, 8192, v9
    v_add_u32 v17, 128, v17
    s_add_u32 s34, s34, 1
    s_cmp_lt_u32 s34, 8
    s_cbranch_scc1 L_%s_gu
    s_waitcnt lgkmcnt(0)
    """ % name)
    a("s_mov_b32 s34, 0x%x" % f2u(-LOG2E))
    a("""
    v_and_b32 v10, 15, v1
    v_mul_u32_u24 v10, %d, v10
    v_lshrrev_b32 v11, 4, v1
    v_lshl_add_u32 v12, v11, 3, v10
    s_lshl_b32 s35, s33, 5
    v_add_u32 v12, s35, v12
    v_add_u32 v12, %d, v12
    v_lshl_add_u32 v13, v11, 4, v10
    v_add_u32 v13, %d, v13
    """ % (K3_HP, K3_H, K3_H))
    for r in range(4):
        rbf(a, 96 + r)
        rbf(a, 100 + r)
    for r in range(4):
        a("v_mul_f32 v%d, s34, v%d" % (104 + r, 96 + r))
        a("v_exp_f32 v%d, v%d" % (104 + r, 104 + r))
    a("s_nop 0")
    for r in range(4):
        a("v_add_f32 v%d, 1.0, v%d" % (104 + r, 104 + r))
        a("v_rcp_f32 v%d, v%d" % (104 + r, 104 + r))
    a("s_nop 0")
    for r in range(4):
        a("v_mul_f32 v%d, v%d, v%d" % (96 + r, 96 + r, 104 + r))
        rbf(a, 96 + r)
        a("v_mul_f32 v%d, v%d, v%d" % (96 + r, 96 + r, 100 + r))
    a("v_cvt_pk_bf16_f32 v96, v96, v97")
    a("v_cvt_pk_bf16_f32 v97, v98, v99")
    a("ds_write_b64 v12, v[96:97]")
    a("s_waitcnt lgkmcnt(0)")
    a("s_barrier")
    a("ds_read_b128 v[64:67], v13")
    a("ds_read_b128 v[68:71], v13 offset:64")
    a("""
    v_lshrrev_b32 v10, 5, v1
    v_lshlrev_b32 v8, 4, v10
    v_bfe_u32 v10, v1, 4, 1
    v_lshl_add_u32 v8, v10, 2, v8
    v_bfe_u32 v10, v1, 2, 2
    v_add_u32 v8, v8, v10
    v_mul_u32_u24 v8, %d, v8
    v_and_b32 v10, 3, v1
    v_lshl_add_u32 v8, v10, 3, v8
    s_lshl_b32 s35, s33, 8
    v_add_u32 v8, s35, v8
    v_and_b32 v10, 15, v1
    v_lshlrev_b32 v14, 11, v10
    v_lshrrev_b32 v11, 4, v1
    v_lshl_add_u32 v14, v11, 4, v14
    s_lshl_b32 s35, s33, 9
    s_lshl_b32 s36, s2, 14
    s_add_u32 s35, s35, s36
    v_add_u32 v14, s35, v14
    v_cmp_gt_u32 vcc, 8, v10
    v_mov_b32 v15, 0x7ffffff0
    s_nop 0
    v_cndmask_b32 v14, v15, v14, vcc
    """ % K3_WDP)
    a("s_barrier")
    for ct in range(8):
        for s in range(2):
            b = 128 + 8 * ct + 4 * s
            a("ds_read_b64_tr_b16 %s, v8 offset:%d" % (vr(b, 2), K3_G + 32 * s * K3_WDP + 32 * ct))
            a("ds_read_b64_tr_b16 %s, v8 offset:%d" % (vr(b + 2, 2), K3_G + (32 * s + 8) * K3_WDP + 32 * ct))
    a("s_waitcnt lgkmcnt(0)")
    for ct in range(8):
        b = 128 + 8 * ct
        a("v_mfma_f32_16x16x32_bf16 %s, %s, v[64:67], 0" % (vr(72 + 4 * ct, 4), vr(b, 4)))
        a("v_mfma_f32_16x16x32_bf16 %s, %s, v[68:71], %s" % (vr(72 + 4 * ct, 4), vr(b + 4, 4), vr(72 + 4 * ct, 4)))
    a("s_nop 7")
    for ct in range(8):
        a("buffer_store_dwordx4 %s, v14, s[52:55], 0 offen offset:%d" % (vr(72 + 4 * ct, 4), 64 * ct))
    a.label("L_%s_end" % name)
    a("s_endpgm")
    return name, a.text() + kdesc(name, 192, 0)


def gen_k4(layer):
    a = Asm()
    name = "k4l%d_kernel" % layer
    khead(a, name)
    a("s_cmp_ge_u32 s2, 8")
    a("s_cbranch_scc1 L_%s_end" % name)
    a("s_load_dwordx2 s[24:25], s[0:1], 80")
    a("s_load_dwordx2 s[26:27], s[0:1], 64")
    a("s_waitcnt lgkmcnt(0)")
    srd(a, 4, 24, 25, SLAB_OFF[layer], 28 * 16384)
    srd(a, 8, 24, 25, X1_OFF, 2 * MB)
    if layer == 0:
        srd(a, 12, 24, 25, X2_OFF, 2 * MB)
    else:
        srd(a, 12, 26, 27, 0, 2 * MB)
    srd(a, 16, 24, 25, SEL_OFF[layer], 64)
    srd(a, 20, 24, 25, XS_OFF[layer], 8192)
    a("""
    s_lshl_b32 s3, s2, 2
    v_mov_b32 v2, s3
    buffer_load_dword v3, v2, s[16:19], 0 offen
    buffer_load_dword v4, v2, s[16:19], 0 offen offset:32
    s_lshl_b32 s3, s2, 10
    v_lshlrev_b32 v5, 2, v0
    v_add_u32 v6, s3, v5
    buffer_load_dword v7, v6, s[20:23], 0 offen
    s_lshl_b32 s3, s2, 11
    v_lshlrev_b32 v8, 3, v0
    v_add_u32 v8, s3, v8
    """)
    for p in range(28):
        a("s_mov_b32 s3, %d" % (16384 * p))
        a("buffer_load_dwordx2 %s, v8, s[4:7], s3 offen" % vr(16 + 2 * p, 2))
    a("s_waitcnt vmcnt(30)")
    a("v_lshl_add_u32 v9, v3, 10, v5")
    a("buffer_load_dword v10, v9, s[8:11], 0 offen")
    a("s_waitcnt vmcnt(1)")
    for p in range(1, 28):
        a("v_add_f32 v16, v16, v%d" % (16 + 2 * p))
        a("v_add_f32 v17, v17, v%d" % (17 + 2 * p))
    a("""
    v_cvt_pk_bf16_f32 v40, v16, v17
    v_lshlrev_b32 v41, 16, v40
    v_and_b32 v42, 0xffff0000, v40
    v_mul_f32 v41, v41, v4
    v_mul_f32 v42, v42, v4
    v_cvt_pk_bf16_f32 v40, v41, v42
    v_lshlrev_b32 v41, 16, v40
    v_and_b32 v42, 0xffff0000, v40
    v_lshlrev_b32 v43, 16, v7
    v_and_b32 v44, 0xffff0000, v7
    v_add_f32 v41, v41, v43
    v_add_f32 v42, v42, v44
    v_cvt_pk_bf16_f32 v40, v41, v42
    v_lshlrev_b32 v41, 16, v40
    v_and_b32 v42, 0xffff0000, v40
    s_waitcnt vmcnt(0)
    v_lshlrev_b32 v43, 16, v10
    v_and_b32 v44, 0xffff0000, v10
    v_add_f32 v41, v41, v43
    v_add_f32 v42, v42, v44
    v_cvt_pk_bf16_f32 v40, v41, v42
    buffer_store_dword v40, v9, s[12:15], 0 offen
    """)
    a.label("L_%s_end" % name)
    a("s_endpgm")
    return name, a.text() + kdesc(name, 80, 0)


def build_parts():
    parts = []
    launches = []
    for layer in range(2):
        for g, grid, blk, lds in ((gen_k1, 256, 512, K1_LDS2), (gen_k2, 256, 512, K2_LDS2), (gen_k3, 256, 512, K3_LDS2), (gen_k4, 8, 256, 0)):
            n, t = g(layer)
            parts.append(t)
            launches.append("; @launch kernel=%s grid=(%d,1,1) block=(%d,1,1) lds=%d" % (n, grid, blk, lds))
    return parts, launches


def main(out):
    parts, launches = build_parts()
    txt = HEADER + "\n".join(launches) + "\n" + '.amdgcn_target "amdgcn-amd-amdhsa--gfx950"\n' + "\n".join(parts)
    open(out, "w").write(txt)


if __name__ == "__main__":
    main(sys.argv[1] if len(sys.argv) > 1 else "interleave_layers__sliding_local_dilated__moe_arch_mod__prompt.s")
```

```python
from gen import *
import gen

ROT = True
K1_MISC = 0
K1_S0 = 1024
K1_SLOT = 36864
K1_AW = 12288
K1_LDS2 = K1_S0 + 4 * K1_SLOT


def gen_k1(layer):
    a = Asm()
    name = "k1l%d_kernel" % layer
    khead(a, name)
    a("s_cmp_ge_u32 s2, 256")
    a("s_cbranch_scc1 L_%s_end" % name)
    a("s_load_dwordx4 s[20:23], s[0:1], 0")
    a("s_load_dwordx2 s[24:25], s[0:1], 80")
    a("""
    s_and_b32 s3, s2, 7
    s_lshr_b32 s26, s2, 3
    s_lshl_b32 s27, s3, 2
    s_and_b32 s30, s26, 3
    s_add_u32 s27, s27, s30
    s_lshr_b32 s28, s26, 2
    v_lshrrev_b32 v1, 6, v0
    s_nop 0
    v_readfirstlane_b32 s29, v1
    v_and_b32 v1, 63, v0
    s_lshl_b32 s32, s28, 7
    s_mov_b32 s40, 0x%x
    s_mov_b32 s41, 0x%x
    s_cmp_lt_u32 s29, 4
    s_cbranch_scc1 L_%s_mm
    """ % (f2u(1.0 / 512), f2u(1e-5), name))
    sc = {"r512": 40, "eps": 41}

    def stats_ops(src, acc, t):
        ops = []
        for r in range(4):
            ops.append("v_lshlrev_b32 v%d, 16, v%d" % (t, src + r))
            ops.append("v_and_b32 v%d, 0xffff0000, v%d" % (t + 1, src + r))
            ops.append("v_add_f32 v%d, v%d, v%d" % (acc, acc, t))
            ops.append("v_add_f32 v%d, v%d, v%d" % (acc + 1, acc + 1, t + 1))
            ops.append("v_fma_f32 v%d, v%d, v%d, v%d" % (acc + 2, t, t, acc + 2))
            ops.append("v_fma_f32 v%d, v%d, v%d, v%d" % (acc + 3, t + 1, t + 1, acc + 3))
        return ops

    def stats_fin(acc, vrow):
        a("v_add_f32 v%d, v%d, v%d" % (acc, acc, acc + 1))
        a("v_add_f32 v%d, v%d, v%d" % (acc + 2, acc + 2, acc + 3))
        for m in ("quad_perm:[1,0,3,2]", "quad_perm:[2,3,0,1]", "row_half_mirror"):
            a("s_nop 1")
            a("v_add_f32_dpp v%d, v%d, v%d %s row_mask:0xf bank_mask:0xf" % (acc, acc, acc, m))
            a("v_add_f32_dpp v%d, v%d, v%d %s row_mask:0xf bank_mask:0xf" % (acc + 2, acc + 2, acc + 2, m))
        ln_finalize(a, acc, acc + 2, acc + 1, acc + 3, 36, sc)
        a("v_lshlrev_b32 v%d, 2, v%d" % (vrow, vrow))
        a("ds_write_b32 v%d, v%d offset:%d" % (vrow, acc + 1, K1_MISC))
        a("ds_write_b32 v%d, v%d offset:%d" % (vrow, acc + 3, K1_MISC + 512))

    a("s_sub_u32 s29, s29, 4")
    a("v_and_b32 v0, 255, v0")
    a("""
    s_lshl_b32 s30, s27, 6
    s_sub_u32 s30, s30, 16
    s_mul_i32 s31, s29, 24
    v_lshrrev_b32 v10, 3, v1
    v_add_u32 v10, s31, v10
    v_and_b32 v11, 7, v1
    """)
    for i in range(3):
        a("v_add_u32 v12, %d, v10" % (8 * i))
        a("v_bfe_u32 v13, v12, 1, 3")
        a("v_xor_b32 v13, v13, v11")
        a("v_add_u32 v14, s30, v12")
        a("v_lshlrev_b32 v14, 10, v14")
        a("v_lshl_add_u32 v%d, v13, 4, v14" % (2 + i))
        a("v_cmp_gt_u32 vcc, 80, v12")
        a("v_mov_b32 v13, 0x7ff00000")
        a("s_nop 0")
        a("v_cndmask_b32 v%d, v13, v%d, vcc" % (2 + i, 2 + i))
    a("""
    v_lshrrev_b32 v10, 3, v1
    v_mul_u32_u24 v12, 3072, v10
    v_bfe_u32 v13, v10, 1, 1
    v_lshlrev_b32 v13, 1, v13
    v_xor_b32 v13, v13, v11
    v_lshl_add_u32 v5, v13, 4, v12
    v_xor_b32 v13, 4, v13
    v_lshl_add_u32 v6, v13, 4, v12
    """)
    a("s_mul_i32 s31, s29, 6")
    for i in range(6):
        a("s_add_u32 s34, s31, %d" % i)
        a("s_and_b32 s35, s34, 7")
        a("s_mul_i32 s35, s35, 24576")
        a("s_lshr_b32 s34, s34, 3")
        a("s_lshl_b32 s34, s34, 10")
        a("s_add_u32 s35, s35, s34")
        a("s_add_u32 s%d, s35, s32" % (46 + i))
    a("s_mul_i32 s52, s29, 3072")
    a("s_add_u32 s52, s52, %d" % K1_S0)
    a("s_mul_i32 s53, s29, 6144")
    a("s_add_u32 s53, s53, %d" % (K1_S0 + K1_AW))
    a("""
    v_lshrrev_b32 v10, 3, v0
    v_and_b32 v11, 7, v0
    v_lshlrev_b32 v11, 4, v11
    v_add_u32 v44, 32, v10
    v_lshl_add_u32 v28, v44, 7, v11
    v_add_u32 v28, %d, v28
    v_add_u32 v45, 64, v10
    v_min_u32 v45, 79, v45
    v_lshl_add_u32 v48, v45, 7, v11
    v_add_u32 v48, %d, v48
    """ % (K1_S0, K1_S0))
    for sl in range(1, 4):
        a("v_add_u32 v%d, %d, v28" % (28 + sl, sl * K1_SLOT))
        a("v_add_u32 v%d, %d, v48" % (48 + sl, sl * K1_SLOT))
    for r in list(range(32, 36)) + list(range(52, 56)):
        a("v_mov_b32 v%d, 0" % r)
    a("s_waitcnt lgkmcnt(0)")
    if layer == 0:
        srd(a, 4, 20, 21, 0, 2 * MB)
    else:
        srd(a, 4, 24, 25, X2_OFF, 2 * MB)
    srd(a, 8, 22, 23, 0, 512 * 3072)
    srd(a, 16, 24, 25, ST_OFF[layer], 49152)

    def issue(c):
        sl = (c & 3) * K1_SLOT
        if ROT:
            a("s_add_u32 s35, s26, %d" % c)
            a("s_and_b32 s35, s35, 7")
            a("s_lshl_b32 s34, s35, 7")
            a("s_mul_i32 s35, s35, %d" % (64 * 3072))
        else:
            a("s_mov_b32 s34, %d" % (128 * c))
            a("s_mov_b32 s35, %d" % (c * 64 * 3072))
        for i in range(3):
            a("s_add_u32 m0, s52, %d" % (sl + 1024 * i))
            a("s_nop 0")
            a("buffer_load_dwordx4 v%d, s[4:7], s34 offen lds" % (2 + i))
        for i in range(6):
            a("s_add_u32 s34, s%d, s35" % (46 + i))
            a("s_add_u32 m0, s53, %d" % (sl + 1024 * i))
            a("s_nop 0")
            a("buffer_load_dwordx4 v%d, s[8:11], s34 offen lds" % (5 + (i & 1)))

    a("""
    v_lshlrev_b32 v10, 4, v0
    s_lshl_b32 s34, s2, 6
    s_add_u32 s34, s34, 32640
    v_add_u32 v12, s34, v10
    s_lshl_b32 s34, s2, 7
    v_add_u32 v10, s34, v10
    v_cmp_gt_u32 vcc, 12, v0
    v_mov_b32 v11, 0x7ffffff0
    s_nop 0
    v_cndmask_b32 v12, v11, v12, vcc
    v_cmp_gt_u32 vcc, 8, v0
    s_nop 1
    v_cndmask_b32 v10, v12, v10, vcc
    buffer_store_dwordx4 v[32:35], v10, s[16:19], 0 offen
    """)
    for c in range(3):
        issue(c)
    for c in range(8):
        issued_hi = min(c + 2, 7)
        need = min(c + 1, 7)
        a("s_waitcnt vmcnt(%d)" % (9 * (issued_hi - need)))
        a("s_barrier")
        if c + 3 < 8:
            issue(c + 3)
        a("ds_read_b128 v[40:43], v%d" % (28 + (c & 3)))
        a("ds_read_b128 v[56:59], v%d" % (48 + (c & 3)))
        a("s_waitcnt lgkmcnt(0)")
        for op in stats_ops(40, 32, 36) + stats_ops(56, 52, 36):
            a(op)
    stats_fin(32, 44)
    stats_fin(52, 45)
    a("""
    s_waitcnt lgkmcnt(0)
    s_barrier
    s_endpgm
    """)
    a.label("L_%s_mm" % name)
    a("""
    v_and_b32 v10, 15, v1
    v_lshrrev_b32 v11, 4, v1
    v_bfe_u32 v12, v10, 1, 3
    v_xor_b32 v12, v12, v11
    v_lshlrev_b32 v12, 4, v12
    v_lshl_add_u32 v16, v10, 7, v12
    v_add_u32 v16, %d, v16
    v_xor_b32 v20, 64, v16
    """ % K1_S0)
    a("""
    v_bfe_u32 v10, v1, 2, 2
    v_lshl_add_u32 v12, v11, 3, v10
    v_lshlrev_b32 v12, 7, v12
    v_lshrrev_b32 v13, 1, v10
    v_and_b32 v14, 1, v11
    v_lshl_or_b32 v13, v14, 1, v13
    v_xor_b32 v13, s29, v13
    v_lshl_add_u32 v12, v13, 5, v12
    v_and_b32 v13, 3, v1
    v_lshl_add_u32 v24, v13, 3, v12
    v_add_u32 v24, %d, v24
    """ % (K1_S0 + K1_AW))
    a("""
    v_lshrrev_b32 v172, 3, v0
    v_and_b32 v11, 7, v0
    v_lshlrev_b32 v11, 4, v11
    v_lshl_add_u32 v28, v172, 7, v11
    v_add_u32 v28, %d, v28
    """ % K1_S0)
    for sl in range(1, 4):
        for b in (16, 20, 24, 28):
            a("v_add_u32 v%d, %d, v%d" % (b + sl, sl * K1_SLOT, b))
    for r in range(32, 36):
        a("v_mov_b32 v%d, 0" % r)
    for r in range(36, 40):
        a("v_mov_b32 v%d, 0x%x" % (r, ONES_BF))
    a("s_waitcnt lgkmcnt(0)")
    srd(a, 12, 24, 25, O_OFF, 2 * MB)
    AF = [40, 60]
    BF = [80, 92]
    ACC = 104
    QA, KA, VA, CS = ACC, ACC + 16, ACC + 36, ACC + 56

    def reads(c, sp):
        sl = c & 3
        st = sp
        o = []
        for seg in range(3):
            off = seg * 8192 + sp * 4096
            o.append("ds_read_b64_tr_b16 %s, v%d offset:%d" % (vr(BF[st] + 4 * seg, 2), 24 + sl, off))
            o.append("ds_read_b64_tr_b16 %s, v%d offset:%d" % (vr(BF[st] + 4 * seg + 2, 2), 24 + sl, off + 512))
        for t in (1, 2, 3, 4, 0):
            o.append("ds_read_b128 %s, v%d offset:%d" % (vr(AF[st] + 4 * t, 4), (16 if sp == 0 else 20) + sl, t * 2048))
        return o

    def mfmas(first, st, fill=()):
        A, B = AF[st], BF[st]
        mf = []
        for t in range(4):
            mf.append((QA + 4 * t, vr(B, 4), vr(A + 4 * (t + 1), 4)))
        for t in range(5):
            mf.append((KA + 4 * t, vr(B + 4, 4), vr(A + 4 * t, 4)))
        for t in range(5):
            mf.append((VA + 4 * t, vr(A + 4 * t, 4), vr(B + 8, 4)))
        mf.append((CS, vr(B, 4), "v[36:39]"))
        mf.append((CS + 4, vr(B + 4, 4), "v[36:39]"))
        mf.append((CS + 8, "v[36:39]", vr(B + 8, 4)))
        fi = 0
        for (acc, x, y) in mf:
            a("v_mfma_f32_16x16x32_bf16 %s, %s, %s, %s" % (vr(acc, 4), x, y, "0" if first else vr(acc, 4)))
            n = 0
            while fi < len(fill) and n < 2:
                n += 2 if fill[fi].startswith("ds_") else 1
                a(fill[fi]); fi += 1
        while fi < len(fill):
            a(fill[fi]); fi += 1

    for c in range(8):
        a("s_barrier")
        if c == 0:
            for x in reads(0, 0):
                a(x)
        a("s_waitcnt lgkmcnt(0)")
        mfmas(c == 0, 0, reads(c, 1) + ["ds_read_b128 v[176:179], v%d" % (28 + (c & 3))])
        a("s_waitcnt lgkmcnt(0)")
        mfmas(False, 1, (reads(c + 1, 0) if c < 7 else []) + stats_ops(176, 32, 180))
    stats_fin(32, 172)
    a("s_waitcnt lgkmcnt(0)")
    a("s_barrier")
    a("""
    v_and_b32 v10, 15, v1
    v_lshlrev_b32 v10, 2, v10
    v_lshrrev_b32 v11, 4, v1
    v_lshlrev_b32 v11, 4, v11
    """)
    for t in range(5):
        a("ds_read_b32 v%d, v10 offset:%d" % (40 + t, K1_MISC + 64 * t))
        a("ds_read_b32 v%d, v10 offset:%d" % (45 + t, K1_MISC + 512 + 64 * t))
    for t in range(5):
        a("ds_read_b128 %s, v11 offset:%d" % (vr(52 + 8 * t, 4), K1_MISC + 64 * t))
        a("ds_read_b128 %s, v11 offset:%d" % (vr(56 + 8 * t, 4), K1_MISC + 512 + 64 * t))
    a("""
    v_and_b32 v188, 15, v1
    v_lshrrev_b32 v189, 4, v1
    v_and_b32 v190, 1, v1
    v_lshl_add_u32 v189, v189, 2, v190
    v_cmp_eq_u32 s[44:45], 1, v190
    v_cmp_le_u32 s[46:47], v189, v188
    v_add_u32 v189, 2, v189
    v_cmp_le_u32 s[48:49], v189, v188
    v_lshlrev_b32 v190, 4, v190
    s_cmp_eq_u32 s27, 0
    s_cselect_b32 s35, 0x%x, 0
    v_mov_b32 v191, s35
    v_mov_b32 v193, 0
    v_cndmask_b32 v192, v191, v193, s[46:47]
    v_cndmask_b32 v191, v191, v193, s[48:49]
    s_mov_b32 s42, 0x%x
    """ % (f2u(-1e30), f2u(0.25 * LOG2E)))
    a("s_waitcnt lgkmcnt(0)")
    QF, KF, VF = 196, 204, 214

    def norm(acc, cs_regs, m_regs, i_regs, dst):
        for r in range(4):
            a("v_fma_f32 v%d, -v%d, v%d, v%d" % (acc + r, m_regs[r], cs_regs[r], acc + r))
        for r in range(4):
            a("v_mul_f32 v%d, v%d, v%d" % (acc + r, i_regs[r], acc + r))
        a("v_cvt_pk_bf16_f32 v%d, v%d, v%d" % (dst, acc, acc + 1))
        a("v_cvt_pk_bf16_f32 v%d, v%d, v%d" % (dst + 1, acc + 2, acc + 3))

    for t in range(4):
        norm(QA + 4 * t, [CS + r for r in range(4)], [41 + t] * 4, [46 + t] * 4, QF + 2 * t)
    for t in range(5):
        norm(KA + 4 * t, [CS + 4 + r for r in range(4)], [40 + t] * 4, [45 + t] * 4, KF + 2 * t)
    for t in range(5):
        norm(VA + 4 * t, [CS + 8] * 4, [52 + 8 * t + r for r in range(4)], [56 + 8 * t + r for r in range(4)], VF + 2 * t)
    a("s_nop 1")
    SS = 104
    for t in range(4):
        q = vr(QF + 2 * t, 2)
        a("v_mfma_f32_16x16x16_bf16 %s, %s, %s, 0" % (vr(SS + 8 * t, 4), vr(KF + 2 * t, 2), q))
        a("v_mfma_f32_16x16x16_bf16 %s, %s, %s, 0" % (vr(SS + 8 * t + 4, 4), vr(KF + 2 * t + 2, 2), q))
    a("s_nop 7")
    E = 140
    for u in range(4):
        Sp, Sc = SS + 8 * u, SS + 8 * u + 4
        a("v_cndmask_b32 v194, v%d, v%d, s[44:45]" % (Sc, Sc + 1))
        a("v_cndmask_b32 v195, v%d, v%d, s[44:45]" % (Sp, Sp + 1))
        a("v_cndmask_b32 v%d, v195, v194, s[46:47]" % (E + 2 * u))
        a("v_cndmask_b32 v194, v%d, v%d, s[44:45]" % (Sc + 2, Sc + 3))
        a("v_cndmask_b32 v195, v%d, v%d, s[44:45]" % (Sp + 2, Sp + 3))
        a("v_cndmask_b32 v%d, v195, v194, s[48:49]" % (E + 1 + 2 * u))
    for u in range(4):
        a("v_cvt_pk_bf16_f32 v194, v%d, v%d" % (E + 2 * u, E + 1 + 2 * u))
        a("v_lshlrev_b32 v%d, 16, v194" % (E + 2 * u))
        a("v_and_b32 v%d, 0xffff0000, v194" % (E + 1 + 2 * u))
        b0, b1 = (192, 191) if u == 0 else (193, 193)
        a("v_fma_f32 v%d, v%d, s42, v%d" % (E + 2 * u, E + 2 * u, b0))
        a("v_fma_f32 v%d, v%d, s42, v%d" % (E + 1 + 2 * u, E + 1 + 2 * u, b1))
        a("v_max_f32 v%d, v%d, v%d" % (148 + u, E + 2 * u, E + 1 + 2 * u))
    bfly(a, "v_max_f32", [148, 149, 150, 151], [152, 153, 154, 155])
    for u in range(4):
        a("v_sub_f32 v%d, v%d, v%d" % (E + 2 * u, E + 2 * u, 148 + u))
        a("v_sub_f32 v%d, v%d, v%d" % (E + 1 + 2 * u, E + 1 + 2 * u, 148 + u))
        a("v_exp_f32 v%d, v%d" % (E + 2 * u, E + 2 * u))
        a("v_exp_f32 v%d, v%d" % (E + 1 + 2 * u, E + 1 + 2 * u))
    a("s_nop 0")
    for u in range(4):
        a("v_add_f32 v%d, v%d, v%d" % (148 + u, E + 2 * u, E + 1 + 2 * u))
    bfly(a, "v_add_f32", [148, 149, 150, 151], [152, 153, 154, 155])
    for u in range(4):
        a("v_rcp_f32 v%d, v%d" % (148 + u, 148 + u))
    a("s_nop 0")
    for u in range(4):
        a("v_mul_f32 v%d, v%d, v%d" % (E + 2 * u, E + 2 * u, 148 + u))
        a("v_mul_f32 v%d, v%d, v%d" % (E + 1 + 2 * u, E + 1 + 2 * u, 148 + u))
        a("v_cvt_pk_bf16_f32 v194, v%d, v%d" % (E + 2 * u, E + 1 + 2 * u))
        a("v_and_b32 v195, 0xffff, v194")
        a("v_lshlrev_b32 v195, v190, v195")
        a("v_lshrrev_b32 v194, 16, v194")
        a("v_lshlrev_b32 v194, v190, v194")
        P = 156 + 4 * u
        a("v_cndmask_b32 v%d, v195, v193, s[46:47]" % (P + 0))
        a("v_cndmask_b32 v%d, v194, v193, s[48:49]" % (P + 1))
        a("v_cndmask_b32 v%d, v193, v195, s[46:47]" % (P + 2))
        a("v_cndmask_b32 v%d, v193, v194, s[48:49]" % (P + 3))
    a("s_nop 1")
    for u in range(4):
        a("v_mfma_f32_16x16x32_bf16 %s, %s, %s, 0" % (vr(172 + 4 * u, 4), vr(VF + 2 * u, 4), vr(156 + 4 * u, 4)))
    a("""
    v_and_b32 v10, 15, v1
    v_lshlrev_b32 v10, 10, v10
    v_lshrrev_b32 v11, 4, v1
    v_lshl_add_u32 v10, v11, 3, v10
    s_lshl_b32 s34, s27, 16
    s_lshl_b32 s35, s29, 5
    s_add_u32 s34, s34, s35
    s_add_u32 s34, s34, s32
    v_add_u32 v10, s34, v10
    s_nop 2
    """)
    for u in range(4):
        a("v_cvt_pk_bf16_f32 v%d, v%d, v%d" % (40 + 2 * u, 172 + 4 * u, 173 + 4 * u))
        a("v_cvt_pk_bf16_f32 v%d, v%d, v%d" % (41 + 2 * u, 174 + 4 * u, 175 + 4 * u))
        a("s_mov_b32 s34, %d" % (16384 * u))
        a("buffer_store_dwordx2 %s, v10, s[12:15], s34 offen" % vr(40 + 2 * u, 2))
    a.label("L_%s_end" % name)
    a("s_endpgm")
    return name, a.text() + kdesc(name, 224, 0)


K2_CH = 16384
PREFETCH = True
DRY = False
K2_LDS2 = 8 * K2_CH


def gen_k2(layer):
    a = Asm()
    name = "k2l%d_kernel" % layer
    khead(a, name)
    a("s_cmp_ge_u32 s2, 256")
    a("s_cbranch_scc1 L_%s_end" % name)
    a("s_load_dwordx2 s[20:21], s[0:1], 0")
    a("s_load_dwordx2 s[22:23], s[0:1], 16")
    a("s_load_dwordx2 s[24:25], s[0:1], 80")
    a("s_load_dwordx2 s[36:37], s[0:1], 32")
    a("""
    s_and_b32 s3, s2, 7
    s_lshr_b32 s26, s2, 3
    s_lshl_b32 s27, s3, 2
    s_and_b32 s30, s26, 3
    s_add_u32 s27, s27, s30
    s_lshr_b32 s28, s26, 2
    v_lshrrev_b32 v1, 6, v0
    s_nop 0
    v_readfirstlane_b32 s29, v1
    v_and_b32 v1, 63, v0
    s_cmp_lt_u32 s29, 4
    s_cbranch_scc1 L_%s_mm
    """ % name)
    a("s_sub_u32 s29, s29, 4")
    a("""
    v_lshrrev_b32 v10, 3, v1
    v_and_b32 v11, 7, v1
    s_lshl_b32 s30, s27, 6
    s_lshl_b32 s31, s29, 4
    s_add_u32 s30, s30, s31
    v_add_u32 v12, s30, v10
    v_lshlrev_b32 v12, 10, v12
    v_lshrrev_b32 v13, 1, v10
    v_xor_b32 v13, v13, v11
    v_lshl_add_u32 v2, v13, 4, v12
    v_xor_b32 v13, 4, v13
    v_add_u32 v12, 8192, v12
    v_lshl_add_u32 v3, v13, 4, v12
    v_add_u32 v12, s31, v10
    v_lshlrev_b32 v12, 10, v12
    s_lshl_b32 s32, s28, 7
    v_add_u32 v12, s32, v12
    v_bfe_u32 v13, v10, 1, 1
    v_lshlrev_b32 v13, 1, v13
    v_xor_b32 v13, v13, v11
    v_lshl_add_u32 v4, v13, 4, v12
    v_xor_b32 v13, 4, v13
    v_add_u32 v12, 8192, v12
    v_lshl_add_u32 v5, v13, 4, v12
    s_lshl_b32 s52, s29, 11
    """)
    a("s_waitcnt lgkmcnt(0)")
    srd(a, 4, 24, 25, O_OFF, 2 * MB)
    srd(a, 8, 22, 23, 0, 512 * 1024)
    for c in range(8):
        if ROT:
            a("s_add_u32 s35, s26, %d" % c)
            a("s_and_b32 s35, s35, 7")
            a("s_lshl_b32 s34, s35, 7")
            a("s_lshl_b32 s35, s35, 16")
        else:
            a("s_mov_b32 s34, %d" % (128 * c))
            a("s_mov_b32 s35, %d" % (65536 * c))
        for i in range(2):
            a("s_add_u32 m0, s52, %d" % (c * K2_CH + 1024 * i))
            a("s_nop 0")
            a("buffer_load_dwordx4 v%d, s[4:7], s34 offen lds" % (2 + i))
        for i in range(2):
            a("s_add_u32 m0, s52, %d" % (c * K2_CH + 8192 + 1024 * i))
            a("s_nop 0")
            a("buffer_load_dwordx4 v%d, s[8:11], s35 offen lds" % (4 + i))
    npf = 0
    if layer == 0 and PREFETCH:
        a("s_load_dwordx4 s[56:59], s[0:1], 40")
        a("s_load_dwordx2 s[60:61], s[0:1], 56")
        a("""
        s_lshr_b32 s34, s2, 3
        s_and_b32 s34, s34, 3
        s_lshl_b32 s34, s34, 3
        s_add_u32 s34, s34, s3
        s_lshr_b32 s35, s2, 5
        s_lshl_b32 s35, s35, 2
        s_add_u32 s35, s35, s29
        v_lshrrev_b32 v10, 3, v1
        s_lshl_b32 s38, s35, 4
        v_add_u32 v10, s38, v10
        v_mul_u32_u24 v10, 3584, v10
        v_and_b32 v11, 7, v1
        v_lshl_add_u32 v10, v11, 4, v10
        s_lshl_b32 s38, s34, 7
        v_add_u32 v10, s38, v10
        s_lshl_b32 s38, s34, 16
        s_lshl_b32 s39, s35, 11
        s_add_u32 s38, s38, s39
        v_lshlrev_b32 v11, 4, v1
        v_add_u32 v11, s38, v11
        s_waitcnt lgkmcnt(0)
        """)
        srd(a, 40, 56, 57, 0, 512 * 3584)
        srd(a, 44, 58, 59, 0, 512 * 3584)
        srd(a, 48, 60, 61, 0, 1792 * 1024)
        a("s_mov_b32 s38, %d" % (8 * 3584))
        a("buffer_load_dwordx4 v[12:15], v10, s[40:43], 0 offen")
        a("buffer_load_dwordx4 v[16:19], v10, s[40:43], s38 offen")
        a("buffer_load_dwordx4 v[20:23], v10, s[44:47], 0 offen")
        a("buffer_load_dwordx4 v[24:27], v10, s[44:47], s38 offen")
        a("buffer_load_dwordx4 v[28:31], v11, s[48:51], 0 offen")
        a("buffer_load_dwordx4 v[32:35], v11, s[48:51], 0 offen offset:1024")
        npf = 6
    for j in range(4):
        a("s_waitcnt vmcnt(%d)" % (8 * (3 - j) + npf))
        a("s_barrier")
    a("s_endpgm")
    a.label("L_%s_mm" % name)
    a("""
    s_lshr_b32 s30, s29, 1
    s_and_b32 s31, s29, 1
    v_and_b32 v10, 15, v1
    v_lshrrev_b32 v11, 4, v1
    v_bfe_u32 v12, v10, 1, 3
    v_xor_b32 v12, v12, v11
    v_lshlrev_b32 v12, 4, v12
    v_lshl_add_u32 v16, v10, 7, v12
    s_lshl_b32 s34, s30, 12
    v_add_u32 v16, s34, v16
    v_xor_b32 v17, 64, v16
    v_add_u32 v18, 65536, v16
    v_add_u32 v19, 65536, v17
    v_bfe_u32 v10, v1, 2, 2
    v_lshl_add_u32 v12, v11, 3, v10
    v_lshlrev_b32 v12, 7, v12
    v_lshrrev_b32 v13, 1, v10
    v_and_b32 v14, 1, v11
    v_lshl_or_b32 v13, v14, 1, v13
    s_lshl_b32 s34, s31, 1
    v_xor_b32 v13, s34, v13
    v_and_b32 v14, 3, v1
    v_lshl_add_u32 v12, v14, 3, v12
    v_add_u32 v12, 8192, v12
    v_lshl_add_u32 v20, v13, 5, v12
    v_xor_b32 v13, 1, v13
    v_lshl_add_u32 v21, v13, 5, v12
    v_add_u32 v22, 65536, v20
    v_add_u32 v23, 65536, v21
    """)
    a("""
    s_lshl_b32 s34, s27, 6
    s_lshl_b32 s35, s30, 5
    s_add_u32 s34, s34, s35
    v_and_b32 v2, 15, v1
    v_add_u32 v2, s34, v2
    v_lshlrev_b32 v2, 10, v2
    v_lshrrev_b32 v10, 4, v1
    v_lshlrev_b32 v10, 3, v10
    s_lshl_b32 s35, s28, 7
    s_lshl_b32 s38, s31, 6
    s_add_u32 s35, s35, s38
    v_add_u32 v13, s35, v10
    v_add_u32 v9, v2, v13
    v_add_u32 v12, 0x4000, v9
    """)
    a("s_waitcnt lgkmcnt(0)")
    if layer == 0:
        srd(a, 12, 20, 21, 0, 2 * MB)
    else:
        srd(a, 12, 24, 25, X2_OFF, 2 * MB)
    srd(a, 16, 24, 25, X1_OFF, 2 * MB)
    srd(a, 40, 24, 25, ST_OFF[layer], 32768)
    srd(a, 44, 36, 37, 0, 1024)
    for ti, vo in enumerate((9, 12)):
        for ct in range(2):
            a("buffer_load_dwordx2 %s, v%d, s[12:15], 0 offen offset:%d" % (vr(48 + 4 * ti + 2 * ct, 2), vo, 32 * ct))
    for ct in range(2):
        a("buffer_load_dwordx2 %s, v13, s[44:47], 0 offen offset:%d" % (vr(56 + 2 * ct, 2), 32 * ct))
    FR = [96, 112]

    def reads(s):
        c, sp = s >> 1, s & 1
        hi = 2 if c >= 4 else 0
        co = (c & 3) * K2_CH
        F = FR[s & 1]
        o = []
        for ct in range(2):
            o.append("ds_read_b64_tr_b16 %s, v%d offset:%d" % (vr(F + 8 + 4 * ct, 2), 20 + ct + hi, co + sp * 4096))
            o.append("ds_read_b64_tr_b16 %s, v%d offset:%d" % (vr(F + 10 + 4 * ct, 2), 20 + ct + hi, co + sp * 4096 + 512))
        for t in range(2):
            o.append("ds_read_b128 %s, v%d offset:%d" % (vr(F + 4 * t, 4), 16 + sp + hi, co + t * 2048))
        return o

    for s in range(16):
        if (s & 3) == 0:
            a("s_barrier")
            for x in reads(s):
                a(x)
        a("s_waitcnt lgkmcnt(0)")
        fill = reads(s + 1) if (s & 3) != 3 else []
        F = FR[s & 1]
        fi = 0
        for ti in range(2):
            for ct in range(2):
                acc = 32 + 4 * (2 * ti + ct)
                a("v_mfma_f32_16x16x32_bf16 %s, %s, %s, %s" % (vr(acc, 4), vr(F + 8 + 4 * ct, 4), vr(F + 4 * ti, 4), "0" if s == 0 else vr(acc, 4)))
                for _ in range(2):
                    if fi < len(fill):
                        a(fill[fi]); fi += 1
    a("s_waitcnt vmcnt(0)")
    a("s_nop 7")
    for ct in range(2):
        for j in range(2):
            a("v_lshlrev_b32 v%d, 16, v%d" % (64 + 4 * ct + 2 * j, 56 + 2 * ct + j))
            a("v_and_b32 v%d, 0xffff0000, v%d" % (65 + 4 * ct + 2 * j, 56 + 2 * ct + j))
    for ti in range(2):
        S, Q, D = 80 + 4 * ti, 81 + 4 * ti, 82 + 4 * ti
        for ct in range(2):
            acc = 32 + 4 * (2 * ti + ct)
            xr = 48 + 4 * ti + 2 * ct
            for j in range(2):
                a("v_cvt_pk_bf16_f32 v72, v%d, v%d" % (acc + 2 * j, acc + 2 * j + 1))
                a("v_lshlrev_b32 v73, 16, v72")
                a("v_and_b32 v74, 0xffff0000, v72")
                a("v_lshlrev_b32 v75, 16, v%d" % (xr + j))
                a("v_and_b32 v76, 0xffff0000, v%d" % (xr + j))
                a("v_add_f32 v73, v73, v75")
                a("v_add_f32 v74, v74, v76")
                a("v_cvt_pk_bf16_f32 v%d, v73, v74" % (xr + j))
                a("v_lshlrev_b32 v73, 16, v%d" % (xr + j))
                a("v_and_b32 v74, 0xffff0000, v%d" % (xr + j))
                w0, w1 = 64 + 4 * ct + 2 * j, 65 + 4 * ct + 2 * j
                if ct == 0 and j == 0:
                    a("v_add_f32 v%d, v73, v74" % S)
                    a("v_mul_f32 v%d, v73, v73" % Q)
                    a("v_mul_f32 v%d, v73, v%d" % (D, w0))
                else:
                    a("v_add_f32 v%d, v%d, v73" % (S, S))
                    a("v_add_f32 v%d, v%d, v74" % (S, S))
                    a("v_fma_f32 v%d, v73, v73, v%d" % (Q, Q))
                    a("v_fma_f32 v%d, v73, v%d, v%d" % (D, w0, D))
                a("v_fma_f32 v%d, v74, v74, v%d" % (Q, Q))
                a("v_fma_f32 v%d, v74, v%d, v%d" % (D, w1, D))
            a("buffer_store_dwordx2 %s, v%d, s[16:19], 0 offen offset:%d" % (vr(xr, 2), (9, 12)[ti], 32 * ct))
    bfly(a, "v_add_f32", [80, 81, 82, 84, 85, 86], [88, 89, 90, 91, 92, 93])
    a("""
    v_lshrrev_b32 v88, 4, v1
    v_cmp_eq_u32 s[48:49], 1, v88
    v_cmp_eq_u32 s[50:51], 2, v88
    v_cmp_eq_u32 s[52:53], 3, v88
    v_lshrrev_b32 v89, 6, v2
    v_lshl_add_u32 v89, v88, 2, v89
    v_add_u32 v90, 256, v89
    """)
    for ti in range(2):
        S = 80 + 4 * ti
        a("v_cndmask_b32 v%d, v%d, v%d, s[48:49]" % (S, S, S + 1))
        a("v_cndmask_b32 v%d, v%d, v%d, s[50:51]" % (S, S, S + 2))
    a("s_andn2_b64 exec, exec, s[52:53]")
    for ti in range(2):
        S = 80 + 4 * ti
        a("buffer_atomic_add_f32 v%d, v%d, s[40:43], 0 offen" % (S, 89 + ti))
    a.label("L_%s_end" % name)
    a("s_endpgm")
    return name, a.text() + kdesc(name, 128, 0)


SLAB_OFF = [8 * MB, 8 * MB + 524288]
K3_G = 0
K3_U = 65536
K3_MS2 = 131072
K3_XS2 = K3_MS2 + 16384
K3_H = K3_XS2 + 8 * 1040 + 64
K3_HP = 144
K3_CAND2 = K3_H + 16 * K3_HP
K3_SEL2 = K3_CAND2 + 128
K3_FLG = K3_SEL2 + 128
K3_LDS2 = K3_FLG + 64
K3_WDP = 1056


def norm_pair(a, src, vm, vinv, mode, T=50):
    a("v_lshlrev_b32 v%d, 16, v%d" % (T, src))
    a("v_and_b32 v%d, 0xffff0000, v%d" % (T + 1, src))
    a("v_sub_f32 v%d, v%d, v%d" % (T + 2, T, vm))
    a("v_sub_f32 v%d, v%d, v%d" % (T + 3, T + 1, vm))
    a("v_cvt_pk_bf16_f32 v%d, v%d, v%d" % (T + 4, T + 2, T + 3))
    a("v_lshlrev_b32 v%d, 16, v%d" % (T + 2, T + 4))
    a("v_and_b32 v%d, 0xffff0000, v%d" % (T + 3, T + 4))
    a("v_mul_f32 v%d, v%d, v%d" % (T + 2, T + 2, vinv))
    a("v_mul_f32 v%d, v%d, v%d" % (T + 3, T + 3, vinv))
    if mode == "xn":
        a("v_cvt_pk_bf16_f32 v%d, v%d, v%d" % (src, T + 2, T + 3))
    else:
        a("v_cvt_pk_bf16_f32 v%d, v%d, v%d" % (T + 4, T + 2, T + 3))
        a("v_lshlrev_b32 v%d, 16, v%d" % (T + 2, T + 4))
        a("v_and_b32 v%d, 0xffff0000, v%d" % (T + 3, T + 4))
        a("v_add_f32 v%d, v%d, v%d" % (T + 2, T + 2, T))
        a("v_add_f32 v%d, v%d, v%d" % (T + 3, T + 3, T + 1))
        a("v_cvt_pk_bf16_f32 v%d, v%d, v%d" % (src, T + 2, T + 3))


def gen_k3(layer):
    a = Asm()
    name = "k3l%d_kernel" % layer
    khead(a, name)
    a("s_cmp_ge_u32 s2, 256")
    a("s_cbranch_scc1 L_%s_end" % name)
    a("s_load_dwordx4 s[20:23], s[0:1], 32")
    a("s_load_dwordx4 s[28:31], s[0:1], 48")
    a("s_load_dwordx2 s[24:25], s[0:1], 80")
    a("s_load_dwordx2 s[26:27], s[0:1], 64")
    a("s_load_dwordx2 s[64:65], s[0:1], 72")
    a("""
    v_lshrrev_b32 v1, 6, v0
    s_nop 0
    v_readfirstlane_b32 s33, v1
    v_and_b32 v1, 63, v0
    s_lshl_b32 s32, s2, 7
    s_mov_b32 s56, 0x%x
    s_mov_b32 s57, 0x%x
    s_mov_b32 s58, 0x%x
    s_cmp_lt_u32 s33, 4
    s_cbranch_scc1 L_%s_mm
    """ % (f2u(1.0 / 512), f2u(1e-5), ONES_BF, name))
    sc = {"r512": 56, "eps": 57}
    a("s_sub_u32 s33, s33, 4")
    a("v_and_b32 v0, 255, v0")
    a("s_waitcnt lgkmcnt(0)")
    srd(a, 4, 24, 25, ST_OFF[layer], 32768)
    srd(a, 8, 24, 25, X1_OFF, 2 * MB)
    if layer == 0:
        srd(a, 12, 24, 25, X2_OFF, 2 * MB)
    else:
        srd(a, 12, 26, 27, 0, 2 * MB)
    srd(a, 48, 64, 65, 0, 256)
    a("""
    s_and_b32 s35, s2, 7
    s_lshl_b32 s35, s35, 5
    s_lshr_b32 s34, s2, 3
    s_add_u32 s35, s35, s34
    s_lshl_b32 s34, s35, 13
    v_lshlrev_b32 v4, 4, v0
    v_add_u32 v4, s34, v4
    v_add_u32 v5, 4096, v4
    s_lshl_b32 s34, s35, 3
    s_add_u32 s34, s34, s33
    s_lshl_b32 s34, s34, 4
    v_mov_b32 v6, s34
    buffer_load_dwordx4 v[8:11], v6, s[4:7], 0 offen
    buffer_load_dwordx4 v[12:15], v6, s[4:7], 0 offen offset:64
    buffer_load_dwordx4 v[100:103], v4, s[8:11], 0 offen
    buffer_load_dwordx4 v[104:107], v5, s[8:11], 0 offen
    """)
    a("s_cmp_ge_u32 s2, 28")
    a("s_cbranch_scc1 L_%s_x2only" % name)
    a("s_barrier")
    srd(a, 36, 22, 23, 0, 512 * 3584)
    srd(a, 40, 28, 29, 0, 512 * 3584)
    srd(a, 44, 30, 31, 0, 1792 * 1024)
    a("""
    v_lshrrev_b32 v20, 3, v1
    v_and_b32 v21, 7, v1
    s_lshl_b32 s35, s33, 7
    v_add_u32 v22, s35, v20
    v_mul_u32_u24 v22, 3584, v22
    v_add_u32 v22, s32, v22
    v_bfe_u32 v23, v20, 1, 1
    v_lshlrev_b32 v23, 1, v23
    v_xor_b32 v23, v23, v21
    v_lshl_add_u32 v2, v23, 4, v22
    v_xor_b32 v23, 4, v23
    v_lshl_add_u32 v3, v23, 4, v22
    s_lshl_b32 s52, s33, 14
    """)
    for i in range(16):
        a("s_mov_b32 s34, %d" % (8 * i * 3584))
        a("s_add_u32 m0, s52, %d" % (K3_G + 1024 * i))
        a("s_nop 0")
        a("buffer_load_dwordx4 v%d, s[36:39], s34 offen lds" % (2 + (i & 1)))
        a("s_add_u32 m0, s52, %d" % (K3_U + 1024 * i))
        a("s_nop 0")
        a("buffer_load_dwordx4 v%d, s[40:43], s34 offen lds" % (2 + (i & 1)))
    a("""
    s_lshl_b32 s34, s2, 16
    s_lshl_b32 s35, s33, 14
    s_add_u32 s34, s34, s35
    v_lshlrev_b32 v7, 4, v1
    v_add_u32 v7, s34, v7
    """)
    for i in range(16):
        a("s_mov_b32 s34, %d" % (1024 * i))
        a("buffer_load_dwordx4 %s, v7, s[44:47], s34 offen" % vr(112 + 4 * i, 4))
    a("s_waitcnt vmcnt(48)")
    a("s_branch L_%s_x2" % name)
    a.label("L_%s_x2only" % name)
    a("s_waitcnt vmcnt(0)")
    a.label("L_%s_x2" % name)
    ln_finalize(a, 8, 9, 40, 41, 42, sc)
    ln_finalize(a, 12, 13, 43, 44, 45, sc)
    for r in range(4):
        norm_pair(a, 100 + r, 40, 41, "x2")
    a("buffer_store_dwordx4 v[100:103], v4, s[12:15], 0 offen")
    for r in range(4):
        norm_pair(a, 104 + r, 43, 44, "x2")
    a("buffer_store_dwordx4 v[104:107], v5, s[12:15], 0 offen")
    a("s_cmp_ge_u32 s2, 28")
    a("s_cbranch_scc1 L_%s_end" % name)
    a("s_waitcnt vmcnt(18)")
    a("s_barrier")
    a("""
    s_mul_i32 s34, s33, %d
    v_lshlrev_b32 v7, 4, v1
    v_add_u32 v7, s34, v7
    """ % (16 * K3_WDP))
    a("s_waitcnt vmcnt(2)")
    a("s_barrier")
    for i in range(16):
        pos = (i & 3) | ((i & 4) << 1) | ((i & 8) >> 1)
        a("ds_write_b128 v7, %s offset:%d" % (vr(112 + 4 * i, 4), K3_G + pos * K3_WDP))
    a("s_waitcnt lgkmcnt(0)")
    a("s_barrier")
    a("s_endpgm")
    a.label("L_%s_mm" % name)
    a("s_cmp_ge_u32 s2, 28")
    a("s_cbranch_scc1 L_%s_end" % name)
    a("""
    s_lshl_b32 s34, s33, 2
    v_mov_b32 v2, s34
    v_add_u32 v2, %d, v2
    v_mov_b32 v3, 0
    ds_write_b32 v2, v3
    """ % K3_FLG)
    a("s_setprio 3")
    a("s_waitcnt lgkmcnt(0)")
    a("s_barrier")
    srd(a, 4, 24, 25, ST_OFF[layer], 32768)
    srd(a, 8, 24, 25, X1_OFF, 2 * MB)
    srd(a, 16, 20, 21, 0, 1024)
    srd(a, 44, 24, 25, SEL_OFF[layer], 64)
    srd(a, 48, 24, 25, XS_OFF[layer], 8192)
    srd(a, 52, 24, 25, SLAB_OFF[layer], 28 * 16384)
    a("v_lshlrev_b32 v2, 7, v0")
    for i in range(8):
        a("buffer_load_dwordx4 %s, v2, s[4:7], 0 offen offset:%d" % (vr(64 + 4 * i, 4), 16 * i))
    a("v_lshlrev_b32 v3, 4, v1")
    a("buffer_load_dwordx4 v[96:99], v3, s[16:19], 0 offen")
    if DRY:
        a("s_mov_b32 s99, 0")
        a("s_mov_b64 exec, 0")
        a("s_branch L_%s_r1" % name)
        a.label("L_%s_r0" % name)
    a("s_waitcnt vmcnt(0)")
    a.label("L_%s_r1" % name)
    a("v_mov_b32 v8, 0")
    for r in range(4):
        a("v_dot2_f32_bf16 v8, v%d, s58, v8" % (96 + r))
    a("s_nop 2")
    for sh in (1, 2, 4, 8):
        a("v_add_f32_dpp v8, v8, v8 row_ror:%d row_mask:0xf bank_mask:0xf" % sh)
        a("s_nop 1")
    bfly(a, "v_add_f32", [8], [9])
    a("v_lshlrev_b32 v10, 6, v0")
    a("v_lshlrev_b32 v11, 3, v0")
    a("v_sub_u32 v11, 2047, v11")
    a("v_add_u32 v10, %d, v10" % K3_MS2)
    a("s_mov_b32 s59, 0xffff0000")
    a("s_mov_b32 s34, 0")
    a("s_mov_b32 s35, 0")
    a.label("L_%s_rl" % name)
    a("""
    s_set_gpr_idx_on s34, gpr_idx(SRC0)
    s_nop 0
    v_mov_b32 v2, v64
    v_mov_b32 v3, v65
    v_mov_b32 v4, v66
    s_set_gpr_idx_off
    """)
    ln_finalize(a, 2, 3, 12, 13, 14, sc)
    a("""
    v_fma_f32 v15, -v12, v8, v4
    v_mul_f32 v15, v15, v13
    v_cvt_pk_bf16_f32 v15, v15, v15
    v_lshlrev_b32 v15, 16, v15
    v_ashrrev_i32 v16, 31, v15
    v_or_b32 v16, 0x80000000, v16
    v_xor_b32 v15, v15, v16
    v_and_or_b32 v15, v15, s59, v11
    ds_write_b64 v10, v[12:13]
    v_add_u32 v10, 8, v10
    v_subrev_u32 v11, 1, v11
    s_set_gpr_idx_on s35, gpr_idx(DST)
    s_nop 0
    v_mov_b32 v20, v15
    s_set_gpr_idx_off
    s_add_u32 s34, s34, 4
    s_add_u32 s35, s35, 1
    s_cmp_lt_u32 s35, 8
    s_cbranch_scc1 L_%s_rl
    """ % name)
    net = [(0, 1), (2, 3), (4, 5), (6, 7), (0, 2), (1, 3), (4, 6), (5, 7), (1, 2), (5, 6),
           (0, 4), (1, 5), (2, 6), (3, 7), (2, 4), (3, 5), (1, 2), (3, 4), (5, 6)]
    for (i, j) in net:
        a("v_max_u32 v12, v%d, v%d" % (20 + i, 20 + j))
        a("v_min_u32 v%d, v%d, v%d" % (20 + j, 20 + i, 20 + j))
        a("v_mov_b32 v%d, v12" % (20 + i))
    a("v_mov_b32 v30, 0")
    a("v_mov_b32 v31, 0")
    a("s_mov_b32 s34, 0")
    a.label("L_%s_rd" % name)
    a("v_mov_b32 v12, v20")
    a("s_nop 1")
    for sh in (1, 2, 4, 8):
        a("v_max_u32_dpp v12, v12, v12 row_ror:%d row_mask:0xf bank_mask:0xf" % sh)
        a("s_nop 1")
    bfly(a, "v_max_u32", [12], [13])
    a("v_cmp_eq_u32 vcc, v12, v20")
    a("v_cmp_eq_u32 s[60:61], s34, v1")
    a("s_add_u32 s34, s34, 1")
    for i in range(7):
        a("v_cndmask_b32 v%d, v%d, v%d, vcc" % (20 + i, 20 + i, 21 + i))
    a("v_cndmask_b32 v27, v27, v31, vcc")
    a("v_cndmask_b32 v30, v30, v12, s[60:61]")
    a("s_cmp_lt_u32 s34, 8")
    a("s_cbranch_scc1 L_%s_rd" % name)
    if DRY:
        a("s_cmp_eq_u32 s99, 0")
        a("s_cbranch_scc0 L_%s_r2" % name)
        a("s_mov_b32 s99, 1")
        a("s_mov_b64 exec, -1")
        a("s_branch L_%s_r0" % name)
        a.label("L_%s_r2" % name)
    a("""
    s_lshl_b32 s34, s33, 5
    v_lshlrev_b32 v12, 2, v1
    v_add_u32 v12, s34, v12
    v_add_u32 v12, %d, v12
    v_cmp_gt_u32 vcc, 8, v1
    s_and_saveexec_b64 s[62:63], vcc
    ds_write_b32 v12, v30
    s_mov_b64 exec, s[62:63]
    s_lshl_b32 s34, s33, 2
    v_mov_b32 v12, s34
    v_add_u32 v12, %d, v12
    v_mov_b32 v13, 1
    ds_write_b32 v12, v13
    v_mov_b32 v12, %d
    """ % (K3_CAND2, K3_FLG, K3_FLG))
    a.label("L_%s_poll" % name)
    a("""
    ds_read_b128 v[32:35], v12
    s_waitcnt lgkmcnt(0)
    v_and_b32 v32, v32, v33
    v_and_b32 v34, v34, v35
    v_and_b32 v32, v32, v34
    v_cmp_eq_u32 vcc, 1, v32
    s_cbranch_vccz L_%s_poll
    """ % name)
    a("v_and_b32 v12, 31, v1")
    a("v_lshlrev_b32 v12, 2, v12")
    a("v_add_u32 v12, %d, v12" % K3_CAND2)
    a("ds_read_b32 v30, v12")
    a("v_mov_b32 v13, %d" % K3_CAND2)
    for i in range(8):
        a("ds_read_b128 %s, v13 offset:%d" % (vr(32 + 4 * i, 4), 16 * i))
    a("v_mov_b32 v14, 0")
    a("s_waitcnt lgkmcnt(0)")
    for i in range(32):
        a("v_cmp_gt_u32 vcc, v%d, v30" % (32 + i))
        a("v_addc_co_u32 v14, vcc, 0, v14, vcc")
    a("""
    v_cmp_gt_u32 vcc, 8, v14
    v_cmp_gt_u32 s[60:61], 32, v1
    s_and_b64 vcc, vcc, s[60:61]
    v_lshlrev_b32 v14, 2, v14
    v_add_u32 v14, %d, v14
    s_and_saveexec_b64 s[62:63], vcc
    ds_write_b32 v14, v30
    s_mov_b64 exec, s[62:63]
    s_waitcnt lgkmcnt(0)
    v_lshrrev_b32 v12, 5, v0
    v_lshlrev_b32 v12, 2, v12
    v_add_u32 v12, %d, v12
    ds_read_b32 v31, v12
    s_waitcnt lgkmcnt(0)
    v_and_b32 v13, 0xffff, v31
    v_sub_u32 v13, 2047, v13
    v_lshlrev_b32 v14, 10, v13
    v_and_b32 v15, 31, v0
    v_lshl_add_u32 v14, v15, 5, v14
    buffer_load_dwordx4 v[32:35], v14, s[8:11], 0 offen
    buffer_load_dwordx4 v[36:39], v14, s[8:11], 0 offen offset:16
    v_lshlrev_b32 v16, 3, v13
    v_add_u32 v16, %d, v16
    ds_read_b64 v[40:41], v16
    """ % (K3_SEL2, K3_SEL2, K3_MS2))
    a("""
    v_lshrrev_b32 v12, 5, v0
    v_mul_u32_u24 v12, 1040, v12
    v_lshl_add_u32 v12, v15, 5, v12
    v_add_u32 v12, %d, v12
    v_lshrrev_b32 v11, 4, v1
    v_bfe_u32 v10, v1, 2, 2
    v_lshl_add_u32 v17, v11, 3, v10
    v_lshlrev_b32 v17, 7, v17
    v_lshrrev_b32 v18, 1, v10
    v_and_b32 v19, 1, v11
    v_lshl_or_b32 v18, v19, 1, v18
    v_xor_b32 v18, s33, v18
    v_lshl_add_u32 v17, v18, 5, v17
    v_and_b32 v18, 3, v1
    v_lshl_add_u32 v8, v18, 3, v17
    v_add_u32 v9, %d, v8
    v_and_b32 v17, 7, v1
    v_mul_u32_u24 v17, 1040, v17
    v_lshl_add_u32 v17, v11, 4, v17
    v_add_u32 v17, %d, v17
    """ % (K3_XS2, K3_U, K3_XS2))
    a("v_mov_b32 v121, v14")
    a("s_waitcnt vmcnt(0) lgkmcnt(0)")
    for r in range(8):
        norm_pair(a, 32 + r, 40, 41, "xn")
    a("ds_write_b128 v12, v[32:35]")
    a("ds_write_b128 v12, v[36:39] offset:16")
    a("""
    v_and_b32 v51, 0xffff0000, v31
    v_ashrrev_i32 v50, 31, v51
    v_not_b32 v50, v50
    v_or_b32 v50, 0x80000000, v50
    v_xor_b32 v51, v51, v50
    v_and_b32 v51, 0xffff0000, v51
    v_mul_f32 v52, 0x%x, v51
    v_exp_f32 v52, v52
    s_nop 0
    v_add_f32 v52, 1.0, v52
    v_rcp_f32 v52, v52
    s_nop 0
    v_cvt_pk_bf16_f32 v52, v52, v52
    v_lshlrev_b32 v52, 16, v52
    """ % f2u(-LOG2E))
    a("s_cmp_lg_u32 s2, 0")
    a("s_cbranch_scc1 L_%s_nopub" % name)
    a("""
    v_lshlrev_b32 v12, 5, v0
    buffer_store_dwordx4 v[32:35], v12, s[48:51], 0 offen
    buffer_store_dwordx4 v[36:39], v12, s[48:51], 0 offen offset:16
    v_lshrrev_b32 v12, 5, v0
    v_lshlrev_b32 v12, 2, v12
    v_and_b32 v15, 31, v0
    v_cmp_eq_u32 vcc, 0, v15
    v_mov_b32 v53, 0x7ffffff0
    s_nop 0
    v_cndmask_b32 v12, v53, v12, vcc
    buffer_store_dword v13, v12, s[44:47], 0 offen
    buffer_store_dword v52, v12, s[44:47], 0 offen offset:32
    """)
    a.label("L_%s_nopub" % name)
    a("s_waitcnt lgkmcnt(0)")
    a("s_barrier")
    FR = [64, 76]

    def rd(s):
        F = FR[s & 1]
        return ["ds_read_b64_tr_b16 %s, v8 offset:%d" % (vr(F, 2), 4096 * s),
                "ds_read_b64_tr_b16 %s, v8 offset:%d" % (vr(F + 2, 2), 4096 * s + 512),
                "ds_read_b64_tr_b16 %s, v9 offset:%d" % (vr(F + 4, 2), 4096 * s),
                "ds_read_b64_tr_b16 %s, v9 offset:%d" % (vr(F + 6, 2), 4096 * s + 512),
                "ds_read_b128 %s, v17 offset:%d" % (vr(F + 8, 4), 64 * s)]
    for x in rd(0):
        a(x)
    for r in range(96, 104):
        a("v_mov_b32 v%d, 0" % r)
    a("s_mov_b32 s34, 0")
    a.label("L_%s_gu" % name)
    for x in rd(1):
        a(x)
    a("s_waitcnt lgkmcnt(5)")
    a("v_mfma_f32_16x16x32_bf16 v[96:99], %s, %s, v[96:99]" % (vr(64, 4), vr(72, 4)))
    a("v_mfma_f32_16x16x32_bf16 v[100:103], %s, %s, v[100:103]" % (vr(68, 4), vr(72, 4)))
    for x in rd(2):
        a(x)
    a("s_waitcnt lgkmcnt(5)")
    a("v_mfma_f32_16x16x32_bf16 v[96:99], %s, %s, v[96:99]" % (vr(76, 4), vr(84, 4)))
    a("v_mfma_f32_16x16x32_bf16 v[100:103], %s, %s, v[100:103]" % (vr(80, 4), vr(84, 4)))
    a("""
    v_add_u32 v8, 8192, v8
    v_add_u32 v9, 8192, v9
    v_add_u32 v17, 128, v17
    s_add_u32 s34, s34, 1
    s_cmp_lt_u32 s34, 8
    s_cbranch_scc1 L_%s_gu
    s_waitcnt lgkmcnt(0)
    """ % name)
    a("s_mov_b32 s34, 0x%x" % f2u(-LOG2E))
    a("""
    v_and_b32 v10, 15, v1
    v_mul_u32_u24 v10, %d, v10
    v_lshrrev_b32 v11, 4, v1
    v_lshl_add_u32 v12, v11, 3, v10
    s_lshl_b32 s35, s33, 5
    v_add_u32 v12, s35, v12
    v_add_u32 v12, %d, v12
    v_lshl_add_u32 v13, v11, 4, v10
    v_add_u32 v13, %d, v13
    """ % (K3_HP, K3_H, K3_H))
    for r in range(4):
        rbf(a, 96 + r)
        rbf(a, 100 + r)
    for r in range(4):
        a("v_mul_f32 v%d, s34, v%d" % (104 + r, 96 + r))
        a("v_exp_f32 v%d, v%d" % (104 + r, 104 + r))
    a("s_nop 0")
    for r in range(4):
        a("v_add_f32 v%d, 1.0, v%d" % (104 + r, 104 + r))
        a("v_rcp_f32 v%d, v%d" % (104 + r, 104 + r))
    a("s_nop 0")
    for r in range(4):
        a("v_mul_f32 v%d, v%d, v%d" % (96 + r, 96 + r, 104 + r))
        rbf(a, 96 + r)
        a("v_mul_f32 v%d, v%d, v%d" % (96 + r, 96 + r, 100 + r))
    a("v_cvt_pk_bf16_f32 v96, v96, v97")
    a("v_cvt_pk_bf16_f32 v97, v98, v99")
    a("ds_write_b64 v12, v[96:97]")
    a("s_waitcnt lgkmcnt(0)")
    a("s_barrier")
    a("ds_read_b128 v[64:67], v13")
    a("ds_read_b128 v[68:71], v13 offset:64")
    a("""
    v_lshrrev_b32 v10, 5, v1
    v_lshlrev_b32 v8, 4, v10
    v_bfe_u32 v10, v1, 4, 1
    v_lshl_add_u32 v8, v10, 2, v8
    v_bfe_u32 v10, v1, 2, 2
    v_add_u32 v8, v8, v10
    v_mul_u32_u24 v8, %d, v8
    v_and_b32 v10, 3, v1
    v_lshl_add_u32 v8, v10, 3, v8
    s_lshl_b32 s35, s33, 8
    v_add_u32 v8, s35, v8
    v_and_b32 v10, 15, v1
    v_lshlrev_b32 v14, 11, v10
    v_lshrrev_b32 v11, 4, v1
    v_lshl_add_u32 v14, v11, 4, v14
    s_lshl_b32 s35, s33, 9
    s_lshl_b32 s36, s2, 14
    s_add_u32 s35, s35, s36
    v_add_u32 v14, s35, v14
    v_cmp_gt_u32 vcc, 8, v10
    v_mov_b32 v15, 0x7ffffff0
    s_nop 0
    v_cndmask_b32 v14, v15, v14, vcc
    """ % K3_WDP)
    a("s_barrier")
    for ct in range(8):
        for s in range(2):
            b = 128 + 8 * ct + 4 * s
            a("ds_read_b64_tr_b16 %s, v8 offset:%d" % (vr(b, 2), K3_G + 32 * s * K3_WDP + 32 * ct))
            a("ds_read_b64_tr_b16 %s, v8 offset:%d" % (vr(b + 2, 2), K3_G + (32 * s + 8) * K3_WDP + 32 * ct))
    a("s_waitcnt lgkmcnt(0)")
    for ct in range(8):
        b = 128 + 8 * ct
        a("v_mfma_f32_16x16x32_bf16 %s, %s, v[64:67], 0" % (vr(72 + 4 * ct, 4), vr(b, 4)))
        a("v_mfma_f32_16x16x32_bf16 %s, %s, v[68:71], %s" % (vr(72 + 4 * ct, 4), vr(b + 4, 4), vr(72 + 4 * ct, 4)))
    a("s_nop 7")
    for ct in range(8):
        a("buffer_store_dwordx4 %s, v14, s[52:55], 0 offen offset:%d" % (vr(72 + 4 * ct, 4), 64 * ct))
    a.label("L_%s_end" % name)
    a("s_endpgm")
    return name, a.text() + kdesc(name, 192, 0)


def gen_k4(layer):
    a = Asm()
    name = "k4l%d_kernel" % layer
    khead(a, name)
    a("s_cmp_ge_u32 s2, 8")
    a("s_cbranch_scc1 L_%s_end" % name)
    a("s_load_dwordx2 s[24:25], s[0:1], 80")
    a("s_load_dwordx2 s[26:27], s[0:1], 64")
    a("s_waitcnt lgkmcnt(0)")
    srd(a, 4, 24, 25, SLAB_OFF[layer], 28 * 16384)
    srd(a, 8, 24, 25, X1_OFF, 2 * MB)
    if layer == 0:
        srd(a, 12, 24, 25, X2_OFF, 2 * MB)
    else:
        srd(a, 12, 26, 27, 0, 2 * MB)
    srd(a, 16, 24, 25, SEL_OFF[layer], 64)
    srd(a, 20, 24, 25, XS_OFF[layer], 8192)
    a("""
    s_lshl_b32 s3, s2, 2
    v_mov_b32 v2, s3
    buffer_load_dword v3, v2, s[16:19], 0 offen
    buffer_load_dword v4, v2, s[16:19], 0 offen offset:32
    s_lshl_b32 s3, s2, 10
    v_lshlrev_b32 v5, 2, v0
    v_add_u32 v6, s3, v5
    buffer_load_dword v7, v6, s[20:23], 0 offen
    s_lshl_b32 s3, s2, 11
    v_lshlrev_b32 v8, 3, v0
    v_add_u32 v8, s3, v8
    """)
    for p in range(28):
        a("s_mov_b32 s3, %d" % (16384 * p))
        a("buffer_load_dwordx2 %s, v8, s[4:7], s3 offen" % vr(16 + 2 * p, 2))
    a("s_waitcnt vmcnt(30)")
    a("v_lshl_add_u32 v9, v3, 10, v5")
    a("buffer_load_dword v10, v9, s[8:11], 0 offen")
    a("s_waitcnt vmcnt(1)")
    for p in range(1, 28):
        a("v_add_f32 v16, v16, v%d" % (16 + 2 * p))
        a("v_add_f32 v17, v17, v%d" % (17 + 2 * p))
    a("""
    v_cvt_pk_bf16_f32 v40, v16, v17
    v_lshlrev_b32 v41, 16, v40
    v_and_b32 v42, 0xffff0000, v40
    v_mul_f32 v41, v41, v4
    v_mul_f32 v42, v42, v4
    v_cvt_pk_bf16_f32 v40, v41, v42
    v_lshlrev_b32 v41, 16, v40
    v_and_b32 v42, 0xffff0000, v40
    v_lshlrev_b32 v43, 16, v7
    v_and_b32 v44, 0xffff0000, v7
    v_add_f32 v41, v41, v43
    v_add_f32 v42, v42, v44
    v_cvt_pk_bf16_f32 v40, v41, v42
    v_lshlrev_b32 v41, 16, v40
    v_and_b32 v42, 0xffff0000, v40
    s_waitcnt vmcnt(0)
    v_lshlrev_b32 v43, 16, v10
    v_and_b32 v44, 0xffff0000, v10
    v_add_f32 v41, v41, v43
    v_add_f32 v42, v42, v44
    v_cvt_pk_bf16_f32 v40, v41, v42
    buffer_store_dword v40, v9, s[12:15], 0 offen
    """)
    a.label("L_%s_end" % name)
    a("s_endpgm")
    return name, a.text() + kdesc(name, 80, 0)


def build_parts():
    parts = []
    launches = []
    for layer in range(2):
        for g, grid, blk, lds in ((gen_k1, 256, 512, K1_LDS2), (gen_k2, 256, 512, K2_LDS2), (gen_k3, 256, 512, K3_LDS2), (gen_k4, 8, 256, 0)):
            n, t = g(layer)
            parts.append(t)
            launches.append("; @launch kernel=%s grid=(%d,1,1) block=(%d,1,1) lds=%d" % (n, grid, blk, lds))
    return parts, launches


def main(out):
    parts, launches = build_parts()
    txt = HEADER + "\n".join(launches) + "\n" + '.amdgcn_target "amdgcn-amd-amdhsa--gfx950"\n' + "\n".join(parts)
    open(out, "w").write(txt)


if __name__ == "__main__":
    main(sys.argv[1] if len(sys.argv) > 1 else "interleave_layers__sliding_local_dilated__moe_arch_mod__prompt.s")
```

```python
import gen2 as gen, sys
gen.PREFETCH = False
parts, launches = gen.build_parts()
for idx in range(8):
    name = launches[idx].split("kernel=")[1].split()[0]
    lines = parts[idx].split("\n")
    out = []
    first = True
    for l in lines:
        ls = l.strip()
        if ls.startswith("s_load_dword") and first:
            out.append("    s_memrealtime s[90:91]")
            first = False
        if ls.startswith("L_%s_end:" % name):
            out.append(l)
            out.append("    s_memrealtime s[92:93]")
            out.append("    s_mov_b64 exec, -1")
            out.append("    s_load_dwordx4 s[80:83], s[0:1], 72")
            out.append("    v_lshrrev_b32 v1, 6, v0")
            out.append("    s_waitcnt lgkmcnt(0)")
            out.append("    v_readfirstlane_b32 s59, v1")
            out.append("    s_add_u32 s60, s82, 0x1000000")
            out.append("    s_addc_u32 s61, s83, 0")
            out.append("    s_mov_b32 s62, 65536")
            out.append("    s_mov_b32 s63, 0x00020000")
            out.append("    s_or_b32 s59, s59, s2")
            out.append("    s_cmp_lg_u32 s59, 0")
            out.append("    s_cbranch_scc1 L_%s_end2" % name)
            out.append("    v_mov_b32 v1, %d" % (8 * idx))
            out.append("    v_mov_b32 v2, s90")
            out.append("    v_mov_b32 v3, s92")
            out.append("    buffer_store_dwordx2 v[2:3], v1, s[60:63], 0 offen")
            if idx == 7:
                out.append("    s_waitcnt vmcnt(0)")
                out.append("    v_lshlrev_b32 v1, 2, v0")
                out.append("    buffer_load_dword v2, v1, s[60:63], 0 offen")
                out.append("    s_mov_b32 s84, s80")
                out.append("    s_mov_b32 s85, s81")
                out.append("    s_mov_b32 s86, 64")
                out.append("    s_mov_b32 s87, 0x00020000")
                out.append("    s_waitcnt vmcnt(0)")
                out.append("    buffer_store_dword v2, v1, s[84:87], 0 offen")
            out.append("L_%s_end2:" % name)
            continue
        out.append(l)
    parts[idx] = "\n".join(out)
txt = gen.HEADER + "\n".join(launches) + "\n" + '.amdgcn_target "amdgcn-amd-amdhsa--gfx950"\n' + "\n".join(parts)
open("v_diag.s", "w").write(txt)
```

```python
from gen import *
import gen

ROT = True
K1_MISC = 0
K1_S0 = 1024
K1_SLOT = 36864
K1_AW = 12288
K1_LDS2 = K1_S0 + 4 * K1_SLOT


def gen_k1(layer):
    a = Asm()
    name = "k1l%d_kernel" % layer
    khead(a, name)
    a("s_cmp_ge_u32 s2, 256")
    a("s_cbranch_scc1 L_%s_end" % name)
    a("s_load_dwordx4 s[20:23], s[0:1], 0")
    a("s_load_dwordx2 s[24:25], s[0:1], 80")
    a("""
    s_and_b32 s3, s2, 7
    s_lshr_b32 s26, s2, 3
    s_lshl_b32 s27, s3, 2
    s_and_b32 s30, s26, 3
    s_add_u32 s27, s27, s30
    s_lshr_b32 s28, s26, 2
    v_lshrrev_b32 v1, 6, v0
    s_nop 0
    v_readfirstlane_b32 s29, v1
    v_and_b32 v1, 63, v0
    s_lshl_b32 s32, s28, 7
    s_mov_b32 s40, 0x%x
    s_mov_b32 s41, 0x%x
    s_cmp_lt_u32 s29, 4
    s_cbranch_scc1 L_%s_mm
    """ % (f2u(1.0 / 512), f2u(1e-5), name))
    sc = {"r512": 40, "eps": 41}

    def stats_ops(src, acc, t):
        ops = []
        for r in range(4):
            ops.append("v_lshlrev_b32 v%d, 16, v%d" % (t, src + r))
            ops.append("v_and_b32 v%d, 0xffff0000, v%d" % (t + 1, src + r))
            ops.append("v_add_f32 v%d, v%d, v%d" % (acc, acc, t))
            ops.append("v_add_f32 v%d, v%d, v%d" % (acc + 1, acc + 1, t + 1))
            ops.append("v_fma_f32 v%d, v%d, v%d, v%d" % (acc + 2, t, t, acc + 2))
            ops.append("v_fma_f32 v%d, v%d, v%d, v%d" % (acc + 3, t + 1, t + 1, acc + 3))
        return ops

    def stats_fin(acc, vrow):
        a("v_add_f32 v%d, v%d, v%d" % (acc, acc, acc + 1))
        a("v_add_f32 v%d, v%d, v%d" % (acc + 2, acc + 2, acc + 3))
        for m in ("quad_perm:[1,0,3,2]", "quad_perm:[2,3,0,1]", "row_half_mirror"):
            a("s_nop 1")
            a("v_add_f32_dpp v%d, v%d, v%d %s row_mask:0xf bank_mask:0xf" % (acc, acc, acc, m))
            a("v_add_f32_dpp v%d, v%d, v%d %s row_mask:0xf bank_mask:0xf" % (acc + 2, acc + 2, acc + 2, m))
        ln_finalize(a, acc, acc + 2, acc + 1, acc + 3, 36, sc)
        a("v_lshlrev_b32 v%d, 2, v%d" % (vrow, vrow))
        a("ds_write_b32 v%d, v%d offset:%d" % (vrow, acc + 1, K1_MISC))
        a("ds_write_b32 v%d, v%d offset:%d" % (vrow, acc + 3, K1_MISC + 512))

    a("s_sub_u32 s29, s29, 4")
    a("v_and_b32 v0, 255, v0")
    a("""
    s_lshl_b32 s30, s27, 6
    s_sub_u32 s30, s30, 16
    s_mul_i32 s31, s29, 24
    v_lshrrev_b32 v10, 3, v1
    v_add_u32 v10, s31, v10
    v_and_b32 v11, 7, v1
    """)
    for i in range(3):
        a("v_add_u32 v12, %d, v10" % (8 * i))
        a("v_bfe_u32 v13, v12, 1, 3")
        a("v_xor_b32 v13, v13, v11")
        a("v_add_u32 v14, s30, v12")
        a("v_lshlrev_b32 v14, 10, v14")
        a("v_lshl_add_u32 v%d, v13, 4, v14" % (2 + i))
        a("v_cmp_gt_u32 vcc, 80, v12")
        a("v_mov_b32 v13, 0x7ff00000")
        a("s_nop 0")
        a("v_cndmask_b32 v%d, v13, v%d, vcc" % (2 + i, 2 + i))
    a("""
    v_lshrrev_b32 v10, 3, v1
    v_mul_u32_u24 v12, 3072, v10
    v_bfe_u32 v13, v10, 1, 1
    v_lshlrev_b32 v13, 1, v13
    v_xor_b32 v13, v13, v11
    v_lshl_add_u32 v5, v13, 4, v12
    v_xor_b32 v13, 4, v13
    v_lshl_add_u32 v6, v13, 4, v12
    """)
    a("s_mul_i32 s31, s29, 6")
    for i in range(6):
        a("s_add_u32 s34, s31, %d" % i)
        a("s_and_b32 s35, s34, 7")
        a("s_mul_i32 s35, s35, 24576")
        a("s_lshr_b32 s34, s34, 3")
        a("s_lshl_b32 s34, s34, 10")
        a("s_add_u32 s35, s35, s34")
        a("s_add_u32 s%d, s35, s32" % (46 + i))
    a("s_mul_i32 s52, s29, 3072")
    a("s_add_u32 s52, s52, %d" % K1_S0)
    a("s_mul_i32 s53, s29, 6144")
    a("s_add_u32 s53, s53, %d" % (K1_S0 + K1_AW))
    a("""
    v_lshrrev_b32 v10, 3, v0
    v_and_b32 v11, 7, v0
    v_lshlrev_b32 v11, 4, v11
    v_add_u32 v44, 32, v10
    v_lshl_add_u32 v28, v44, 7, v11
    v_add_u32 v28, %d, v28
    v_add_u32 v45, 64, v10
    v_min_u32 v45, 79, v45
    v_lshl_add_u32 v48, v45, 7, v11
    v_add_u32 v48, %d, v48
    """ % (K1_S0, K1_S0))
    for sl in range(1, 4):
        a("v_add_u32 v%d, %d, v28" % (28 + sl, sl * K1_SLOT))
        a("v_add_u32 v%d, %d, v48" % (48 + sl, sl * K1_SLOT))
    for r in list(range(32, 36)) + list(range(52, 56)):
        a("v_mov_b32 v%d, 0" % r)
    a("s_waitcnt lgkmcnt(0)")
    if layer == 0:
        srd(a, 4, 20, 21, 0, 2 * MB)
    else:
        srd(a, 4, 24, 25, X2_OFF, 2 * MB)
    srd(a, 8, 22, 23, 0, 512 * 3072)
    srd(a, 16, 24, 25, ST_OFF[layer], 49152)

    def issue(c):
        sl = (c & 3) * K1_SLOT
        if ROT:
            a("s_add_u32 s35, s26, %d" % c)
            a("s_and_b32 s35, s35, 7")
            a("s_lshl_b32 s34, s35, 7")
            a("s_mul_i32 s35, s35, %d" % (64 * 3072))
        else:
            a("s_mov_b32 s34, %d" % (128 * c))
            a("s_mov_b32 s35, %d" % (c * 64 * 3072))
        for i in range(3):
            a("s_add_u32 m0, s52, %d" % (sl + 1024 * i))
            a("s_nop 0")
            a("buffer_load_dwordx4 v%d, s[4:7], s34 offen lds" % (2 + i))
        for i in range(6):
            a("s_add_u32 s34, s%d, s35" % (46 + i))
            a("s_add_u32 m0, s53, %d" % (sl + 1024 * i))
            a("s_nop 0")
            a("buffer_load_dwordx4 v%d, s[8:11], s34 offen lds" % (5 + (i & 1)))

    a("""
    v_lshlrev_b32 v10, 4, v0
    s_lshl_b32 s34, s2, 6
    s_add_u32 s34, s34, 32640
    v_add_u32 v12, s34, v10
    s_lshl_b32 s34, s2, 7
    v_add_u32 v10, s34, v10
    v_cmp_gt_u32 vcc, 12, v0
    v_mov_b32 v11, 0x7ffffff0
    s_nop 0
    v_cndmask_b32 v12, v11, v12, vcc
    v_cmp_gt_u32 vcc, 8, v0
    s_nop 1
    v_cndmask_b32 v10, v12, v10, vcc
    buffer_store_dwordx4 v[32:35], v10, s[16:19], 0 offen
    """)
    for c in range(3):
        issue(c)
    a("s_waitcnt vmcnt(18)")
    a("s_barrier")
    for c in range(8):
        issued_hi = min(c + 2, 7)
        need = min(c + 1, 7)
        a("s_waitcnt vmcnt(%d)" % (9 * (issued_hi - need)))
        a("s_barrier")
        if c + 3 < 8:
            issue(c + 3)
        a("ds_read_b128 v[40:43], v%d" % (28 + (c & 3)))
        a("ds_read_b128 v[56:59], v%d" % (48 + (c & 3)))
        a("s_waitcnt lgkmcnt(0)")
        for op in stats_ops(40, 32, 36) + stats_ops(56, 52, 36):
            a(op)
    stats_fin(32, 44)
    stats_fin(52, 45)
    a("""
    s_waitcnt lgkmcnt(0)
    s_barrier
    s_endpgm
    """)
    a.label("L_%s_mm" % name)
    a("""
    v_and_b32 v10, 15, v1
    v_lshrrev_b32 v11, 4, v1
    v_bfe_u32 v12, v10, 1, 3
    v_xor_b32 v12, v12, v11
    v_lshlrev_b32 v12, 4, v12
    v_lshl_add_u32 v16, v10, 7, v12
    v_add_u32 v16, %d, v16
    v_xor_b32 v20, 64, v16
    """ % K1_S0)
    a("""
    v_bfe_u32 v10, v1, 2, 2
    v_lshl_add_u32 v12, v11, 3, v10
    v_lshlrev_b32 v12, 7, v12
    v_lshrrev_b32 v13, 1, v10
    v_and_b32 v14, 1, v11
    v_lshl_or_b32 v13, v14, 1, v13
    v_xor_b32 v13, s29, v13
    v_lshl_add_u32 v12, v13, 5, v12
    v_and_b32 v13, 3, v1
    v_lshl_add_u32 v24, v13, 3, v12
    v_add_u32 v24, %d, v24
    """ % (K1_S0 + K1_AW))
    a("""
    v_lshrrev_b32 v172, 3, v0
    v_and_b32 v11, 7, v0
    v_lshlrev_b32 v11, 4, v11
    v_lshl_add_u32 v28, v172, 7, v11
    v_add_u32 v28, %d, v28
    """ % K1_S0)
    for sl in range(1, 4):
        for b in (16, 20, 24, 28):
            a("v_add_u32 v%d, %d, v%d" % (b + sl, sl * K1_SLOT, b))
    for r in range(32, 36):
        a("v_mov_b32 v%d, 0" % r)
    for r in range(36, 40):
        a("v_mov_b32 v%d, 0x%x" % (r, ONES_BF))
    a("s_waitcnt lgkmcnt(0)")
    srd(a, 12, 24, 25, O_OFF, 2 * MB)
    AF = [40, 60]
    BF = [80, 92]
    ACC = 104
    QA, KA, VA, CS = ACC, ACC + 16, ACC + 36, ACC + 56

    def reads(c, sp):
        sl = c & 3
        st = sp
        o = []
        for seg in range(3):
            off = seg * 8192 + sp * 4096
            o.append("ds_read_b64_tr_b16 %s, v%d offset:%d" % (vr(BF[st] + 4 * seg, 2), 24 + sl, off))
            o.append("ds_read_b64_tr_b16 %s, v%d offset:%d" % (vr(BF[st] + 4 * seg + 2, 2), 24 + sl, off + 512))
        for t in (1, 2, 3, 4, 0):
            o.append("ds_read_b128 %s, v%d offset:%d" % (vr(AF[st] + 4 * t, 4), (16 if sp == 0 else 20) + sl, t * 2048))
        return o

    def mfmas(first, st, fill=()):
        A, B = AF[st], BF[st]
        mf = []
        for t in range(4):
            mf.append((QA + 4 * t, vr(B, 4), vr(A + 4 * (t + 1), 4)))
        for t in range(5):
            mf.append((KA + 4 * t, vr(B + 4, 4), vr(A + 4 * t, 4)))
        for t in range(5):
            mf.append((VA + 4 * t, vr(A + 4 * t, 4), vr(B + 8, 4)))
        mf.append((CS, vr(B, 4), "v[36:39]"))
        mf.append((CS + 4, vr(B + 4, 4), "v[36:39]"))
        mf.append((CS + 8, "v[36:39]", vr(B + 8, 4)))
        fi = 0
        for (acc, x, y) in mf:
            a("v_mfma_f32_16x16x32_bf16 %s, %s, %s, %s" % (vr(acc, 4), x, y, "0" if first else vr(acc, 4)))
            n = 0
            while fi < len(fill) and n < 2:
                n += 2 if fill[fi].startswith("ds_") else 1
                a(fill[fi]); fi += 1
        while fi < len(fill):
            a(fill[fi]); fi += 1

    for c in range(8):
        a("s_barrier")
        if c == 0:
            for x in reads(0, 0):
                a(x)
        a("s_waitcnt lgkmcnt(0)")
        mfmas(c == 0, 0, reads(c, 1) + ["ds_read_b128 v[176:179], v%d" % (28 + (c & 3))])
        if c == 0:
            a("s_barrier")
        a("s_waitcnt lgkmcnt(0)")
        mfmas(False, 1, (reads(c + 1, 0) if c < 7 else []) + stats_ops(176, 32, 180))
    stats_fin(32, 172)
    a("s_waitcnt lgkmcnt(0)")
    a("s_barrier")
    a("""
    v_and_b32 v10, 15, v1
    v_lshlrev_b32 v10, 2, v10
    v_lshrrev_b32 v11, 4, v1
    v_lshlrev_b32 v11, 4, v11
    """)
    for t in range(5):
        a("ds_read_b32 v%d, v10 offset:%d" % (40 + t, K1_MISC + 64 * t))
        a("ds_read_b32 v%d, v10 offset:%d" % (45 + t, K1_MISC + 512 + 64 * t))
    for t in range(5):
        a("ds_read_b128 %s, v11 offset:%d" % (vr(52 + 8 * t, 4), K1_MISC + 64 * t))
        a("ds_read_b128 %s, v11 offset:%d" % (vr(56 + 8 * t, 4), K1_MISC + 512 + 64 * t))
    a("""
    v_and_b32 v188, 15, v1
    v_lshrrev_b32 v189, 4, v1
    v_and_b32 v190, 1, v1
    v_lshl_add_u32 v189, v189, 2, v190
    v_cmp_eq_u32 s[44:45], 1, v190
    v_cmp_le_u32 s[46:47], v189, v188
    v_add_u32 v189, 2, v189
    v_cmp_le_u32 s[48:49], v189, v188
    v_lshlrev_b32 v190, 4, v190
    s_cmp_eq_u32 s27, 0
    s_cselect_b32 s35, 0x%x, 0
    v_mov_b32 v191, s35
    v_mov_b32 v193, 0
    v_cndmask_b32 v192, v191, v193, s[46:47]
    v_cndmask_b32 v191, v191, v193, s[48:49]
    s_mov_b32 s42, 0x%x
    """ % (f2u(-1e30), f2u(0.25 * LOG2E)))
    a("s_waitcnt lgkmcnt(0)")
    QF, KF, VF = 196, 204, 214

    def pk_src(regs):
        if regs[0] == regs[1]:
            b = regs[0] & ~1
            return vr(b, 2), True, regs[0] & 1
        assert regs[1] == regs[0] + 1 and regs[0] % 2 == 0
        return vr(regs[0], 2), False, 0

    def norm(acc, cs_regs, m_regs, i_regs, dst):
        for h in range(2):
            m, mb, mo = pk_src(m_regs[2 * h:2 * h + 2])
            c, cb, co = pk_src(cs_regs[2 * h:2 * h + 2])
            lo = [mo if mb else 0, co if cb else 0, 0]
            hi = [mo if mb else 1, co if cb else 1, 1]
            a("v_pk_fma_f32 %s, %s, %s, %s op_sel:[%d,%d,%d] op_sel_hi:[%d,%d,%d] neg_lo:[1,0,0] neg_hi:[1,0,0]" % (
                vr(acc + 2 * h, 2), m, c, vr(acc + 2 * h, 2), *lo, *hi))
        for h in range(2):
            i, ib, io = pk_src(i_regs[2 * h:2 * h + 2])
            a("v_pk_mul_f32 %s, %s, %s op_sel:[%d,0] op_sel_hi:[%d,1]" % (
                vr(acc + 2 * h, 2), i, vr(acc + 2 * h, 2), io if ib else 0, io if ib else 1))
        a("v_cvt_pk_bf16_f32 v%d, v%d, v%d" % (dst, acc, acc + 1))
        a("v_cvt_pk_bf16_f32 v%d, v%d, v%d" % (dst + 1, acc + 2, acc + 3))

    for t in range(4):
        norm(QA + 4 * t, [CS + r for r in range(4)], [41 + t] * 4, [46 + t] * 4, QF + 2 * t)
    for t in range(5):
        norm(KA + 4 * t, [CS + 4 + r for r in range(4)], [40 + t] * 4, [45 + t] * 4, KF + 2 * t)
    for t in range(5):
        norm(VA + 4 * t, [CS + 8] * 4, [52 + 8 * t + r for r in range(4)], [56 + 8 * t + r for r in range(4)], VF + 2 * t)
    a("s_nop 1")
    SS = 104
    for t in range(4):
        q = vr(QF + 2 * t, 2)
        a("v_mfma_f32_16x16x16_bf16 %s, %s, %s, 0" % (vr(SS + 8 * t, 4), vr(KF + 2 * t, 2), q))
        a("v_mfma_f32_16x16x16_bf16 %s, %s, %s, 0" % (vr(SS + 8 * t + 4, 4), vr(KF + 2 * t + 2, 2), q))
    a("s_nop 7")
    E = 140
    for u in range(4):
        Sp, Sc = SS + 8 * u, SS + 8 * u + 4
        a("v_cndmask_b32 v194, v%d, v%d, s[44:45]" % (Sc, Sc + 1))
        a("v_cndmask_b32 v195, v%d, v%d, s[44:45]" % (Sp, Sp + 1))
        a("v_cndmask_b32 v%d, v195, v194, s[46:47]" % (E + 2 * u))
        a("v_cndmask_b32 v194, v%d, v%d, s[44:45]" % (Sc + 2, Sc + 3))
        a("v_cndmask_b32 v195, v%d, v%d, s[44:45]" % (Sp + 2, Sp + 3))
        a("v_cndmask_b32 v%d, v195, v194, s[48:49]" % (E + 1 + 2 * u))
    for u in range(4):
        a("v_cvt_pk_bf16_f32 v194, v%d, v%d" % (E + 2 * u, E + 1 + 2 * u))
        a("v_lshlrev_b32 v%d, 16, v194" % (E + 2 * u))
        a("v_and_b32 v%d, 0xffff0000, v194" % (E + 1 + 2 * u))
        b0, b1 = (192, 191) if u == 0 else (193, 193)
        a("v_fma_f32 v%d, v%d, s42, v%d" % (E + 2 * u, E + 2 * u, b0))
        a("v_fma_f32 v%d, v%d, s42, v%d" % (E + 1 + 2 * u, E + 1 + 2 * u, b1))
        a("v_max_f32 v%d, v%d, v%d" % (148 + u, E + 2 * u, E + 1 + 2 * u))
    bfly(a, "v_max_f32", [148, 149, 150, 151], [152, 153, 154, 155])
    for u in range(4):
        a("v_sub_f32 v%d, v%d, v%d" % (E + 2 * u, E + 2 * u, 148 + u))
        a("v_sub_f32 v%d, v%d, v%d" % (E + 1 + 2 * u, E + 1 + 2 * u, 148 + u))
        a("v_exp_f32 v%d, v%d" % (E + 2 * u, E + 2 * u))
        a("v_exp_f32 v%d, v%d" % (E + 1 + 2 * u, E + 1 + 2 * u))
    a("s_nop 0")
    for u in range(4):
        a("v_add_f32 v%d, v%d, v%d" % (148 + u, E + 2 * u, E + 1 + 2 * u))
    bfly(a, "v_add_f32", [148, 149, 150, 151], [152, 153, 154, 155])
    for u in range(4):
        a("v_rcp_f32 v%d, v%d" % (148 + u, 148 + u))
    a("s_nop 0")
    for u in range(4):
        a("v_mul_f32 v%d, v%d, v%d" % (E + 2 * u, E + 2 * u, 148 + u))
        a("v_mul_f32 v%d, v%d, v%d" % (E + 1 + 2 * u, E + 1 + 2 * u, 148 + u))
        a("v_cvt_pk_bf16_f32 v194, v%d, v%d" % (E + 2 * u, E + 1 + 2 * u))
        a("v_and_b32 v195, 0xffff, v194")
        a("v_lshlrev_b32 v195, v190, v195")
        a("v_lshrrev_b32 v194, 16, v194")
        a("v_lshlrev_b32 v194, v190, v194")
        P = 156 + 4 * u
        a("v_cndmask_b32 v%d, v195, v193, s[46:47]" % (P + 0))
        a("v_cndmask_b32 v%d, v194, v193, s[48:49]" % (P + 1))
        a("v_cndmask_b32 v%d, v193, v195, s[46:47]" % (P + 2))
        a("v_cndmask_b32 v%d, v193, v194, s[48:49]" % (P + 3))
    a("s_nop 1")
    for u in range(4):
        a("v_mfma_f32_16x16x32_bf16 %s, %s, %s, 0" % (vr(172 + 4 * u, 4), vr(VF + 2 * u, 4), vr(156 + 4 * u, 4)))
    a("""
    v_and_b32 v10, 15, v1
    v_lshlrev_b32 v10, 10, v10
    v_lshrrev_b32 v11, 4, v1
    v_lshl_add_u32 v10, v11, 3, v10
    s_lshl_b32 s34, s27, 16
    s_lshl_b32 s35, s29, 5
    s_add_u32 s34, s34, s35
    s_add_u32 s34, s34, s32
    v_add_u32 v10, s34, v10
    s_nop 2
    """)
    for u in range(4):
        a("v_cvt_pk_bf16_f32 v%d, v%d, v%d" % (40 + 2 * u, 172 + 4 * u, 173 + 4 * u))
        a("v_cvt_pk_bf16_f32 v%d, v%d, v%d" % (41 + 2 * u, 174 + 4 * u, 175 + 4 * u))
        a("s_mov_b32 s34, %d" % (16384 * u))
        a("buffer_store_dwordx2 %s, v10, s[12:15], s34 offen" % vr(40 + 2 * u, 2))
    a.label("L_%s_end" % name)
    a("s_endpgm")
    return name, a.text() + kdesc(name, 224, 0)


K2_CH = 16384
PREFETCH = True
DRY = False
K2_LDS2 = 8 * K2_CH


def gen_k2(layer):
    a = Asm()
    name = "k2l%d_kernel" % layer
    khead(a, name)
    a("s_cmp_ge_u32 s2, 256")
    a("s_cbranch_scc1 L_%s_end" % name)
    a("s_load_dwordx2 s[20:21], s[0:1], 0")
    a("s_load_dwordx2 s[22:23], s[0:1], 16")
    a("s_load_dwordx2 s[24:25], s[0:1], 80")
    a("s_load_dwordx2 s[36:37], s[0:1], 32")
    a("""
    s_and_b32 s3, s2, 7
    s_lshr_b32 s26, s2, 3
    s_lshl_b32 s27, s3, 2
    s_and_b32 s30, s26, 3
    s_add_u32 s27, s27, s30
    s_lshr_b32 s28, s26, 2
    v_lshrrev_b32 v1, 6, v0
    s_nop 0
    v_readfirstlane_b32 s29, v1
    v_and_b32 v1, 63, v0
    s_cmp_lt_u32 s29, 4
    s_cbranch_scc1 L_%s_mm
    """ % name)
    a("s_sub_u32 s29, s29, 4")
    a("""
    v_lshrrev_b32 v10, 3, v1
    v_and_b32 v11, 7, v1
    s_lshl_b32 s30, s27, 6
    s_lshl_b32 s31, s29, 4
    s_add_u32 s30, s30, s31
    v_add_u32 v12, s30, v10
    v_lshlrev_b32 v12, 10, v12
    v_lshrrev_b32 v13, 1, v10
    v_xor_b32 v13, v13, v11
    v_lshl_add_u32 v2, v13, 4, v12
    v_xor_b32 v13, 4, v13
    v_add_u32 v12, 8192, v12
    v_lshl_add_u32 v3, v13, 4, v12
    v_add_u32 v12, s31, v10
    v_lshlrev_b32 v12, 10, v12
    s_lshl_b32 s32, s28, 7
    v_add_u32 v12, s32, v12
    v_bfe_u32 v13, v10, 1, 1
    v_lshlrev_b32 v13, 1, v13
    v_xor_b32 v13, v13, v11
    v_lshl_add_u32 v4, v13, 4, v12
    v_xor_b32 v13, 4, v13
    v_add_u32 v12, 8192, v12
    v_lshl_add_u32 v5, v13, 4, v12
    s_lshl_b32 s52, s29, 11
    """)
    a("s_waitcnt lgkmcnt(0)")
    srd(a, 4, 24, 25, O_OFF, 2 * MB)
    srd(a, 8, 22, 23, 0, 512 * 1024)
    for c in range(8):
        if ROT:
            a("s_add_u32 s35, s26, %d" % c)
            a("s_and_b32 s35, s35, 7")
            a("s_lshl_b32 s34, s35, 7")
            a("s_lshl_b32 s35, s35, 16")
        else:
            a("s_mov_b32 s34, %d" % (128 * c))
            a("s_mov_b32 s35, %d" % (65536 * c))
        for i in range(2):
            a("s_add_u32 m0, s52, %d" % (c * K2_CH + 1024 * i))
            a("s_nop 0")
            a("buffer_load_dwordx4 v%d, s[4:7], s34 offen lds" % (2 + i))
        for i in range(2):
            a("s_add_u32 m0, s52, %d" % (c * K2_CH + 8192 + 1024 * i))
            a("s_nop 0")
            a("buffer_load_dwordx4 v%d, s[8:11], s35 offen lds" % (4 + i))
    npf = 0
    if layer == 0 and PREFETCH:
        a("s_load_dwordx4 s[56:59], s[0:1], 40")
        a("s_load_dwordx2 s[60:61], s[0:1], 56")
        a("""
        s_lshr_b32 s34, s2, 3
        s_and_b32 s34, s34, 3
        s_lshl_b32 s34, s34, 3
        s_add_u32 s34, s34, s3
        s_lshr_b32 s35, s2, 5
        s_lshl_b32 s35, s35, 2
        s_add_u32 s35, s35, s29
        v_lshrrev_b32 v10, 3, v1
        s_lshl_b32 s38, s35, 4
        v_add_u32 v10, s38, v10
        v_mul_u32_u24 v10, 3584, v10
        v_and_b32 v11, 7, v1
        v_lshl_add_u32 v10, v11, 4, v10
        s_lshl_b32 s38, s34, 7
        v_add_u32 v10, s38, v10
        s_lshl_b32 s38, s34, 16
        s_lshl_b32 s39, s35, 11
        s_add_u32 s38, s38, s39
        v_lshlrev_b32 v11, 4, v1
        v_add_u32 v11, s38, v11
        s_waitcnt lgkmcnt(0)
        """)
        srd(a, 40, 56, 57, 0, 512 * 3584)
        srd(a, 44, 58, 59, 0, 512 * 3584)
        srd(a, 48, 60, 61, 0, 1792 * 1024)
        a("s_mov_b32 s38, %d" % (8 * 3584))
        a("buffer_load_dwordx4 v[12:15], v10, s[40:43], 0 offen")
        a("buffer_load_dwordx4 v[16:19], v10, s[40:43], s38 offen")
        a("buffer_load_dwordx4 v[20:23], v10, s[44:47], 0 offen")
        a("buffer_load_dwordx4 v[24:27], v10, s[44:47], s38 offen")
        a("buffer_load_dwordx4 v[28:31], v11, s[48:51], 0 offen")
        a("buffer_load_dwordx4 v[32:35], v11, s[48:51], 0 offen offset:1024")
        npf = 6
    for j in range(4):
        a("s_waitcnt vmcnt(%d)" % (8 * (3 - j) + npf))
        a("s_barrier")
    a("s_endpgm")
    a.label("L_%s_mm" % name)
    a("""
    s_lshr_b32 s30, s29, 1
    s_and_b32 s31, s29, 1
    v_and_b32 v10, 15, v1
    v_lshrrev_b32 v11, 4, v1
    v_bfe_u32 v12, v10, 1, 3
    v_xor_b32 v12, v12, v11
    v_lshlrev_b32 v12, 4, v12
    v_lshl_add_u32 v16, v10, 7, v12
    s_lshl_b32 s34, s30, 12
    v_add_u32 v16, s34, v16
    v_xor_b32 v17, 64, v16
    v_add_u32 v18, 65536, v16
    v_add_u32 v19, 65536, v17
    v_bfe_u32 v10, v1, 2, 2
    v_lshl_add_u32 v12, v11, 3, v10
    v_lshlrev_b32 v12, 7, v12
    v_lshrrev_b32 v13, 1, v10
    v_and_b32 v14, 1, v11
    v_lshl_or_b32 v13, v14, 1, v13
    s_lshl_b32 s34, s31, 1
    v_xor_b32 v13, s34, v13
    v_and_b32 v14, 3, v1
    v_lshl_add_u32 v12, v14, 3, v12
    v_add_u32 v12, 8192, v12
    v_lshl_add_u32 v20, v13, 5, v12
    v_xor_b32 v13, 1, v13
    v_lshl_add_u32 v21, v13, 5, v12
    v_add_u32 v22, 65536, v20
    v_add_u32 v23, 65536, v21
    """)
    a("""
    s_lshl_b32 s34, s27, 6
    s_lshl_b32 s35, s30, 5
    s_add_u32 s34, s34, s35
    v_and_b32 v2, 15, v1
    v_add_u32 v2, s34, v2
    v_lshlrev_b32 v2, 10, v2
    v_lshrrev_b32 v10, 4, v1
    v_lshlrev_b32 v10, 3, v10
    s_lshl_b32 s35, s28, 7
    s_lshl_b32 s38, s31, 6
    s_add_u32 s35, s35, s38
    v_add_u32 v13, s35, v10
    v_add_u32 v9, v2, v13
    v_add_u32 v12, 0x4000, v9
    """)
    a("s_waitcnt lgkmcnt(0)")
    if layer == 0:
        srd(a, 12, 20, 21, 0, 2 * MB)
    else:
        srd(a, 12, 24, 25, X2_OFF, 2 * MB)
    srd(a, 16, 24, 25, X1_OFF, 2 * MB)
    srd(a, 40, 24, 25, ST_OFF[layer], 32768)
    srd(a, 44, 36, 37, 0, 1024)
    for ti, vo in enumerate((9, 12)):
        for ct in range(2):
            a("buffer_load_dwordx2 %s, v%d, s[12:15], 0 offen offset:%d" % (vr(48 + 4 * ti + 2 * ct, 2), vo, 32 * ct))
    for ct in range(2):
        a("buffer_load_dwordx2 %s, v13, s[44:47], 0 offen offset:%d" % (vr(56 + 2 * ct, 2), 32 * ct))
    FR = [96, 112]

    def reads(s):
        c, sp = s >> 1, s & 1
        hi = 2 if c >= 4 else 0
        co = (c & 3) * K2_CH
        F = FR[s & 1]
        o = []
        for ct in range(2):
            o.append("ds_read_b64_tr_b16 %s, v%d offset:%d" % (vr(F + 8 + 4 * ct, 2), 20 + ct + hi, co + sp * 4096))
            o.append("ds_read_b64_tr_b16 %s, v%d offset:%d" % (vr(F + 10 + 4 * ct, 2), 20 + ct + hi, co + sp * 4096 + 512))
        for t in range(2):
            o.append("ds_read_b128 %s, v%d offset:%d" % (vr(F + 4 * t, 4), 16 + sp + hi, co + t * 2048))
        return o

    for s in range(16):
        if (s & 3) == 0:
            a("s_barrier")
            for x in reads(s):
                a(x)
        a("s_waitcnt lgkmcnt(0)")
        fill = reads(s + 1) if (s & 3) != 3 else []
        F = FR[s & 1]
        fi = 0
        for ti in range(2):
            for ct in range(2):
                acc = 32 + 4 * (2 * ti + ct)
                a("v_mfma_f32_16x16x32_bf16 %s, %s, %s, %s" % (vr(acc, 4), vr(F + 8 + 4 * ct, 4), vr(F + 4 * ti, 4), "0" if s == 0 else vr(acc, 4)))
                for _ in range(2):
                    if fi < len(fill):
                        a(fill[fi]); fi += 1
    a("s_waitcnt vmcnt(0)")
    a("s_nop 7")
    for ct in range(2):
        for j in range(2):
            a("v_lshlrev_b32 v%d, 16, v%d" % (64 + 4 * ct + 2 * j, 56 + 2 * ct + j))
            a("v_and_b32 v%d, 0xffff0000, v%d" % (65 + 4 * ct + 2 * j, 56 + 2 * ct + j))
    for ti in range(2):
        S, Q, D = 80 + 4 * ti, 81 + 4 * ti, 82 + 4 * ti
        for ct in range(2):
            acc = 32 + 4 * (2 * ti + ct)
            xr = 48 + 4 * ti + 2 * ct
            for j in range(2):
                a("v_cvt_pk_bf16_f32 v72, v%d, v%d" % (acc + 2 * j, acc + 2 * j + 1))
                a("v_lshlrev_b32 v73, 16, v72")
                a("v_and_b32 v74, 0xffff0000, v72")
                a("v_lshlrev_b32 v75, 16, v%d" % (xr + j))
                a("v_and_b32 v76, 0xffff0000, v%d" % (xr + j))
                a("v_add_f32 v73, v73, v75")
                a("v_add_f32 v74, v74, v76")
                a("v_cvt_pk_bf16_f32 v%d, v73, v74" % (xr + j))
                a("v_lshlrev_b32 v73, 16, v%d" % (xr + j))
                a("v_and_b32 v74, 0xffff0000, v%d" % (xr + j))
                w0, w1 = 64 + 4 * ct + 2 * j, 65 + 4 * ct + 2 * j
                if ct == 0 and j == 0:
                    a("v_add_f32 v%d, v73, v74" % S)
                    a("v_mul_f32 v%d, v73, v73" % Q)
                    a("v_mul_f32 v%d, v73, v%d" % (D, w0))
                else:
                    a("v_add_f32 v%d, v%d, v73" % (S, S))
                    a("v_add_f32 v%d, v%d, v74" % (S, S))
                    a("v_fma_f32 v%d, v73, v73, v%d" % (Q, Q))
                    a("v_fma_f32 v%d, v73, v%d, v%d" % (D, w0, D))
                a("v_fma_f32 v%d, v74, v74, v%d" % (Q, Q))
                a("v_fma_f32 v%d, v74, v%d, v%d" % (D, w1, D))
            a("buffer_store_dwordx2 %s, v%d, s[16:19], 0 offen offset:%d" % (vr(xr, 2), (9, 12)[ti], 32 * ct))
    bfly(a, "v_add_f32", [80, 81, 82, 84, 85, 86], [88, 89, 90, 91, 92, 93])
    a("""
    v_lshrrev_b32 v88, 4, v1
    v_cmp_eq_u32 s[48:49], 1, v88
    v_cmp_eq_u32 s[50:51], 2, v88
    v_cmp_eq_u32 s[52:53], 3, v88
    v_lshrrev_b32 v89, 6, v2
    v_lshl_add_u32 v89, v88, 2, v89
    v_add_u32 v90, 256, v89
    """)
    for ti in range(2):
        S = 80 + 4 * ti
        a("v_cndmask_b32 v%d, v%d, v%d, s[48:49]" % (S, S, S + 1))
        a("v_cndmask_b32 v%d, v%d, v%d, s[50:51]" % (S, S, S + 2))
    a("s_andn2_b64 exec, exec, s[52:53]")
    for ti in range(2):
        S = 80 + 4 * ti
        a("buffer_atomic_add_f32 v%d, v%d, s[40:43], 0 offen" % (S, 89 + ti))
    a.label("L_%s_end" % name)
    a("s_endpgm")
    return name, a.text() + kdesc(name, 128, 0)


SLAB_OFF = [8 * MB, 8 * MB + 524288]
K3_G = 0
K3_U = 65536
K3_MS2 = 131072
K3_XS2 = K3_MS2 + 16384
K3_H = K3_XS2 + 8 * 1040 + 64
K3_HP = 144
K3_CAND2 = K3_H + 16 * K3_HP
K3_SEL2 = K3_CAND2 + 128
K3_FLG = K3_SEL2 + 128
K3_LDS2 = K3_FLG + 64
K3_WDP = 1056


def norm_pair(a, src, vm, vinv, mode, T=50):
    a("v_lshlrev_b32 v%d, 16, v%d" % (T, src))
    a("v_and_b32 v%d, 0xffff0000, v%d" % (T + 1, src))
    a("v_sub_f32 v%d, v%d, v%d" % (T + 2, T, vm))
    a("v_sub_f32 v%d, v%d, v%d" % (T + 3, T + 1, vm))
    a("v_cvt_pk_bf16_f32 v%d, v%d, v%d" % (T + 4, T + 2, T + 3))
    a("v_lshlrev_b32 v%d, 16, v%d" % (T + 2, T + 4))
    a("v_and_b32 v%d, 0xffff0000, v%d" % (T + 3, T + 4))
    a("v_mul_f32 v%d, v%d, v%d" % (T + 2, T + 2, vinv))
    a("v_mul_f32 v%d, v%d, v%d" % (T + 3, T + 3, vinv))
    if mode == "xn":
        a("v_cvt_pk_bf16_f32 v%d, v%d, v%d" % (src, T + 2, T + 3))
    else:
        a("v_cvt_pk_bf16_f32 v%d, v%d, v%d" % (T + 4, T + 2, T + 3))
        a("v_lshlrev_b32 v%d, 16, v%d" % (T + 2, T + 4))
        a("v_and_b32 v%d, 0xffff0000, v%d" % (T + 3, T + 4))
        a("v_add_f32 v%d, v%d, v%d" % (T + 2, T + 2, T))
        a("v_add_f32 v%d, v%d, v%d" % (T + 3, T + 3, T + 1))
        a("v_cvt_pk_bf16_f32 v%d, v%d, v%d" % (src, T + 2, T + 3))


def gen_k3(layer):
    a = Asm()
    name = "k3l%d_kernel" % layer
    khead(a, name)
    a("s_cmp_ge_u32 s2, 256")
    a("s_cbranch_scc1 L_%s_end" % name)
    a("s_load_dwordx4 s[20:23], s[0:1], 32")
    a("s_load_dwordx4 s[28:31], s[0:1], 48")
    a("s_load_dwordx2 s[24:25], s[0:1], 80")
    a("s_load_dwordx2 s[26:27], s[0:1], 64")
    a("s_load_dwordx2 s[64:65], s[0:1], 72")
    a("""
    v_lshrrev_b32 v1, 6, v0
    s_nop 0
    v_readfirstlane_b32 s33, v1
    v_and_b32 v1, 63, v0
    s_lshl_b32 s32, s2, 7
    s_mov_b32 s56, 0x%x
    s_mov_b32 s57, 0x%x
    s_mov_b32 s58, 0x%x
    s_cmp_lt_u32 s33, 4
    s_cbranch_scc1 L_%s_mm
    """ % (f2u(1.0 / 512), f2u(1e-5), ONES_BF, name))
    sc = {"r512": 56, "eps": 57}
    a("s_sub_u32 s33, s33, 4")
    a("v_and_b32 v0, 255, v0")
    a("s_waitcnt lgkmcnt(0)")
    srd(a, 4, 24, 25, ST_OFF[layer], 32768)
    srd(a, 8, 24, 25, X1_OFF, 2 * MB)
    if layer == 0:
        srd(a, 12, 24, 25, X2_OFF, 2 * MB)
    else:
        srd(a, 12, 26, 27, 0, 2 * MB)
    srd(a, 48, 64, 65, 0, 256)
    a("""
    s_and_b32 s35, s2, 7
    s_lshl_b32 s35, s35, 5
    s_lshr_b32 s34, s2, 3
    s_add_u32 s35, s35, s34
    s_lshl_b32 s34, s35, 13
    v_lshlrev_b32 v4, 4, v0
    v_add_u32 v4, s34, v4
    v_add_u32 v5, 4096, v4
    s_lshl_b32 s34, s35, 3
    s_add_u32 s34, s34, s33
    s_lshl_b32 s34, s34, 4
    v_mov_b32 v6, s34
    buffer_load_dwordx4 v[8:11], v6, s[4:7], 0 offen
    buffer_load_dwordx4 v[12:15], v6, s[4:7], 0 offen offset:64
    buffer_load_dwordx4 v[100:103], v4, s[8:11], 0 offen
    buffer_load_dwordx4 v[104:107], v5, s[8:11], 0 offen
    """)
    a("s_cmp_ge_u32 s2, 28")
    a("s_cbranch_scc1 L_%s_x2only" % name)
    a("s_barrier")
    srd(a, 36, 22, 23, 0, 512 * 3584)
    srd(a, 40, 28, 29, 0, 512 * 3584)
    srd(a, 44, 30, 31, 0, 1792 * 1024)
    a("""
    v_lshrrev_b32 v20, 3, v1
    v_and_b32 v21, 7, v1
    s_lshl_b32 s35, s33, 7
    v_add_u32 v22, s35, v20
    v_mul_u32_u24 v22, 3584, v22
    v_add_u32 v22, s32, v22
    v_bfe_u32 v23, v20, 1, 1
    v_lshlrev_b32 v23, 1, v23
    v_xor_b32 v23, v23, v21
    v_lshl_add_u32 v2, v23, 4, v22
    v_xor_b32 v23, 4, v23
    v_lshl_add_u32 v3, v23, 4, v22
    s_lshl_b32 s52, s33, 14
    """)
    for i in range(16):
        a("s_mov_b32 s34, %d" % (8 * i * 3584))
        a("s_add_u32 m0, s52, %d" % (K3_G + 1024 * i))
        a("s_nop 0")
        a("buffer_load_dwordx4 v%d, s[36:39], s34 offen lds" % (2 + (i & 1)))
        a("s_add_u32 m0, s52, %d" % (K3_U + 1024 * i))
        a("s_nop 0")
        a("buffer_load_dwordx4 v%d, s[40:43], s34 offen lds" % (2 + (i & 1)))
    a("""
    s_lshl_b32 s34, s2, 16
    s_lshl_b32 s35, s33, 14
    s_add_u32 s34, s34, s35
    v_lshlrev_b32 v7, 4, v1
    v_add_u32 v7, s34, v7
    """)
    for i in range(16):
        a("s_mov_b32 s34, %d" % (1024 * i))
        a("buffer_load_dwordx4 %s, v7, s[44:47], s34 offen" % vr(112 + 4 * i, 4))
    a("s_waitcnt vmcnt(48)")
    a("s_branch L_%s_x2" % name)
    a.label("L_%s_x2only" % name)
    a("s_waitcnt vmcnt(0)")
    a.label("L_%s_x2" % name)
    ln_finalize(a, 8, 9, 40, 41, 42, sc)
    ln_finalize(a, 12, 13, 43, 44, 45, sc)
    for r in range(4):
        norm_pair(a, 100 + r, 40, 41, "x2")
    a("buffer_store_dwordx4 v[100:103], v4, s[12:15], 0 offen")
    for r in range(4):
        norm_pair(a, 104 + r, 43, 44, "x2")
    a("buffer_store_dwordx4 v[104:107], v5, s[12:15], 0 offen")
    a("s_cmp_ge_u32 s2, 28")
    a("s_cbranch_scc1 L_%s_end" % name)
    a("s_waitcnt vmcnt(18)")
    a("s_barrier")
    a("""
    s_mul_i32 s34, s33, %d
    v_lshlrev_b32 v7, 4, v1
    v_add_u32 v7, s34, v7
    """ % (16 * K3_WDP))
    a("s_waitcnt vmcnt(2)")
    a("s_barrier")
    for i in range(16):
        pos = (i & 3) | ((i & 4) << 1) | ((i & 8) >> 1)
        a("ds_write_b128 v7, %s offset:%d" % (vr(112 + 4 * i, 4), K3_G + pos * K3_WDP))
    a("s_waitcnt lgkmcnt(0)")
    a("s_barrier")
    a("s_endpgm")
    a.label("L_%s_mm" % name)
    a("s_cmp_ge_u32 s2, 28")
    a("s_cbranch_scc1 L_%s_end" % name)
    a("""
    s_lshl_b32 s34, s33, 2
    v_mov_b32 v2, s34
    v_add_u32 v2, %d, v2
    v_mov_b32 v3, 0
    ds_write_b32 v2, v3
    """ % K3_FLG)
    a("s_setprio 3")
    a("s_waitcnt lgkmcnt(0)")
    a("s_barrier")
    srd(a, 4, 24, 25, ST_OFF[layer], 32768)
    srd(a, 8, 24, 25, X1_OFF, 2 * MB)
    srd(a, 16, 20, 21, 0, 1024)
    srd(a, 44, 24, 25, SEL_OFF[layer], 64)
    srd(a, 48, 24, 25, XS_OFF[layer], 8192)
    srd(a, 52, 24, 25, SLAB_OFF[layer], 28 * 16384)
    a("v_lshlrev_b32 v2, 7, v0")
    for i in range(8):
        a("buffer_load_dwordx4 %s, v2, s[4:7], 0 offen offset:%d" % (vr(64 + 4 * i, 4), 16 * i))
    a("v_lshlrev_b32 v3, 4, v1")
    a("buffer_load_dwordx4 v[96:99], v3, s[16:19], 0 offen")
    if DRY:
        a("s_mov_b32 s99, 0")
        a("s_mov_b64 exec, 0")
        a("s_branch L_%s_r1" % name)
        a.label("L_%s_r0" % name)
    a("s_waitcnt vmcnt(0)")
    a.label("L_%s_r1" % name)
    a("v_mov_b32 v8, 0")
    for r in range(4):
        a("v_dot2_f32_bf16 v8, v%d, s58, v8" % (96 + r))
    a("s_nop 2")
    for sh in (1, 2, 4, 8):
        a("v_add_f32_dpp v8, v8, v8 row_ror:%d row_mask:0xf bank_mask:0xf" % sh)
        a("s_nop 1")
    bfly(a, "v_add_f32", [8], [9])
    a("v_lshlrev_b32 v10, 6, v0")
    a("v_lshlrev_b32 v11, 3, v0")
    a("v_sub_u32 v11, 2047, v11")
    a("v_add_u32 v10, %d, v10" % K3_MS2)
    a("s_mov_b32 s59, 0xffff0000")
    a("s_mov_b32 s34, 0")
    a("s_mov_b32 s35, 0")
    a.label("L_%s_rl" % name)
    a("""
    s_set_gpr_idx_on s34, gpr_idx(SRC0)
    s_nop 0
    v_mov_b32 v2, v64
    v_mov_b32 v3, v65
    v_mov_b32 v4, v66
    s_set_gpr_idx_off
    """)
    ln_finalize(a, 2, 3, 12, 13, 14, sc)
    a("""
    v_fma_f32 v15, -v12, v8, v4
    v_mul_f32 v15, v15, v13
    v_cvt_pk_bf16_f32 v15, v15, v15
    v_lshlrev_b32 v15, 16, v15
    v_ashrrev_i32 v16, 31, v15
    v_or_b32 v16, 0x80000000, v16
    v_xor_b32 v15, v15, v16
    v_and_or_b32 v15, v15, s59, v11
    ds_write_b64 v10, v[12:13]
    v_add_u32 v10, 8, v10
    v_subrev_u32 v11, 1, v11
    s_set_gpr_idx_on s35, gpr_idx(DST)
    s_nop 0
    v_mov_b32 v20, v15
    s_set_gpr_idx_off
    s_add_u32 s34, s34, 4
    s_add_u32 s35, s35, 1
    s_cmp_lt_u32 s35, 8
    s_cbranch_scc1 L_%s_rl
    """ % name)
    net = [(0, 1), (2, 3), (4, 5), (6, 7), (0, 2), (1, 3), (4, 6), (5, 7), (1, 2), (5, 6),
           (0, 4), (1, 5), (2, 6), (3, 7), (2, 4), (3, 5), (1, 2), (3, 4), (5, 6)]
    for (i, j) in net:
        a("v_max_u32 v12, v%d, v%d" % (20 + i, 20 + j))
        a("v_min_u32 v%d, v%d, v%d" % (20 + j, 20 + i, 20 + j))
        a("v_mov_b32 v%d, v12" % (20 + i))
    a("v_mov_b32 v30, 0")
    a("v_mov_b32 v31, 0")
    a("s_mov_b32 s34, 0")
    a.label("L_%s_rd" % name)
    a("v_mov_b32 v12, v20")
    a("s_nop 1")
    for sh in (1, 2, 4, 8):
        a("v_max_u32_dpp v12, v12, v12 row_ror:%d row_mask:0xf bank_mask:0xf" % sh)
        a("s_nop 1")
    bfly(a, "v_max_u32", [12], [13])
    a("v_cmp_eq_u32 vcc, v12, v20")
    a("v_cmp_eq_u32 s[60:61], s34, v1")
    a("s_add_u32 s34, s34, 1")
    for i in range(7):
        a("v_cndmask_b32 v%d, v%d, v%d, vcc" % (20 + i, 20 + i, 21 + i))
    a("v_cndmask_b32 v27, v27, v31, vcc")
    a("v_cndmask_b32 v30, v30, v12, s[60:61]")
    a("s_cmp_lt_u32 s34, 8")
    a("s_cbranch_scc1 L_%s_rd" % name)
    if DRY:
        a("s_cmp_eq_u32 s99, 0")
        a("s_cbranch_scc0 L_%s_r2" % name)
        a("s_mov_b32 s99, 1")
        a("s_mov_b64 exec, -1")
        a("s_branch L_%s_r0" % name)
        a.label("L_%s_r2" % name)
    a("""
    s_lshl_b32 s34, s33, 5
    v_lshlrev_b32 v12, 2, v1
    v_add_u32 v12, s34, v12
    v_add_u32 v12, %d, v12
    v_cmp_gt_u32 vcc, 8, v1
    s_and_saveexec_b64 s[62:63], vcc
    ds_write_b32 v12, v30
    s_mov_b64 exec, s[62:63]
    s_lshl_b32 s34, s33, 2
    v_mov_b32 v12, s34
    v_add_u32 v12, %d, v12
    v_mov_b32 v13, 1
    ds_write_b32 v12, v13
    v_mov_b32 v12, %d
    """ % (K3_CAND2, K3_FLG, K3_FLG))
    a.label("L_%s_poll" % name)
    a("""
    ds_read_b128 v[32:35], v12
    s_waitcnt lgkmcnt(0)
    v_and_b32 v32, v32, v33
    v_and_b32 v34, v34, v35
    v_and_b32 v32, v32, v34
    v_cmp_eq_u32 vcc, 1, v32
    s_cbranch_vccz L_%s_poll
    """ % name)
    a("v_and_b32 v12, 31, v1")
    a("v_lshlrev_b32 v12, 2, v12")
    a("v_add_u32 v12, %d, v12" % K3_CAND2)
    a("ds_read_b32 v30, v12")
    a("v_mov_b32 v13, %d" % K3_CAND2)
    for i in range(8):
        a("ds_read_b128 %s, v13 offset:%d" % (vr(32 + 4 * i, 4), 16 * i))
    a("v_mov_b32 v14, 0")
    a("s_waitcnt lgkmcnt(0)")
    for i in range(32):
        a("v_cmp_gt_u32 vcc, v%d, v30" % (32 + i))
        a("v_addc_co_u32 v14, vcc, 0, v14, vcc")
    a("""
    v_cmp_gt_u32 vcc, 8, v14
    v_cmp_gt_u32 s[60:61], 32, v1
    s_and_b64 vcc, vcc, s[60:61]
    v_lshlrev_b32 v14, 2, v14
    v_add_u32 v14, %d, v14
    s_and_saveexec_b64 s[62:63], vcc
    ds_write_b32 v14, v30
    s_mov_b64 exec, s[62:63]
    s_waitcnt lgkmcnt(0)
    v_lshrrev_b32 v12, 5, v0
    v_lshlrev_b32 v12, 2, v12
    v_add_u32 v12, %d, v12
    ds_read_b32 v31, v12
    s_waitcnt lgkmcnt(0)
    v_and_b32 v13, 0xffff, v31
    v_sub_u32 v13, 2047, v13
    v_lshlrev_b32 v14, 10, v13
    v_and_b32 v15, 31, v0
    v_lshl_add_u32 v14, v15, 5, v14
    buffer_load_dwordx4 v[32:35], v14, s[8:11], 0 offen
    buffer_load_dwordx4 v[36:39], v14, s[8:11], 0 offen offset:16
    v_lshlrev_b32 v16, 3, v13
    v_add_u32 v16, %d, v16
    ds_read_b64 v[40:41], v16
    """ % (K3_SEL2, K3_SEL2, K3_MS2))
    a("""
    v_lshrrev_b32 v12, 5, v0
    v_mul_u32_u24 v12, 1040, v12
    v_lshl_add_u32 v12, v15, 5, v12
    v_add_u32 v12, %d, v12
    v_lshrrev_b32 v11, 4, v1
    v_bfe_u32 v10, v1, 2, 2
    v_lshl_add_u32 v17, v11, 3, v10
    v_lshlrev_b32 v17, 7, v17
    v_lshrrev_b32 v18, 1, v10
    v_and_b32 v19, 1, v11
    v_lshl_or_b32 v18, v19, 1, v18
    v_xor_b32 v18, s33, v18
    v_lshl_add_u32 v17, v18, 5, v17
    v_and_b32 v18, 3, v1
    v_lshl_add_u32 v8, v18, 3, v17
    v_add_u32 v9, %d, v8
    v_and_b32 v17, 7, v1
    v_mul_u32_u24 v17, 1040, v17
    v_lshl_add_u32 v17, v11, 4, v17
    v_add_u32 v17, %d, v17
    """ % (K3_XS2, K3_U, K3_XS2))
    a("v_mov_b32 v121, v14")
    a("s_waitcnt vmcnt(0) lgkmcnt(0)")
    for r in range(8):
        norm_pair(a, 32 + r, 40, 41, "xn")
    a("ds_write_b128 v12, v[32:35]")
    a("ds_write_b128 v12, v[36:39] offset:16")
    a("""
    v_and_b32 v51, 0xffff0000, v31
    v_ashrrev_i32 v50, 31, v51
    v_not_b32 v50, v50
    v_or_b32 v50, 0x80000000, v50
    v_xor_b32 v51, v51, v50
    v_and_b32 v51, 0xffff0000, v51
    v_mul_f32 v52, 0x%x, v51
    v_exp_f32 v52, v52
    s_nop 0
    v_add_f32 v52, 1.0, v52
    v_rcp_f32 v52, v52
    s_nop 0
    v_cvt_pk_bf16_f32 v52, v52, v52
    v_lshlrev_b32 v52, 16, v52
    """ % f2u(-LOG2E))
    a("s_cmp_lg_u32 s2, 0")
    a("s_cbranch_scc1 L_%s_nopub" % name)
    a("""
    v_lshlrev_b32 v12, 5, v0
    buffer_store_dwordx4 v[32:35], v12, s[48:51], 0 offen
    buffer_store_dwordx4 v[36:39], v12, s[48:51], 0 offen offset:16
    v_lshrrev_b32 v12, 5, v0
    v_lshlrev_b32 v12, 2, v12
    v_and_b32 v15, 31, v0
    v_cmp_eq_u32 vcc, 0, v15
    v_mov_b32 v53, 0x7ffffff0
    s_nop 0
    v_cndmask_b32 v12, v53, v12, vcc
    buffer_store_dword v13, v12, s[44:47], 0 offen
    buffer_store_dword v52, v12, s[44:47], 0 offen offset:32
    """)
    a.label("L_%s_nopub" % name)
    a("s_waitcnt lgkmcnt(0)")
    a("s_barrier")
    FR = [64, 76]

    def rd(s):
        F = FR[s & 1]
        return ["ds_read_b64_tr_b16 %s, v8 offset:%d" % (vr(F, 2), 4096 * s),
                "ds_read_b64_tr_b16 %s, v8 offset:%d" % (vr(F + 2, 2), 4096 * s + 512),
                "ds_read_b64_tr_b16 %s, v9 offset:%d" % (vr(F + 4, 2), 4096 * s),
                "ds_read_b64_tr_b16 %s, v9 offset:%d" % (vr(F + 6, 2), 4096 * s + 512),
                "ds_read_b128 %s, v17 offset:%d" % (vr(F + 8, 4), 64 * s)]
    for x in rd(0):
        a(x)
    for r in range(96, 104):
        a("v_mov_b32 v%d, 0" % r)
    a("s_mov_b32 s34, 0")
    a.label("L_%s_gu" % name)
    for x in rd(1):
        a(x)
    a("s_waitcnt lgkmcnt(5)")
    a("v_mfma_f32_16x16x32_bf16 v[96:99], %s, %s, v[96:99]" % (vr(64, 4), vr(72, 4)))
    a("v_mfma_f32_16x16x32_bf16 v[100:103], %s, %s, v[100:103]" % (vr(68, 4), vr(72, 4)))
    for x in rd(2):
        a(x)
    a("s_waitcnt lgkmcnt(5)")
    a("v_mfma_f32_16x16x32_bf16 v[96:99], %s, %s, v[96:99]" % (vr(76, 4), vr(84, 4)))
    a("v_mfma_f32_16x16x32_bf16 v[100:103], %s, %s, v[100:103]" % (vr(80, 4), vr(84, 4)))
    a("""
    v_add_u32 v8, 8192, v8
    v_add_u32 v9, 8192, v9
    v_add_u32 v17, 128, v17
    s_add_u32 s34, s34, 1
    s_cmp_lt_u32 s34, 8
    s_cbranch_scc1 L_%s_gu
    s_waitcnt lgkmcnt(0)
    """ % name)
    a("s_mov_b32 s34, 0x%x" % f2u(-LOG2E))
    a("""
    v_and_b32 v10, 15, v1
    v_mul_u32_u24 v10, %d, v10
    v_lshrrev_b32 v11, 4, v1
    v_lshl_add_u32 v12, v11, 3, v10
    s_lshl_b32 s35, s33, 5
    v_add_u32 v12, s35, v12
    v_add_u32 v12, %d, v12
    v_lshl_add_u32 v13, v11, 4, v10
    v_add_u32 v13, %d, v13
    """ % (K3_HP, K3_H, K3_H))
    for r in range(4):
        rbf(a, 96 + r)
        rbf(a, 100 + r)
    for r in range(4):
        a("v_mul_f32 v%d, s34, v%d" % (104 + r, 96 + r))
        a("v_exp_f32 v%d, v%d" % (104 + r, 104 + r))
    a("s_nop 0")
    for r in range(4):
        a("v_add_f32 v%d, 1.0, v%d" % (104 + r, 104 + r))
        a("v_rcp_f32 v%d, v%d" % (104 + r, 104 + r))
    a("s_nop 0")
    for r in range(4):
        a("v_mul_f32 v%d, v%d, v%d" % (96 + r, 96 + r, 104 + r))
        rbf(a, 96 + r)
        a("v_mul_f32 v%d, v%d, v%d" % (96 + r, 96 + r, 100 + r))
    a("v_cvt_pk_bf16_f32 v96, v96, v97")
    a("v_cvt_pk_bf16_f32 v97, v98, v99")
    a("ds_write_b64 v12, v[96:97]")
    a("s_waitcnt lgkmcnt(0)")
    a("s_barrier")
    a("ds_read_b128 v[64:67], v13")
    a("ds_read_b128 v[68:71], v13 offset:64")
    a("""
    v_lshrrev_b32 v10, 5, v1
    v_lshlrev_b32 v8, 4, v10
    v_bfe_u32 v10, v1, 4, 1
    v_lshl_add_u32 v8, v10, 2, v8
    v_bfe_u32 v10, v1, 2, 2
    v_add_u32 v8, v8, v10
    v_mul_u32_u24 v8, %d, v8
    v_and_b32 v10, 3, v1
    v_lshl_add_u32 v8, v10, 3, v8
    s_lshl_b32 s35, s33, 8
    v_add_u32 v8, s35, v8
    v_and_b32 v10, 15, v1
    v_lshlrev_b32 v14, 11, v10
    v_lshrrev_b32 v11, 4, v1
    v_lshl_add_u32 v14, v11, 4, v14
    s_lshl_b32 s35, s33, 9
    s_lshl_b32 s36, s2, 14
    s_add_u32 s35, s35, s36
    v_add_u32 v14, s35, v14
    v_cmp_gt_u32 vcc, 8, v10
    v_mov_b32 v15, 0x7ffffff0
    s_nop 0
    v_cndmask_b32 v14, v15, v14, vcc
    """ % K3_WDP)
    a("s_barrier")
    for ct in range(8):
        for s in range(2):
            b = 128 + 8 * ct + 4 * s
            a("ds_read_b64_tr_b16 %s, v8 offset:%d" % (vr(b, 2), K3_G + 32 * s * K3_WDP + 32 * ct))
            a("ds_read_b64_tr_b16 %s, v8 offset:%d" % (vr(b + 2, 2), K3_G + (32 * s + 8) * K3_WDP + 32 * ct))
    a("s_waitcnt lgkmcnt(0)")
    for ct in range(8):
        b = 128 + 8 * ct
        a("v_mfma_f32_16x16x32_bf16 %s, %s, v[64:67], 0" % (vr(72 + 4 * ct, 4), vr(b, 4)))
        a("v_mfma_f32_16x16x32_bf16 %s, %s, v[68:71], %s" % (vr(72 + 4 * ct, 4), vr(b + 4, 4), vr(72 + 4 * ct, 4)))
    a("s_nop 7")
    for ct in range(8):
        a("buffer_store_dwordx4 %s, v14, s[52:55], 0 offen offset:%d" % (vr(72 + 4 * ct, 4), 64 * ct))
    a.label("L_%s_end" % name)
    a("s_endpgm")
    return name, a.text() + kdesc(name, 192, 0)


def gen_k4(layer):
    a = Asm()
    name = "k4l%d_kernel" % layer
    khead(a, name)
    a("s_cmp_ge_u32 s2, 8")
    a("s_cbranch_scc1 L_%s_end" % name)
    a("s_load_dwordx2 s[24:25], s[0:1], 80")
    a("s_load_dwordx2 s[26:27], s[0:1], 64")
    a("s_waitcnt lgkmcnt(0)")
    srd(a, 4, 24, 25, SLAB_OFF[layer], 28 * 16384)
    srd(a, 8, 24, 25, X1_OFF, 2 * MB)
    if layer == 0:
        srd(a, 12, 24, 25, X2_OFF, 2 * MB)
    else:
        srd(a, 12, 26, 27, 0, 2 * MB)
    srd(a, 16, 24, 25, SEL_OFF[layer], 64)
    srd(a, 20, 24, 25, XS_OFF[layer], 8192)
    a("""
    s_lshl_b32 s3, s2, 2
    v_mov_b32 v2, s3
    buffer_load_dword v3, v2, s[16:19], 0 offen
    buffer_load_dword v4, v2, s[16:19], 0 offen offset:32
    s_lshl_b32 s3, s2, 10
    v_lshlrev_b32 v5, 2, v0
    v_add_u32 v6, s3, v5
    buffer_load_dword v7, v6, s[20:23], 0 offen
    s_lshl_b32 s3, s2, 11
    v_lshlrev_b32 v8, 3, v0
    v_add_u32 v8, s3, v8
    """)
    for p in range(28):
        a("s_mov_b32 s3, %d" % (16384 * p))
        a("buffer_load_dwordx2 %s, v8, s[4:7], s3 offen" % vr(16 + 2 * p, 2))
    a("s_waitcnt vmcnt(30)")
    a("v_lshl_add_u32 v9, v3, 10, v5")
    a("buffer_load_dword v10, v9, s[8:11], 0 offen")
    a("s_waitcnt vmcnt(1)")
    for p in range(1, 28):
        a("v_add_f32 v16, v16, v%d" % (16 + 2 * p))
        a("v_add_f32 v17, v17, v%d" % (17 + 2 * p))
    a("""
    v_cvt_pk_bf16_f32 v40, v16, v17
    v_lshlrev_b32 v41, 16, v40
    v_and_b32 v42, 0xffff0000, v40
    v_mul_f32 v41, v41, v4
    v_mul_f32 v42, v42, v4
    v_cvt_pk_bf16_f32 v40, v41, v42
    v_lshlrev_b32 v41, 16, v40
    v_and_b32 v42, 0xffff0000, v40
    v_lshlrev_b32 v43, 16, v7
    v_and_b32 v44, 0xffff0000, v7
    v_add_f32 v41, v41, v43
    v_add_f32 v42, v42, v44
    v_cvt_pk_bf16_f32 v40, v41, v42
    v_lshlrev_b32 v41, 16, v40
    v_and_b32 v42, 0xffff0000, v40
    s_waitcnt vmcnt(0)
    v_lshlrev_b32 v43, 16, v10
    v_and_b32 v44, 0xffff0000, v10
    v_add_f32 v41, v41, v43
    v_add_f32 v42, v42, v44
    v_cvt_pk_bf16_f32 v40, v41, v42
    buffer_store_dword v40, v9, s[12:15], 0 offen
    """)
    a.label("L_%s_end" % name)
    a("s_endpgm")
    return name, a.text() + kdesc(name, 80, 0)


def build_parts():
    parts = []
    launches = []
    for layer in range(2):
        for g, grid, blk, lds in ((gen_k1, 256, 512, K1_LDS2), (gen_k2, 256, 512, K2_LDS2), (gen_k3, 256, 512, K3_LDS2), (gen_k4, 8, 256, 0)):
            n, t = g(layer)
            parts.append(t)
            launches.append("; @launch kernel=%s grid=(%d,1,1) block=(%d,1,1) lds=%d" % (n, grid, blk, lds))
    return parts, launches


def main(out):
    parts, launches = build_parts()
    txt = HEADER + "\n".join(launches) + "\n" + '.amdgcn_target "amdgcn-amd-amdhsa--gfx950"\n' + "\n".join(parts)
    open(out, "w").write(txt)


if __name__ == "__main__":
    main(sys.argv[1] if len(sys.argv) > 1 else "interleave_layers__sliding_local_dilated__moe_arch_mod__prompt.s")
```

```python
from gen import *
import gen

ROT = True
K1_MISC = 0
K1_S0 = 1024
K1_SLOT = 36864
K1_AW = 12288
K1_LDS2 = K1_S0 + 4 * K1_SLOT


def gen_k1(layer):
    a = Asm()
    name = "k1l%d_kernel" % layer
    khead(a, name)
    a("s_cmp_ge_u32 s2, 256")
    a("s_cbranch_scc1 L_%s_end" % name)
    a("s_load_dwordx4 s[20:23], s[0:1], 0")
    a("s_load_dwordx2 s[24:25], s[0:1], 80")
    a("""
    s_and_b32 s3, s2, 7
    s_lshr_b32 s26, s2, 3
    s_lshl_b32 s27, s3, 2
    s_and_b32 s30, s26, 3
    s_add_u32 s27, s27, s30
    s_lshr_b32 s28, s26, 2
    v_lshrrev_b32 v1, 6, v0
    s_nop 0
    v_readfirstlane_b32 s29, v1
    v_and_b32 v1, 63, v0
    s_lshl_b32 s32, s28, 7
    s_mov_b32 s40, 0x%x
    s_mov_b32 s41, 0x%x
    s_cmp_lt_u32 s29, 4
    s_cbranch_scc1 L_%s_mm
    """ % (f2u(1.0 / 512), f2u(1e-5), name))
    sc = {"r512": 40, "eps": 41}

    def stats_ops(src, acc, t):
        ops = []
        for r in range(4):
            ops.append("v_lshlrev_b32 v%d, 16, v%d" % (t, src + r))
            ops.append("v_and_b32 v%d, 0xffff0000, v%d" % (t + 1, src + r))
            ops.append("v_add_f32 v%d, v%d, v%d" % (acc, acc, t))
            ops.append("v_add_f32 v%d, v%d, v%d" % (acc + 1, acc + 1, t + 1))
            ops.append("v_fma_f32 v%d, v%d, v%d, v%d" % (acc + 2, t, t, acc + 2))
            ops.append("v_fma_f32 v%d, v%d, v%d, v%d" % (acc + 3, t + 1, t + 1, acc + 3))
        return ops

    def stats_fin(acc, vrow):
        a("v_add_f32 v%d, v%d, v%d" % (acc, acc, acc + 1))
        a("v_add_f32 v%d, v%d, v%d" % (acc + 2, acc + 2, acc + 3))
        for m in ("quad_perm:[1,0,3,2]", "quad_perm:[2,3,0,1]", "row_half_mirror"):
            a("s_nop 1")
            a("v_add_f32_dpp v%d, v%d, v%d %s row_mask:0xf bank_mask:0xf" % (acc, acc, acc, m))
            a("v_add_f32_dpp v%d, v%d, v%d %s row_mask:0xf bank_mask:0xf" % (acc + 2, acc + 2, acc + 2, m))
        ln_finalize(a, acc, acc + 2, acc + 1, acc + 3, 36, sc)
        a("v_lshlrev_b32 v%d, 2, v%d" % (vrow, vrow))
        a("ds_write_b32 v%d, v%d offset:%d" % (vrow, acc + 1, K1_MISC))
        a("ds_write_b32 v%d, v%d offset:%d" % (vrow, acc + 3, K1_MISC + 512))

    a("s_sub_u32 s29, s29, 4")
    a("v_and_b32 v0, 255, v0")
    a("""
    s_lshl_b32 s30, s27, 6
    s_sub_u32 s30, s30, 16
    s_mul_i32 s31, s29, 24
    v_lshrrev_b32 v10, 3, v1
    v_add_u32 v10, s31, v10
    v_and_b32 v11, 7, v1
    """)
    for i in range(3):
        a("v_add_u32 v12, %d, v10" % (8 * i))
        a("v_bfe_u32 v13, v12, 1, 3")
        a("v_xor_b32 v13, v13, v11")
        a("v_add_u32 v14, s30, v12")
        a("v_lshlrev_b32 v14, 10, v14")
        a("v_lshl_add_u32 v%d, v13, 4, v14" % (2 + i))
        a("v_cmp_gt_u32 vcc, 80, v12")
        a("v_mov_b32 v13, 0x7ff00000")
        a("s_nop 0")
        a("v_cndmask_b32 v%d, v13, v%d, vcc" % (2 + i, 2 + i))
    a("""
    v_lshrrev_b32 v10, 3, v1
    v_mul_u32_u24 v12, 3072, v10
    v_bfe_u32 v13, v10, 1, 1
    v_lshlrev_b32 v13, 1, v13
    v_xor_b32 v13, v13, v11
    v_lshl_add_u32 v5, v13, 4, v12
    v_xor_b32 v13, 4, v13
    v_lshl_add_u32 v6, v13, 4, v12
    """)
    a("s_mul_i32 s31, s29, 6")
    for i in range(6):
        a("s_add_u32 s34, s31, %d" % i)
        a("s_and_b32 s35, s34, 7")
        a("s_mul_i32 s35, s35, 24576")
        a("s_lshr_b32 s34, s34, 3")
        a("s_lshl_b32 s34, s34, 10")
        a("s_add_u32 s35, s35, s34")
        a("s_add_u32 s%d, s35, s32" % (46 + i))
    a("s_mul_i32 s52, s29, 3072")
    a("s_add_u32 s52, s52, %d" % K1_S0)
    a("s_mul_i32 s53, s29, 6144")
    a("s_add_u32 s53, s53, %d" % (K1_S0 + K1_AW))
    a("""
    v_lshrrev_b32 v10, 3, v0
    v_and_b32 v11, 7, v0
    v_lshlrev_b32 v11, 4, v11
    v_add_u32 v44, 32, v10
    v_lshl_add_u32 v28, v44, 7, v11
    v_add_u32 v28, %d, v28
    v_add_u32 v45, 64, v10
    v_min_u32 v45, 79, v45
    v_lshl_add_u32 v48, v45, 7, v11
    v_add_u32 v48, %d, v48
    """ % (K1_S0, K1_S0))
    for sl in range(1, 4):
        a("v_add_u32 v%d, %d, v28" % (28 + sl, sl * K1_SLOT))
        a("v_add_u32 v%d, %d, v48" % (48 + sl, sl * K1_SLOT))
    for r in list(range(32, 36)) + list(range(52, 56)):
        a("v_mov_b32 v%d, 0" % r)
    a("s_waitcnt lgkmcnt(0)")
    if layer == 0:
        srd(a, 4, 20, 21, 0, 2 * MB)
    else:
        srd(a, 4, 24, 25, X2_OFF, 2 * MB)
    srd(a, 8, 22, 23, 0, 512 * 3072)
    srd(a, 16, 24, 25, ST_OFF[layer], 49152)

    def issue(c):
        sl = (c & 3) * K1_SLOT
        if ROT:
            a("s_add_u32 s35, s26, %d" % c)
            a("s_and_b32 s35, s35, 7")
            a("s_lshl_b32 s34, s35, 7")
            a("s_mul_i32 s35, s35, %d" % (64 * 3072))
        else:
            a("s_mov_b32 s34, %d" % (128 * c))
            a("s_mov_b32 s35, %d" % (c * 64 * 3072))
        for i in range(3):
            a("s_add_u32 m0, s52, %d" % (sl + 1024 * i))
            a("s_nop 0")
            a("buffer_load_dwordx4 v%d, s[4:7], s34 offen lds" % (2 + i))
        for i in range(6):
            a("s_add_u32 s34, s%d, s35" % (46 + i))
            a("s_add_u32 m0, s53, %d" % (sl + 1024 * i))
            a("s_nop 0")
            a("buffer_load_dwordx4 v%d, s[8:11], s34 offen lds" % (5 + (i & 1)))

    a("""
    v_lshlrev_b32 v10, 4, v0
    s_lshl_b32 s34, s2, 6
    s_add_u32 s34, s34, 32640
    v_add_u32 v12, s34, v10
    s_lshl_b32 s34, s2, 7
    v_add_u32 v10, s34, v10
    v_cmp_gt_u32 vcc, 12, v0
    v_mov_b32 v11, 0x7ffffff0
    s_nop 0
    v_cndmask_b32 v12, v11, v12, vcc
    v_cmp_gt_u32 vcc, 8, v0
    s_nop 1
    v_cndmask_b32 v10, v12, v10, vcc
    buffer_store_dwordx4 v[32:35], v10, s[16:19], 0 offen
    """)
    for c in range(3):
        issue(c)
    a("s_waitcnt vmcnt(18)")
    a("s_barrier")
    for c in range(8):
        issued_hi = min(c + 2, 7)
        need = min(c + 1, 7)
        a("s_waitcnt vmcnt(%d)" % (9 * (issued_hi - need)))
        a("s_barrier")
        if c + 3 < 8:
            issue(c + 3)
        a("ds_read_b128 v[40:43], v%d" % (28 + (c & 3)))
        a("ds_read_b128 v[56:59], v%d" % (48 + (c & 3)))
        a("s_waitcnt lgkmcnt(0)")
        for op in stats_ops(40, 32, 36) + stats_ops(56, 52, 36):
            a(op)
    stats_fin(32, 44)
    stats_fin(52, 45)
    a("""
    s_waitcnt lgkmcnt(0)
    s_barrier
    s_endpgm
    """)
    a.label("L_%s_mm" % name)
    a("""
    v_and_b32 v10, 15, v1
    v_lshrrev_b32 v11, 4, v1
    v_bfe_u32 v12, v10, 1, 3
    v_xor_b32 v12, v12, v11
    v_lshlrev_b32 v12, 4, v12
    v_lshl_add_u32 v16, v10, 7, v12
    v_add_u32 v16, %d, v16
    v_xor_b32 v20, 64, v16
    """ % K1_S0)
    a("""
    v_bfe_u32 v10, v1, 2, 2
    v_lshl_add_u32 v12, v11, 3, v10
    v_lshlrev_b32 v12, 7, v12
    v_lshrrev_b32 v13, 1, v10
    v_and_b32 v14, 1, v11
    v_lshl_or_b32 v13, v14, 1, v13
    v_xor_b32 v13, s29, v13
    v_lshl_add_u32 v12, v13, 5, v12
    v_and_b32 v13, 3, v1
    v_lshl_add_u32 v24, v13, 3, v12
    v_add_u32 v24, %d, v24
    """ % (K1_S0 + K1_AW))
    a("""
    v_lshrrev_b32 v172, 3, v0
    v_and_b32 v11, 7, v0
    v_lshlrev_b32 v11, 4, v11
    v_lshl_add_u32 v28, v172, 7, v11
    v_add_u32 v28, %d, v28
    """ % K1_S0)
    for sl in range(1, 4):
        for b in (16, 20, 24, 28):
            a("v_add_u32 v%d, %d, v%d" % (b + sl, sl * K1_SLOT, b))
    for r in range(32, 36):
        a("v_mov_b32 v%d, 0" % r)
    for r in range(36, 40):
        a("v_mov_b32 v%d, 0x%x" % (r, ONES_BF))
    a("s_waitcnt lgkmcnt(0)")
    srd(a, 12, 24, 25, O_OFF, 2 * MB)
    AF = [40, 60]
    BF = [80, 92]
    ACC = 104
    QA, KA, VA, CS = ACC, ACC + 16, ACC + 36, ACC + 56

    def reads(c, sp):
        sl = c & 3
        st = sp
        o = []
        for seg in range(3):
            off = seg * 8192 + sp * 4096
            o.append("ds_read_b64_tr_b16 %s, v%d offset:%d" % (vr(BF[st] + 4 * seg, 2), 24 + sl, off))
            o.append("ds_read_b64_tr_b16 %s, v%d offset:%d" % (vr(BF[st] + 4 * seg + 2, 2), 24 + sl, off + 512))
        for t in (1, 2, 3, 4, 0):
            o.append("ds_read_b128 %s, v%d offset:%d" % (vr(AF[st] + 4 * t, 4), (16 if sp == 0 else 20) + sl, t * 2048))
        return o

    def mfmas(first, st, fill=()):
        A, B = AF[st], BF[st]
        mf = []
        for t in range(4):
            mf.append((QA + 4 * t, vr(B, 4), vr(A + 4 * (t + 1), 4)))
        for t in range(5):
            mf.append((KA + 4 * t, vr(B + 4, 4), vr(A + 4 * t, 4)))
        for t in range(5):
            mf.append((VA + 4 * t, vr(A + 4 * t, 4), vr(B + 8, 4)))
        mf.append((CS, vr(B, 4), "v[36:39]"))
        mf.append((CS + 4, vr(B + 4, 4), "v[36:39]"))
        mf.append((CS + 8, "v[36:39]", vr(B + 8, 4)))
        fi = 0
        for (acc, x, y) in mf:
            a("v_mfma_f32_16x16x32_bf16 %s, %s, %s, %s" % (vr(acc, 4), x, y, "0" if first else vr(acc, 4)))
            n = 0
            while fi < len(fill) and n < 2:
                n += 2 if fill[fi].startswith("ds_") else 1
                a(fill[fi]); fi += 1
        while fi < len(fill):
            a(fill[fi]); fi += 1

    for c in range(8):
        a("s_barrier")
        if c == 0:
            for x in reads(0, 0):
                a(x)
        a("s_waitcnt lgkmcnt(0)")
        mfmas(c == 0, 0, reads(c, 1) + ["ds_read_b128 v[176:179], v%d" % (28 + (c & 3))])
        if c == 0:
            a("s_barrier")
        a("s_waitcnt lgkmcnt(0)")
        mfmas(False, 1, (reads(c + 1, 0) if c < 7 else []) + stats_ops(176, 32, 180))
    stats_fin(32, 172)
    a("s_waitcnt lgkmcnt(0)")
    a("s_barrier")
    a("""
    v_and_b32 v10, 15, v1
    v_lshlrev_b32 v10, 2, v10
    v_lshrrev_b32 v11, 4, v1
    v_lshlrev_b32 v11, 4, v11
    """)
    for t in range(5):
        a("ds_read_b32 v%d, v10 offset:%d" % (40 + t, K1_MISC + 64 * t))
        a("ds_read_b32 v%d, v10 offset:%d" % (45 + t, K1_MISC + 512 + 64 * t))
    for t in range(5):
        a("ds_read_b128 %s, v11 offset:%d" % (vr(52 + 8 * t, 4), K1_MISC + 64 * t))
        a("ds_read_b128 %s, v11 offset:%d" % (vr(56 + 8 * t, 4), K1_MISC + 512 + 64 * t))
    a("""
    v_and_b32 v188, 15, v1
    v_lshrrev_b32 v189, 4, v1
    v_and_b32 v190, 1, v1
    v_lshl_add_u32 v189, v189, 2, v190
    v_cmp_eq_u32 s[44:45], 1, v190
    v_cmp_le_u32 s[46:47], v189, v188
    v_add_u32 v189, 2, v189
    v_cmp_le_u32 s[48:49], v189, v188
    v_lshlrev_b32 v190, 4, v190
    s_cmp_eq_u32 s27, 0
    s_cselect_b32 s35, 0x%x, 0
    v_mov_b32 v191, s35
    v_mov_b32 v193, 0
    v_cndmask_b32 v192, v191, v193, s[46:47]
    v_cndmask_b32 v191, v191, v193, s[48:49]
    s_mov_b32 s42, 0x%x
    """ % (f2u(-1e30), f2u(0.25 * LOG2E)))
    a("s_waitcnt lgkmcnt(0)")
    QF, KF, VF = 196, 204, 214

    def pk_src(regs):
        if regs[0] == regs[1]:
            b = regs[0] & ~1
            return vr(b, 2), True, regs[0] & 1
        assert regs[1] == regs[0] + 1 and regs[0] % 2 == 0
        return vr(regs[0], 2), False, 0

    def norm(acc, cs_regs, m_regs, i_regs, dst):
        for h in range(2):
            m, mb, mo = pk_src(m_regs[2 * h:2 * h + 2])
            c, cb, co = pk_src(cs_regs[2 * h:2 * h + 2])
            lo = [mo if mb else 0, co if cb else 0, 0]
            hi = [mo if mb else 1, co if cb else 1, 1]
            a("v_pk_fma_f32 %s, %s, %s, %s op_sel:[%d,%d,%d] op_sel_hi:[%d,%d,%d] neg_lo:[1,0,0] neg_hi:[1,0,0]" % (
                vr(acc + 2 * h, 2), m, c, vr(acc + 2 * h, 2), *lo, *hi))
        for h in range(2):
            i, ib, io = pk_src(i_regs[2 * h:2 * h + 2])
            a("v_pk_mul_f32 %s, %s, %s op_sel:[%d,0] op_sel_hi:[%d,1]" % (
                vr(acc + 2 * h, 2), i, vr(acc + 2 * h, 2), io if ib else 0, io if ib else 1))
        a("v_cvt_pk_bf16_f32 v%d, v%d, v%d" % (dst, acc, acc + 1))
        a("v_cvt_pk_bf16_f32 v%d, v%d, v%d" % (dst + 1, acc + 2, acc + 3))

    for t in range(4):
        norm(QA + 4 * t, [CS + r for r in range(4)], [41 + t] * 4, [46 + t] * 4, QF + 2 * t)
    for t in range(5):
        norm(KA + 4 * t, [CS + 4 + r for r in range(4)], [40 + t] * 4, [45 + t] * 4, KF + 2 * t)
    for t in range(5):
        norm(VA + 4 * t, [CS + 8] * 4, [52 + 8 * t + r for r in range(4)], [56 + 8 * t + r for r in range(4)], VF + 2 * t)
    a("s_nop 1")
    SS = 104
    for t in range(4):
        q = vr(QF + 2 * t, 2)
        a("v_mfma_f32_16x16x16_bf16 %s, %s, %s, 0" % (vr(SS + 8 * t, 4), vr(KF + 2 * t, 2), q))
        a("v_mfma_f32_16x16x16_bf16 %s, %s, %s, 0" % (vr(SS + 8 * t + 4, 4), vr(KF + 2 * t + 2, 2), q))
    a("s_nop 7")
    E = 140
    for u in range(4):
        Sp, Sc = SS + 8 * u, SS + 8 * u + 4
        a("v_cndmask_b32 v194, v%d, v%d, s[44:45]" % (Sc, Sc + 1))
        a("v_cndmask_b32 v195, v%d, v%d, s[44:45]" % (Sp, Sp + 1))
        a("v_cndmask_b32 v%d, v195, v194, s[46:47]" % (E + 2 * u))
        a("v_cndmask_b32 v194, v%d, v%d, s[44:45]" % (Sc + 2, Sc + 3))
        a("v_cndmask_b32 v195, v%d, v%d, s[44:45]" % (Sp + 2, Sp + 3))
        a("v_cndmask_b32 v%d, v195, v194, s[48:49]" % (E + 1 + 2 * u))
    for u in range(4):
        a("v_cvt_pk_bf16_f32 v194, v%d, v%d" % (E + 2 * u, E + 1 + 2 * u))
        a("v_lshlrev_b32 v%d, 16, v194" % (E + 2 * u))
        a("v_and_b32 v%d, 0xffff0000, v194" % (E + 1 + 2 * u))
        b0, b1 = (192, 191) if u == 0 else (193, 193)
        a("v_fma_f32 v%d, v%d, s42, v%d" % (E + 2 * u, E + 2 * u, b0))
        a("v_fma_f32 v%d, v%d, s42, v%d" % (E + 1 + 2 * u, E + 1 + 2 * u, b1))
        a("v_max_f32 v%d, v%d, v%d" % (148 + u, E + 2 * u, E + 1 + 2 * u))
    bfly(a, "v_max_f32", [148, 149, 150, 151], [152, 153, 154, 155])
    for u in range(4):
        a("v_sub_f32 v%d, v%d, v%d" % (E + 2 * u, E + 2 * u, 148 + u))
        a("v_sub_f32 v%d, v%d, v%d" % (E + 1 + 2 * u, E + 1 + 2 * u, 148 + u))
        a("v_exp_f32 v%d, v%d" % (E + 2 * u, E + 2 * u))
        a("v_exp_f32 v%d, v%d" % (E + 1 + 2 * u, E + 1 + 2 * u))
    a("s_nop 0")
    for u in range(4):
        a("v_add_f32 v%d, v%d, v%d" % (148 + u, E + 2 * u, E + 1 + 2 * u))
    bfly(a, "v_add_f32", [148, 149, 150, 151], [152, 153, 154, 155])
    for u in range(4):
        a("v_rcp_f32 v%d, v%d" % (148 + u, 148 + u))
    a("s_nop 0")
    for u in range(4):
        a("v_mul_f32 v%d, v%d, v%d" % (E + 2 * u, E + 2 * u, 148 + u))
        a("v_mul_f32 v%d, v%d, v%d" % (E + 1 + 2 * u, E + 1 + 2 * u, 148 + u))
        a("v_cvt_pk_bf16_f32 v194, v%d, v%d" % (E + 2 * u, E + 1 + 2 * u))
        a("v_and_b32 v195, 0xffff, v194")
        a("v_lshlrev_b32 v195, v190, v195")
        a("v_lshrrev_b32 v194, 16, v194")
        a("v_lshlrev_b32 v194, v190, v194")
        P = 156 + 4 * u
        a("v_cndmask_b32 v%d, v195, v193, s[46:47]" % (P + 0))
        a("v_cndmask_b32 v%d, v194, v193, s[48:49]" % (P + 1))
        a("v_cndmask_b32 v%d, v193, v195, s[46:47]" % (P + 2))
        a("v_cndmask_b32 v%d, v193, v194, s[48:49]" % (P + 3))
    a("s_nop 1")
    for u in range(4):
        a("v_mfma_f32_16x16x32_bf16 %s, %s, %s, 0" % (vr(172 + 4 * u, 4), vr(VF + 2 * u, 4), vr(156 + 4 * u, 4)))
    a("""
    v_and_b32 v10, 15, v1
    v_lshlrev_b32 v10, 10, v10
    v_lshrrev_b32 v11, 4, v1
    v_lshl_add_u32 v10, v11, 3, v10
    s_lshl_b32 s34, s27, 16
    s_lshl_b32 s35, s29, 5
    s_add_u32 s34, s34, s35
    s_add_u32 s34, s34, s32
    v_add_u32 v10, s34, v10
    s_nop 2
    """)
    for u in range(4):
        a("v_cvt_pk_bf16_f32 v%d, v%d, v%d" % (40 + 2 * u, 172 + 4 * u, 173 + 4 * u))
        a("v_cvt_pk_bf16_f32 v%d, v%d, v%d" % (41 + 2 * u, 174 + 4 * u, 175 + 4 * u))
        a("s_mov_b32 s34, %d" % (16384 * u))
        a("buffer_store_dwordx2 %s, v10, s[12:15], s34 offen" % vr(40 + 2 * u, 2))
    a.label("L_%s_end" % name)
    a("s_endpgm")
    return name, a.text() + kdesc(name, 224, 0)


K2_CH = 16384
PREFETCH = True
DRY = False
K2_LDS2 = 8 * K2_CH


def gen_k2(layer):
    a = Asm()
    name = "k2l%d_kernel" % layer
    khead(a, name)
    a("s_cmp_ge_u32 s2, 256")
    a("s_cbranch_scc1 L_%s_end" % name)
    a("s_load_dwordx2 s[20:21], s[0:1], 0")
    a("s_load_dwordx2 s[22:23], s[0:1], 16")
    a("s_load_dwordx2 s[24:25], s[0:1], 80")
    a("s_load_dwordx2 s[36:37], s[0:1], 32")
    a("""
    s_and_b32 s3, s2, 7
    s_lshr_b32 s26, s2, 3
    s_lshl_b32 s27, s3, 2
    s_and_b32 s30, s26, 3
    s_add_u32 s27, s27, s30
    s_lshr_b32 s28, s26, 2
    v_lshrrev_b32 v1, 6, v0
    s_nop 0
    v_readfirstlane_b32 s29, v1
    v_and_b32 v1, 63, v0
    s_cmp_lt_u32 s29, 4
    s_cbranch_scc1 L_%s_mm
    """ % name)
    a("s_sub_u32 s29, s29, 4")
    a("""
    v_lshrrev_b32 v10, 3, v1
    v_and_b32 v11, 7, v1
    s_lshl_b32 s30, s27, 6
    s_lshl_b32 s31, s29, 4
    s_add_u32 s30, s30, s31
    v_add_u32 v12, s30, v10
    v_lshlrev_b32 v12, 10, v12
    v_lshrrev_b32 v13, 1, v10
    v_xor_b32 v13, v13, v11
    v_lshl_add_u32 v2, v13, 4, v12
    v_xor_b32 v13, 4, v13
    v_add_u32 v12, 8192, v12
    v_lshl_add_u32 v3, v13, 4, v12
    v_add_u32 v12, s31, v10
    v_lshlrev_b32 v12, 10, v12
    s_lshl_b32 s32, s28, 7
    v_add_u32 v12, s32, v12
    v_bfe_u32 v13, v10, 1, 1
    v_lshlrev_b32 v13, 1, v13
    v_xor_b32 v13, v13, v11
    v_lshl_add_u32 v4, v13, 4, v12
    v_xor_b32 v13, 4, v13
    v_add_u32 v12, 8192, v12
    v_lshl_add_u32 v5, v13, 4, v12
    s_lshl_b32 s52, s29, 11
    """)
    a("s_waitcnt lgkmcnt(0)")
    srd(a, 4, 24, 25, O_OFF, 2 * MB)
    srd(a, 8, 22, 23, 0, 512 * 1024)
    for c in range(8):
        if ROT:
            a("s_add_u32 s35, s26, %d" % c)
            a("s_and_b32 s35, s35, 7")
            a("s_lshl_b32 s34, s35, 7")
            a("s_lshl_b32 s35, s35, 16")
        else:
            a("s_mov_b32 s34, %d" % (128 * c))
            a("s_mov_b32 s35, %d" % (65536 * c))
        for i in range(2):
            a("s_add_u32 m0, s52, %d" % (c * K2_CH + 1024 * i))
            a("s_nop 0")
            a("buffer_load_dwordx4 v%d, s[4:7], s34 offen lds" % (2 + i))
        for i in range(2):
            a("s_add_u32 m0, s52, %d" % (c * K2_CH + 8192 + 1024 * i))
            a("s_nop 0")
            a("buffer_load_dwordx4 v%d, s[8:11], s35 offen lds" % (4 + i))
    npf = 0
    if layer == 0 and PREFETCH:
        a("s_load_dwordx4 s[56:59], s[0:1], 40")
        a("s_load_dwordx2 s[60:61], s[0:1], 56")
        a("""
        s_lshr_b32 s34, s2, 3
        s_and_b32 s34, s34, 3
        s_lshl_b32 s34, s34, 3
        s_add_u32 s34, s34, s3
        s_lshr_b32 s35, s2, 5
        s_lshl_b32 s35, s35, 2
        s_add_u32 s35, s35, s29
        v_lshrrev_b32 v10, 3, v1
        s_lshl_b32 s38, s35, 4
        v_add_u32 v10, s38, v10
        v_mul_u32_u24 v10, 3584, v10
        v_and_b32 v11, 7, v1
        v_lshl_add_u32 v10, v11, 4, v10
        s_lshl_b32 s38, s34, 7
        v_add_u32 v10, s38, v10
        s_lshl_b32 s38, s34, 16
        s_lshl_b32 s39, s35, 11
        s_add_u32 s38, s38, s39
        v_lshlrev_b32 v11, 4, v1
        v_add_u32 v11, s38, v11
        s_waitcnt lgkmcnt(0)
        """)
        srd(a, 40, 56, 57, 0, 512 * 3584)
        srd(a, 44, 58, 59, 0, 512 * 3584)
        srd(a, 48, 60, 61, 0, 1792 * 1024)
        a("s_mov_b32 s38, %d" % (8 * 3584))
        a("buffer_load_dwordx4 v[12:15], v10, s[40:43], 0 offen")
        a("buffer_load_dwordx4 v[16:19], v10, s[40:43], s38 offen")
        a("buffer_load_dwordx4 v[20:23], v10, s[44:47], 0 offen")
        a("buffer_load_dwordx4 v[24:27], v10, s[44:47], s38 offen")
        a("buffer_load_dwordx4 v[28:31], v11, s[48:51], 0 offen")
        a("buffer_load_dwordx4 v[32:35], v11, s[48:51], 0 offen offset:1024")
        npf = 6
    for j in range(4):
        a("s_waitcnt vmcnt(%d)" % (8 * (3 - j) + npf))
        a("s_barrier")
    a("s_endpgm")
    a.label("L_%s_mm" % name)
    a("""
    s_lshr_b32 s30, s29, 1
    s_and_b32 s31, s29, 1
    v_and_b32 v10, 15, v1
    v_lshrrev_b32 v11, 4, v1
    v_bfe_u32 v12, v10, 1, 3
    v_xor_b32 v12, v12, v11
    v_lshlrev_b32 v12, 4, v12
    v_lshl_add_u32 v16, v10, 7, v12
    s_lshl_b32 s34, s30, 12
    v_add_u32 v16, s34, v16
    v_xor_b32 v17, 64, v16
    v_add_u32 v18, 65536, v16
    v_add_u32 v19, 65536, v17
    v_bfe_u32 v10, v1, 2, 2
    v_lshl_add_u32 v12, v11, 3, v10
    v_lshlrev_b32 v12, 7, v12
    v_lshrrev_b32 v13, 1, v10
    v_and_b32 v14, 1, v11
    v_lshl_or_b32 v13, v14, 1, v13
    s_lshl_b32 s34, s31, 1
    v_xor_b32 v13, s34, v13
    v_and_b32 v14, 3, v1
    v_lshl_add_u32 v12, v14, 3, v12
    v_add_u32 v12, 8192, v12
    v_lshl_add_u32 v20, v13, 5, v12
    v_xor_b32 v13, 1, v13
    v_lshl_add_u32 v21, v13, 5, v12
    v_add_u32 v22, 65536, v20
    v_add_u32 v23, 65536, v21
    """)
    a("""
    s_lshl_b32 s34, s27, 6
    s_lshl_b32 s35, s30, 5
    s_add_u32 s34, s34, s35
    v_and_b32 v2, 15, v1
    v_add_u32 v2, s34, v2
    v_lshlrev_b32 v2, 10, v2
    v_lshrrev_b32 v10, 4, v1
    v_lshlrev_b32 v10, 3, v10
    s_lshl_b32 s35, s28, 7
    s_lshl_b32 s38, s31, 6
    s_add_u32 s35, s35, s38
    v_add_u32 v13, s35, v10
    v_add_u32 v9, v2, v13
    v_add_u32 v12, 0x4000, v9
    """)
    a("s_waitcnt lgkmcnt(0)")
    if layer == 0:
        srd(a, 12, 20, 21, 0, 2 * MB)
    else:
        srd(a, 12, 24, 25, X2_OFF, 2 * MB)
    srd(a, 16, 24, 25, X1_OFF, 2 * MB)
    srd(a, 40, 24, 25, ST_OFF[layer], 32768)
    srd(a, 44, 36, 37, 0, 1024)
    for ti, vo in enumerate((9, 12)):
        for ct in range(2):
            a("buffer_load_dwordx2 %s, v%d, s[12:15], 0 offen offset:%d" % (vr(48 + 4 * ti + 2 * ct, 2), vo, 32 * ct))
    for ct in range(2):
        a("buffer_load_dwordx2 %s, v13, s[44:47], 0 offen offset:%d" % (vr(56 + 2 * ct, 2), 32 * ct))
    FR = [96, 112]

    def reads(s):
        c, sp = s >> 1, s & 1
        hi = 2 if c >= 4 else 0
        co = (c & 3) * K2_CH
        F = FR[s & 1]
        o = []
        for ct in range(2):
            o.append("ds_read_b64_tr_b16 %s, v%d offset:%d" % (vr(F + 8 + 4 * ct, 2), 20 + ct + hi, co + sp * 4096))
            o.append("ds_read_b64_tr_b16 %s, v%d offset:%d" % (vr(F + 10 + 4 * ct, 2), 20 + ct + hi, co + sp * 4096 + 512))
        for t in range(2):
            o.append("ds_read_b128 %s, v%d offset:%d" % (vr(F + 4 * t, 4), 16 + sp + hi, co + t * 2048))
        return o

    for s in range(16):
        if (s & 3) == 0:
            a("s_barrier")
            for x in reads(s):
                a(x)
        a("s_waitcnt lgkmcnt(0)")
        fill = reads(s + 1) if (s & 3) != 3 else []
        F = FR[s & 1]
        fi = 0
        for ti in range(2):
            for ct in range(2):
                acc = 32 + 4 * (2 * ti + ct)
                a("v_mfma_f32_16x16x32_bf16 %s, %s, %s, %s" % (vr(acc, 4), vr(F + 8 + 4 * ct, 4), vr(F + 4 * ti, 4), "0" if s == 0 else vr(acc, 4)))
                for _ in range(2):
                    if fi < len(fill):
                        a(fill[fi]); fi += 1
    a("s_waitcnt vmcnt(0)")
    a("s_nop 7")
    for ct in range(2):
        for j in range(2):
            a("v_lshlrev_b32 v%d, 16, v%d" % (64 + 4 * ct + 2 * j, 56 + 2 * ct + j))
            a("v_and_b32 v%d, 0xffff0000, v%d" % (65 + 4 * ct + 2 * j, 56 + 2 * ct + j))
    for ti in range(2):
        S, Q, D = 80 + 4 * ti, 81 + 4 * ti, 82 + 4 * ti
        for ct in range(2):
            acc = 32 + 4 * (2 * ti + ct)
            xr = 48 + 4 * ti + 2 * ct
            for j in range(2):
                a("v_cvt_pk_bf16_f32 v72, v%d, v%d" % (acc + 2 * j, acc + 2 * j + 1))
                a("v_lshlrev_b32 v73, 16, v72")
                a("v_and_b32 v74, 0xffff0000, v72")
                a("v_lshlrev_b32 v75, 16, v%d" % (xr + j))
                a("v_and_b32 v76, 0xffff0000, v%d" % (xr + j))
                a("v_add_f32 v73, v73, v75")
                a("v_add_f32 v74, v74, v76")
                a("v_cvt_pk_bf16_f32 v%d, v73, v74" % (xr + j))
                a("v_lshlrev_b32 v73, 16, v%d" % (xr + j))
                a("v_and_b32 v74, 0xffff0000, v%d" % (xr + j))
                w0, w1 = 64 + 4 * ct + 2 * j, 65 + 4 * ct + 2 * j
                if ct == 0 and j == 0:
                    a("v_add_f32 v%d, v73, v74" % S)
                    a("v_mul_f32 v%d, v73, v73" % Q)
                    a("v_mul_f32 v%d, v73, v%d" % (D, w0))
                else:
                    a("v_add_f32 v%d, v%d, v73" % (S, S))
                    a("v_add_f32 v%d, v%d, v74" % (S, S))
                    a("v_fma_f32 v%d, v73, v73, v%d" % (Q, Q))
                    a("v_fma_f32 v%d, v73, v%d, v%d" % (D, w0, D))
                a("v_fma_f32 v%d, v74, v74, v%d" % (Q, Q))
                a("v_fma_f32 v%d, v74, v%d, v%d" % (D, w1, D))
            a("buffer_store_dwordx2 %s, v%d, s[16:19], 0 offen offset:%d" % (vr(xr, 2), (9, 12)[ti], 32 * ct))
    bfly(a, "v_add_f32", [80, 81, 82, 84, 85, 86], [88, 89, 90, 91, 92, 93])
    a("""
    v_lshrrev_b32 v88, 4, v1
    v_cmp_eq_u32 s[48:49], 1, v88
    v_cmp_eq_u32 s[50:51], 2, v88
    v_cmp_eq_u32 s[52:53], 3, v88
    v_lshrrev_b32 v89, 8, v2
    v_lshl_add_u32 v89, v88, 13, v89
    v_add_u32 v90, 64, v89
    """)
    for ti in range(2):
        S = 80 + 4 * ti
        a("v_cndmask_b32 v%d, v%d, v%d, s[48:49]" % (S, S, S + 1))
        a("v_cndmask_b32 v%d, v%d, v%d, s[50:51]" % (S, S, S + 2))
    a("s_andn2_b64 exec, exec, s[52:53]")
    for ti in range(2):
        S = 80 + 4 * ti
        a("buffer_atomic_add_f32 v%d, v%d, s[40:43], 0 offen" % (S, 89 + ti))
    a.label("L_%s_end" % name)
    a("s_endpgm")
    return name, a.text() + kdesc(name, 128, 0)


SLAB_OFF = [8 * MB, 8 * MB + 524288]
K3_G = 0
K3_U = 65536
K3_MS2 = 131072
K3_XS2 = K3_MS2 + 16384
K3_H = K3_XS2 + 8 * 1040 + 64
K3_HP = 144
K3_CAND2 = K3_H + 16 * K3_HP
K3_SEL2 = K3_CAND2 + 128
K3_FLG = K3_SEL2 + 128
K3_LDS2 = K3_FLG + 64
K3_WDP = 1056


def norm_pair(a, src, vm, vinv, mode, T=50):
    a("v_lshlrev_b32 v%d, 16, v%d" % (T, src))
    a("v_and_b32 v%d, 0xffff0000, v%d" % (T + 1, src))
    a("v_sub_f32 v%d, v%d, v%d" % (T + 2, T, vm))
    a("v_sub_f32 v%d, v%d, v%d" % (T + 3, T + 1, vm))
    a("v_cvt_pk_bf16_f32 v%d, v%d, v%d" % (T + 4, T + 2, T + 3))
    a("v_lshlrev_b32 v%d, 16, v%d" % (T + 2, T + 4))
    a("v_and_b32 v%d, 0xffff0000, v%d" % (T + 3, T + 4))
    a("v_mul_f32 v%d, v%d, v%d" % (T + 2, T + 2, vinv))
    a("v_mul_f32 v%d, v%d, v%d" % (T + 3, T + 3, vinv))
    if mode == "xn":
        a("v_cvt_pk_bf16_f32 v%d, v%d, v%d" % (src, T + 2, T + 3))
    else:
        a("v_cvt_pk_bf16_f32 v%d, v%d, v%d" % (T + 4, T + 2, T + 3))
        a("v_lshlrev_b32 v%d, 16, v%d" % (T + 2, T + 4))
        a("v_and_b32 v%d, 0xffff0000, v%d" % (T + 3, T + 4))
        a("v_add_f32 v%d, v%d, v%d" % (T + 2, T + 2, T))
        a("v_add_f32 v%d, v%d, v%d" % (T + 3, T + 3, T + 1))
        a("v_cvt_pk_bf16_f32 v%d, v%d, v%d" % (src, T + 2, T + 3))


def gen_k3(layer):
    a = Asm()
    name = "k3l%d_kernel" % layer
    khead(a, name)
    a("s_cmp_ge_u32 s2, 256")
    a("s_cbranch_scc1 L_%s_end" % name)
    a("s_load_dwordx4 s[20:23], s[0:1], 32")
    a("s_load_dwordx4 s[28:31], s[0:1], 48")
    a("s_load_dwordx2 s[24:25], s[0:1], 80")
    a("s_load_dwordx2 s[26:27], s[0:1], 64")
    a("s_load_dwordx2 s[64:65], s[0:1], 72")
    a("""
    v_lshrrev_b32 v1, 6, v0
    s_nop 0
    v_readfirstlane_b32 s33, v1
    v_and_b32 v1, 63, v0
    s_lshl_b32 s32, s2, 7
    s_mov_b32 s56, 0x%x
    s_mov_b32 s57, 0x%x
    s_mov_b32 s58, 0x%x
    s_cmp_lt_u32 s33, 4
    s_cbranch_scc1 L_%s_mm
    """ % (f2u(1.0 / 512), f2u(1e-5), ONES_BF, name))
    sc = {"r512": 56, "eps": 57}
    a("s_sub_u32 s33, s33, 4")
    a("v_and_b32 v0, 255, v0")
    a("s_waitcnt lgkmcnt(0)")
    srd(a, 4, 24, 25, ST_OFF[layer], 32768)
    srd(a, 8, 24, 25, X1_OFF, 2 * MB)
    if layer == 0:
        srd(a, 12, 24, 25, X2_OFF, 2 * MB)
    else:
        srd(a, 12, 26, 27, 0, 2 * MB)
    srd(a, 48, 64, 65, 0, 256)
    a("""
    s_and_b32 s35, s2, 7
    s_lshl_b32 s35, s35, 5
    s_lshr_b32 s34, s2, 3
    s_add_u32 s35, s35, s34
    s_lshl_b32 s34, s35, 13
    v_lshlrev_b32 v4, 4, v0
    v_add_u32 v4, s34, v4
    v_add_u32 v5, 4096, v4
    s_lshl_b32 s34, s35, 3
    s_add_u32 s34, s34, s33
    s_lshl_b32 s34, s34, 2
    v_mov_b32 v6, s34
    s_mov_b32 s34, 8192
    buffer_load_dword v8, v6, s[4:7], 0 offen
    buffer_load_dword v9, v6, s[4:7], s34 offen
    buffer_load_dword v12, v6, s[4:7], 0 offen offset:16
    buffer_load_dword v13, v6, s[4:7], s34 offen offset:16
    buffer_load_dwordx4 v[100:103], v4, s[8:11], 0 offen
    buffer_load_dwordx4 v[104:107], v5, s[8:11], 0 offen
    """)
    a("s_cmp_ge_u32 s2, 28")
    a("s_cbranch_scc1 L_%s_x2only" % name)
    a("s_barrier")
    srd(a, 36, 22, 23, 0, 512 * 3584)
    srd(a, 40, 28, 29, 0, 512 * 3584)
    srd(a, 44, 30, 31, 0, 1792 * 1024)
    a("""
    v_lshrrev_b32 v20, 3, v1
    v_and_b32 v21, 7, v1
    s_lshl_b32 s35, s33, 7
    v_add_u32 v22, s35, v20
    v_mul_u32_u24 v22, 3584, v22
    v_add_u32 v22, s32, v22
    v_bfe_u32 v23, v20, 1, 1
    v_lshlrev_b32 v23, 1, v23
    v_xor_b32 v23, v23, v21
    v_lshl_add_u32 v2, v23, 4, v22
    v_xor_b32 v23, 4, v23
    v_lshl_add_u32 v3, v23, 4, v22
    s_lshl_b32 s52, s33, 14
    """)
    for i in range(16):
        a("s_mov_b32 s34, %d" % (8 * i * 3584))
        a("s_add_u32 m0, s52, %d" % (K3_G + 1024 * i))
        a("s_nop 0")
        a("buffer_load_dwordx4 v%d, s[36:39], s34 offen lds" % (2 + (i & 1)))
        a("s_add_u32 m0, s52, %d" % (K3_U + 1024 * i))
        a("s_nop 0")
        a("buffer_load_dwordx4 v%d, s[40:43], s34 offen lds" % (2 + (i & 1)))
    a("""
    s_lshl_b32 s34, s2, 16
    s_lshl_b32 s35, s33, 14
    s_add_u32 s34, s34, s35
    v_lshlrev_b32 v7, 4, v1
    v_add_u32 v7, s34, v7
    """)
    for i in range(16):
        a("s_mov_b32 s34, %d" % (1024 * i))
        a("buffer_load_dwordx4 %s, v7, s[44:47], s34 offen" % vr(112 + 4 * i, 4))
    a("s_waitcnt vmcnt(48)")
    a("s_branch L_%s_x2" % name)
    a.label("L_%s_x2only" % name)
    a("s_waitcnt vmcnt(0)")
    a.label("L_%s_x2" % name)
    ln_finalize(a, 8, 9, 40, 41, 42, sc)
    ln_finalize(a, 12, 13, 43, 44, 45, sc)
    for r in range(4):
        norm_pair(a, 100 + r, 40, 41, "x2")
    a("buffer_store_dwordx4 v[100:103], v4, s[12:15], 0 offen")
    for r in range(4):
        norm_pair(a, 104 + r, 43, 44, "x2")
    a("buffer_store_dwordx4 v[104:107], v5, s[12:15], 0 offen")
    a("s_cmp_ge_u32 s2, 28")
    a("s_cbranch_scc1 L_%s_end" % name)
    a("s_waitcnt vmcnt(18)")
    a("s_barrier")
    a("""
    s_mul_i32 s34, s33, %d
    v_lshlrev_b32 v7, 4, v1
    v_add_u32 v7, s34, v7
    """ % (16 * K3_WDP))
    a("s_waitcnt vmcnt(2)")
    a("s_barrier")
    for i in range(16):
        pos = (i & 3) | ((i & 4) << 1) | ((i & 8) >> 1)
        a("ds_write_b128 v7, %s offset:%d" % (vr(112 + 4 * i, 4), K3_G + pos * K3_WDP))
    a("s_waitcnt lgkmcnt(0)")
    a("s_barrier")
    a("s_endpgm")
    a.label("L_%s_mm" % name)
    a("s_cmp_ge_u32 s2, 28")
    a("s_cbranch_scc1 L_%s_end" % name)
    a("""
    s_lshl_b32 s34, s33, 2
    v_mov_b32 v2, s34
    v_add_u32 v2, %d, v2
    v_mov_b32 v3, 0
    ds_write_b32 v2, v3
    """ % K3_FLG)
    a("s_setprio 3")
    a("s_waitcnt lgkmcnt(0)")
    a("s_barrier")
    srd(a, 4, 24, 25, ST_OFF[layer], 32768)
    srd(a, 8, 24, 25, X1_OFF, 2 * MB)
    srd(a, 16, 20, 21, 0, 1024)
    srd(a, 44, 24, 25, SEL_OFF[layer], 64)
    srd(a, 48, 24, 25, XS_OFF[layer], 8192)
    srd(a, 52, 24, 25, SLAB_OFF[layer], 28 * 16384)
    a("v_lshlrev_b32 v2, 5, v0")
    a("s_mov_b32 s34, 8192")
    a("s_mov_b32 s35, 16384")
    for q, so in enumerate(("0", "s34", "s35")):
        for h in range(2):
            a("buffer_load_dwordx4 %s, v2, s[4:7], %s offen offset:%d" % (vr(64 + 8 * q + 4 * h, 4), so, 16 * h))
    a("v_lshlrev_b32 v3, 4, v1")
    a("buffer_load_dwordx4 v[96:99], v3, s[16:19], 0 offen")
    if DRY:
        a("s_mov_b32 s99, 0")
        a("s_mov_b64 exec, 0")
        a("s_branch L_%s_r1" % name)
        a.label("L_%s_r0" % name)
    a("s_waitcnt vmcnt(0)")
    a.label("L_%s_r1" % name)
    a("v_mov_b32 v8, 0")
    for r in range(4):
        a("v_dot2_f32_bf16 v8, v%d, s58, v8" % (96 + r))
    a("s_nop 2")
    for sh in (1, 2, 4, 8):
        a("v_add_f32_dpp v8, v8, v8 row_ror:%d row_mask:0xf bank_mask:0xf" % sh)
        a("s_nop 1")
    bfly(a, "v_add_f32", [8], [9])
    a("v_lshlrev_b32 v10, 5, v0")
    a("v_lshlrev_b32 v11, 3, v0")
    a("v_sub_u32 v11, 2047, v11")
    a("v_add_u32 v10, %d, v10" % K3_MS2)
    a("s_mov_b32 s59, 0xffff0000")
    a("v_mov_b32 v9, v8")
    a("v_mov_b32 v2, s56")
    a("v_mov_b32 v3, s56")
    a("v_mov_b32 v4, s57")
    a("v_mov_b32 v5, s57")

    def unp(p, lo):
        a("v_lshlrev_b32 v%d, 16, v%d" % (lo, p))
        a("v_and_b32 v%d, s59, v%d" % (lo + 1, p))
    for p in range(4):
        S, Q, D = 64 + 2 * p, 72 + 2 * p, 80 + 2 * p
        a("v_pk_mul_f32 %s, %s, v[2:3]" % (vr(S, 2), vr(S, 2)))
        a("v_pk_mul_f32 %s, %s, v[2:3]" % (vr(Q, 2), vr(Q, 2)))
        a("v_pk_fma_f32 %s, %s, %s, %s neg_lo:[1,0,0] neg_hi:[1,0,0]" % (vr(Q, 2), vr(S, 2), vr(S, 2), vr(Q, 2)))
        a("v_max_f32 v%d, 0, v%d" % (Q, Q))
        a("v_max_f32 v%d, 0, v%d" % (Q + 1, Q + 1))
        a("v_cvt_pk_bf16_f32 v12, v%d, v%d" % (S, S + 1))
        a("v_cvt_pk_bf16_f32 v13, v%d, v%d" % (Q, Q + 1))
        unp(12, S)
        unp(13, Q)
        a("v_pk_add_f32 %s, %s, v[4:5]" % (vr(Q, 2), vr(Q, 2)))
        a("v_cvt_pk_bf16_f32 v13, v%d, v%d" % (Q, Q + 1))
        unp(13, Q)
        a("v_sqrt_f32 v%d, v%d" % (Q, Q))
        a("v_sqrt_f32 v%d, v%d" % (Q + 1, Q + 1))
        a("v_pk_fma_f32 %s, %s, v[8:9], %s neg_lo:[1,0,0] neg_hi:[1,0,0]" % (vr(D, 2), vr(S, 2), vr(D, 2)))
        a("v_cvt_pk_bf16_f32 v13, v%d, v%d" % (Q, Q + 1))
        unp(13, Q)
        a("v_rcp_f32 v%d, v%d" % (Q, Q))
        a("v_rcp_f32 v%d, v%d" % (Q + 1, Q + 1))
        a("s_nop 0")
        a("v_pk_mul_f32 %s, %s, %s" % (vr(D, 2), vr(D, 2), vr(Q, 2)))
        a("v_cvt_pk_bf16_f32 v13, v%d, v%d" % (D, D + 1))
        unp(13, D)
        for h in range(2):
            a("v_ashrrev_i32 v16, 31, v%d" % (D + h))
            a("v_or_b32 v16, 0x80000000, v16")
            a("v_xor_b32 v15, v%d, v16" % (D + h))
            a("v_subrev_u32 v16, %d, v11" % (2 * p + h))
            a("v_and_or_b32 v%d, v15, s59, v16" % (20 + 2 * p + h))
    a("ds_write_b128 v10, v[64:67]")
    a("ds_write_b128 v10, v[68:71] offset:16")
    a("ds_write_b128 v10, v[72:75] offset:8192")
    a("ds_write_b128 v10, v[76:79] offset:8208")
    net = [(0, 1), (2, 3), (4, 5), (6, 7), (0, 2), (1, 3), (4, 6), (5, 7), (1, 2), (5, 6),
           (0, 4), (1, 5), (2, 6), (3, 7), (2, 4), (3, 5), (1, 2), (3, 4), (5, 6)]
    for (i, j) in net:
        a("v_max_u32 v12, v%d, v%d" % (20 + i, 20 + j))
        a("v_min_u32 v%d, v%d, v%d" % (20 + j, 20 + i, 20 + j))
        a("v_mov_b32 v%d, v12" % (20 + i))
    a("v_mov_b32 v30, 0")
    a("v_mov_b32 v31, 0")
    a("s_mov_b32 s34, 0")
    a.label("L_%s_rd" % name)
    a("v_mov_b32 v12, v20")
    a("s_nop 1")
    for sh in (1, 2, 4, 8):
        a("v_max_u32_dpp v12, v12, v12 row_ror:%d row_mask:0xf bank_mask:0xf" % sh)
        a("s_nop 1")
    bfly(a, "v_max_u32", [12], [13])
    a("v_cmp_eq_u32 vcc, v12, v20")
    a("v_cmp_eq_u32 s[60:61], s34, v1")
    a("s_add_u32 s34, s34, 1")
    for i in range(7):
        a("v_cndmask_b32 v%d, v%d, v%d, vcc" % (20 + i, 20 + i, 21 + i))
    a("v_cndmask_b32 v27, v27, v31, vcc")
    a("v_cndmask_b32 v30, v30, v12, s[60:61]")
    a("s_cmp_lt_u32 s34, 8")
    a("s_cbranch_scc1 L_%s_rd" % name)
    if DRY:
        a("s_cmp_eq_u32 s99, 0")
        a("s_cbranch_scc0 L_%s_r2" % name)
        a("s_mov_b32 s99, 1")
        a("s_mov_b64 exec, -1")
        a("s_branch L_%s_r0" % name)
        a.label("L_%s_r2" % name)
    a("""
    s_lshl_b32 s34, s33, 5
    v_lshlrev_b32 v12, 2, v1
    v_add_u32 v12, s34, v12
    v_add_u32 v12, %d, v12
    v_cmp_gt_u32 vcc, 8, v1
    s_and_saveexec_b64 s[62:63], vcc
    ds_write_b32 v12, v30
    s_mov_b64 exec, s[62:63]
    s_lshl_b32 s34, s33, 2
    v_mov_b32 v12, s34
    v_add_u32 v12, %d, v12
    v_mov_b32 v13, 1
    ds_write_b32 v12, v13
    v_mov_b32 v12, %d
    """ % (K3_CAND2, K3_FLG, K3_FLG))
    a.label("L_%s_poll" % name)
    a("""
    ds_read_b128 v[32:35], v12
    s_waitcnt lgkmcnt(0)
    v_and_b32 v32, v32, v33
    v_and_b32 v34, v34, v35
    v_and_b32 v32, v32, v34
    v_cmp_eq_u32 vcc, 1, v32
    s_cbranch_vccz L_%s_poll
    """ % name)
    a("v_and_b32 v12, 31, v1")
    a("v_lshlrev_b32 v12, 2, v12")
    a("v_add_u32 v12, %d, v12" % K3_CAND2)
    a("ds_read_b32 v30, v12")
    a("v_mov_b32 v13, %d" % K3_CAND2)
    for i in range(8):
        a("ds_read_b128 %s, v13 offset:%d" % (vr(32 + 4 * i, 4), 16 * i))
    a("v_mov_b32 v14, 0")
    a("s_waitcnt lgkmcnt(0)")
    for i in range(32):
        a("v_cmp_gt_u32 vcc, v%d, v30" % (32 + i))
        a("v_addc_co_u32 v14, vcc, 0, v14, vcc")
    a("""
    v_cmp_gt_u32 vcc, 8, v14
    v_cmp_gt_u32 s[60:61], 32, v1
    s_and_b64 vcc, vcc, s[60:61]
    v_lshlrev_b32 v14, 2, v14
    v_add_u32 v14, %d, v14
    s_and_saveexec_b64 s[62:63], vcc
    ds_write_b32 v14, v30
    s_mov_b64 exec, s[62:63]
    s_waitcnt lgkmcnt(0)
    v_lshrrev_b32 v12, 5, v0
    v_lshlrev_b32 v12, 2, v12
    v_add_u32 v12, %d, v12
    ds_read_b32 v31, v12
    s_waitcnt lgkmcnt(0)
    v_and_b32 v13, 0xffff, v31
    v_sub_u32 v13, 2047, v13
    v_lshlrev_b32 v14, 10, v13
    v_and_b32 v15, 31, v0
    v_lshl_add_u32 v14, v15, 5, v14
    buffer_load_dwordx4 v[32:35], v14, s[8:11], 0 offen
    buffer_load_dwordx4 v[36:39], v14, s[8:11], 0 offen offset:16
    v_lshlrev_b32 v16, 2, v13
    v_add_u32 v16, %d, v16
    ds_read_b32 v40, v16
    ds_read_b32 v41, v16 offset:8192
    """ % (K3_SEL2, K3_SEL2, K3_MS2))
    a("""
    v_lshrrev_b32 v12, 5, v0
    v_mul_u32_u24 v12, 1040, v12
    v_lshl_add_u32 v12, v15, 5, v12
    v_add_u32 v12, %d, v12
    v_lshrrev_b32 v11, 4, v1
    v_bfe_u32 v10, v1, 2, 2
    v_lshl_add_u32 v17, v11, 3, v10
    v_lshlrev_b32 v17, 7, v17
    v_lshrrev_b32 v18, 1, v10
    v_and_b32 v19, 1, v11
    v_lshl_or_b32 v18, v19, 1, v18
    v_xor_b32 v18, s33, v18
    v_lshl_add_u32 v17, v18, 5, v17
    v_and_b32 v18, 3, v1
    v_lshl_add_u32 v8, v18, 3, v17
    v_add_u32 v9, %d, v8
    v_and_b32 v17, 7, v1
    v_mul_u32_u24 v17, 1040, v17
    v_lshl_add_u32 v17, v11, 4, v17
    v_add_u32 v17, %d, v17
    """ % (K3_XS2, K3_U, K3_XS2))
    a("v_mov_b32 v121, v14")
    a("s_waitcnt vmcnt(0) lgkmcnt(0)")
    for r in range(8):
        norm_pair(a, 32 + r, 40, 41, "xn")
    a("ds_write_b128 v12, v[32:35]")
    a("ds_write_b128 v12, v[36:39] offset:16")
    a("""
    v_and_b32 v51, 0xffff0000, v31
    v_ashrrev_i32 v50, 31, v51
    v_not_b32 v50, v50
    v_or_b32 v50, 0x80000000, v50
    v_xor_b32 v51, v51, v50
    v_and_b32 v51, 0xffff0000, v51
    v_mul_f32 v52, 0x%x, v51
    v_exp_f32 v52, v52
    s_nop 0
    v_add_f32 v52, 1.0, v52
    v_rcp_f32 v52, v52
    s_nop 0
    v_cvt_pk_bf16_f32 v52, v52, v52
    v_lshlrev_b32 v52, 16, v52
    """ % f2u(-LOG2E))
    a("s_cmp_lg_u32 s2, 0")
    a("s_cbranch_scc1 L_%s_nopub" % name)
    a("""
    v_lshlrev_b32 v12, 5, v0
    buffer_store_dwordx4 v[32:35], v12, s[48:51], 0 offen
    buffer_store_dwordx4 v[36:39], v12, s[48:51], 0 offen offset:16
    v_lshrrev_b32 v12, 5, v0
    v_lshlrev_b32 v12, 2, v12
    v_and_b32 v15, 31, v0
    v_cmp_eq_u32 vcc, 0, v15
    v_mov_b32 v53, 0x7ffffff0
    s_nop 0
    v_cndmask_b32 v12, v53, v12, vcc
    buffer_store_dword v13, v12, s[44:47], 0 offen
    buffer_store_dword v52, v12, s[44:47], 0 offen offset:32
    """)
    a.label("L_%s_nopub" % name)
    a("s_waitcnt lgkmcnt(0)")
    a("s_barrier")
    FR = [64, 76]

    def rd(s):
        F = FR[s & 1]
        return ["ds_read_b64_tr_b16 %s, v8 offset:%d" % (vr(F, 2), 4096 * s),
                "ds_read_b64_tr_b16 %s, v8 offset:%d" % (vr(F + 2, 2), 4096 * s + 512),
                "ds_read_b64_tr_b16 %s, v9 offset:%d" % (vr(F + 4, 2), 4096 * s),
                "ds_read_b64_tr_b16 %s, v9 offset:%d" % (vr(F + 6, 2), 4096 * s + 512),
                "ds_read_b128 %s, v17 offset:%d" % (vr(F + 8, 4), 64 * s)]
    for x in rd(0):
        a(x)
    for r in range(96, 104):
        a("v_mov_b32 v%d, 0" % r)
    a("s_mov_b32 s34, 0")
    a.label("L_%s_gu" % name)
    for x in rd(1):
        a(x)
    a("s_waitcnt lgkmcnt(5)")
    a("v_mfma_f32_16x16x32_bf16 v[96:99], %s, %s, v[96:99]" % (vr(64, 4), vr(72, 4)))
    a("v_mfma_f32_16x16x32_bf16 v[100:103], %s, %s, v[100:103]" % (vr(68, 4), vr(72, 4)))
    for x in rd(2):
        a(x)
    a("s_waitcnt lgkmcnt(5)")
    a("v_mfma_f32_16x16x32_bf16 v[96:99], %s, %s, v[96:99]" % (vr(76, 4), vr(84, 4)))
    a("v_mfma_f32_16x16x32_bf16 v[100:103], %s, %s, v[100:103]" % (vr(80, 4), vr(84, 4)))
    a("""
    v_add_u32 v8, 8192, v8
    v_add_u32 v9, 8192, v9
    v_add_u32 v17, 128, v17
    s_add_u32 s34, s34, 1
    s_cmp_lt_u32 s34, 8
    s_cbranch_scc1 L_%s_gu
    s_waitcnt lgkmcnt(0)
    """ % name)
    a("s_mov_b32 s34, 0x%x" % f2u(-LOG2E))
    a("""
    v_and_b32 v10, 15, v1
    v_mul_u32_u24 v10, %d, v10
    v_lshrrev_b32 v11, 4, v1
    v_lshl_add_u32 v12, v11, 3, v10
    s_lshl_b32 s35, s33, 5
    v_add_u32 v12, s35, v12
    v_add_u32 v12, %d, v12
    v_lshl_add_u32 v13, v11, 4, v10
    v_add_u32 v13, %d, v13
    """ % (K3_HP, K3_H, K3_H))
    for r in range(4):
        rbf(a, 96 + r)
        rbf(a, 100 + r)
    for r in range(4):
        a("v_mul_f32 v%d, s34, v%d" % (104 + r, 96 + r))
        a("v_exp_f32 v%d, v%d" % (104 + r, 104 + r))
    a("s_nop 0")
    for r in range(4):
        a("v_add_f32 v%d, 1.0, v%d" % (104 + r, 104 + r))
        a("v_rcp_f32 v%d, v%d" % (104 + r, 104 + r))
    a("s_nop 0")
    for r in range(4):
        a("v_mul_f32 v%d, v%d, v%d" % (96 + r, 96 + r, 104 + r))
        rbf(a, 96 + r)
        a("v_mul_f32 v%d, v%d, v%d" % (96 + r, 96 + r, 100 + r))
    a("v_cvt_pk_bf16_f32 v96, v96, v97")
    a("v_cvt_pk_bf16_f32 v97, v98, v99")
    a("ds_write_b64 v12, v[96:97]")
    a("s_waitcnt lgkmcnt(0)")
    a("s_barrier")
    a("ds_read_b128 v[64:67], v13")
    a("ds_read_b128 v[68:71], v13 offset:64")
    a("""
    v_lshrrev_b32 v10, 5, v1
    v_lshlrev_b32 v8, 4, v10
    v_bfe_u32 v10, v1, 4, 1
    v_lshl_add_u32 v8, v10, 2, v8
    v_bfe_u32 v10, v1, 2, 2
    v_add_u32 v8, v8, v10
    v_mul_u32_u24 v8, %d, v8
    v_and_b32 v10, 3, v1
    v_lshl_add_u32 v8, v10, 3, v8
    s_lshl_b32 s35, s33, 8
    v_add_u32 v8, s35, v8
    v_and_b32 v10, 15, v1
    v_lshlrev_b32 v14, 11, v10
    v_lshrrev_b32 v11, 4, v1
    v_lshl_add_u32 v14, v11, 4, v14
    s_lshl_b32 s35, s33, 9
    s_lshl_b32 s36, s2, 14
    s_add_u32 s35, s35, s36
    v_add_u32 v14, s35, v14
    v_cmp_gt_u32 vcc, 8, v10
    v_mov_b32 v15, 0x7ffffff0
    s_nop 0
    v_cndmask_b32 v14, v15, v14, vcc
    """ % K3_WDP)
    a("s_barrier")
    for ct in range(8):
        for s in range(2):
            b = 128 + 8 * ct + 4 * s
            a("ds_read_b64_tr_b16 %s, v8 offset:%d" % (vr(b, 2), K3_G + 32 * s * K3_WDP + 32 * ct))
            a("ds_read_b64_tr_b16 %s, v8 offset:%d" % (vr(b + 2, 2), K3_G + (32 * s + 8) * K3_WDP + 32 * ct))
    a("s_waitcnt lgkmcnt(0)")
    for ct in range(8):
        b = 128 + 8 * ct
        a("v_mfma_f32_16x16x32_bf16 %s, %s, v[64:67], 0" % (vr(72 + 4 * ct, 4), vr(b, 4)))
        a("v_mfma_f32_16x16x32_bf16 %s, %s, v[68:71], %s" % (vr(72 + 4 * ct, 4), vr(b + 4, 4), vr(72 + 4 * ct, 4)))
    a("s_nop 7")
    for ct in range(8):
        a("buffer_store_dwordx4 %s, v14, s[52:55], 0 offen offset:%d" % (vr(72 + 4 * ct, 4), 64 * ct))
    a.label("L_%s_end" % name)
    a("s_endpgm")
    return name, a.text() + kdesc(name, 192, 0)


def gen_k4(layer):
    a = Asm()
    name = "k4l%d_kernel" % layer
    khead(a, name)
    a("s_cmp_ge_u32 s2, 8")
    a("s_cbranch_scc1 L_%s_end" % name)
    a("s_load_dwordx2 s[24:25], s[0:1], 80")
    a("s_load_dwordx2 s[26:27], s[0:1], 64")
    a("s_waitcnt lgkmcnt(0)")
    srd(a, 4, 24, 25, SLAB_OFF[layer], 28 * 16384)
    srd(a, 8, 24, 25, X1_OFF, 2 * MB)
    if layer == 0:
        srd(a, 12, 24, 25, X2_OFF, 2 * MB)
    else:
        srd(a, 12, 26, 27, 0, 2 * MB)
    srd(a, 16, 24, 25, SEL_OFF[layer], 64)
    srd(a, 20, 24, 25, XS_OFF[layer], 8192)
    a("""
    s_lshl_b32 s3, s2, 2
    v_mov_b32 v2, s3
    buffer_load_dword v3, v2, s[16:19], 0 offen
    buffer_load_dword v4, v2, s[16:19], 0 offen offset:32
    s_lshl_b32 s3, s2, 10
    v_lshlrev_b32 v5, 2, v0
    v_add_u32 v6, s3, v5
    buffer_load_dword v7, v6, s[20:23], 0 offen
    s_lshl_b32 s3, s2, 11
    v_lshlrev_b32 v8, 3, v0
    v_add_u32 v8, s3, v8
    """)
    for p in range(28):
        a("s_mov_b32 s3, %d" % (16384 * p))
        a("buffer_load_dwordx2 %s, v8, s[4:7], s3 offen" % vr(16 + 2 * p, 2))
    a("s_waitcnt vmcnt(30)")
    a("v_lshl_add_u32 v9, v3, 10, v5")
    a("buffer_load_dword v10, v9, s[8:11], 0 offen")
    a("s_waitcnt vmcnt(1)")
    for p in range(1, 28):
        a("v_add_f32 v16, v16, v%d" % (16 + 2 * p))
        a("v_add_f32 v17, v17, v%d" % (17 + 2 * p))
    a("""
    v_cvt_pk_bf16_f32 v40, v16, v17
    v_lshlrev_b32 v41, 16, v40
    v_and_b32 v42, 0xffff0000, v40
    v_mul_f32 v41, v41, v4
    v_mul_f32 v42, v42, v4
    v_cvt_pk_bf16_f32 v40, v41, v42
    v_lshlrev_b32 v41, 16, v40
    v_and_b32 v42, 0xffff0000, v40
    v_lshlrev_b32 v43, 16, v7
    v_and_b32 v44, 0xffff0000, v7
    v_add_f32 v41, v41, v43
    v_add_f32 v42, v42, v44
    v_cvt_pk_bf16_f32 v40, v41, v42
    v_lshlrev_b32 v41, 16, v40
    v_and_b32 v42, 0xffff0000, v40
    s_waitcnt vmcnt(0)
    v_lshlrev_b32 v43, 16, v10
    v_and_b32 v44, 0xffff0000, v10
    v_add_f32 v41, v41, v43
    v_add_f32 v42, v42, v44
    v_cvt_pk_bf16_f32 v40, v41, v42
    buffer_store_dword v40, v9, s[12:15], 0 offen
    """)
    a.label("L_%s_end" % name)
    a("s_endpgm")
    return name, a.text() + kdesc(name, 80, 0)


def build_parts():
    parts = []
    launches = []
    for layer in range(2):
        for g, grid, blk, lds in ((gen_k1, 256, 512, K1_LDS2), (gen_k2, 256, 512, K2_LDS2), (gen_k3, 256, 512, K3_LDS2), (gen_k4, 8, 256, 0)):
            n, t = g(layer)
            parts.append(t)
            launches.append("; @launch kernel=%s grid=(%d,1,1) block=(%d,1,1) lds=%d" % (n, grid, blk, lds))
    return parts, launches


def main(out):
    parts, launches = build_parts()
    txt = HEADER + "\n".join(launches) + "\n" + '.amdgcn_target "amdgcn-amd-amdhsa--gfx950"\n' + "\n".join(parts)
    open(out, "w").write(txt)


if __name__ == "__main__":
    main(sys.argv[1] if len(sys.argv) > 1 else "interleave_layers__sliding_local_dilated__moe_arch_mod__prompt.s")
```

```python
from gen import *
import gen

ROT = True
THR = 0
K1_MISC = 0
K1_S0 = 1024
K1_SLOT = 36864
K1_AW = 12288
K1_LDS2 = K1_S0 + 4 * K1_SLOT


def gen_k1(layer):
    a = Asm()
    name = "k1l%d_kernel" % layer
    khead(a, name)
    a("s_cmp_ge_u32 s2, 256")
    a("s_cbranch_scc1 L_%s_end" % name)
    a("s_load_dwordx4 s[20:23], s[0:1], 0")
    a("s_load_dwordx2 s[24:25], s[0:1], 80")
    a("""
    s_and_b32 s3, s2, 7
    s_lshr_b32 s26, s2, 3
    s_lshl_b32 s27, s3, 2
    s_and_b32 s30, s26, 3
    s_add_u32 s27, s27, s30
    s_lshr_b32 s28, s26, 2
    v_lshrrev_b32 v1, 6, v0
    s_nop 0
    v_readfirstlane_b32 s29, v1
    v_and_b32 v1, 63, v0
    s_lshl_b32 s32, s28, 7
    s_mov_b32 s40, 0x%x
    s_mov_b32 s41, 0x%x
    s_cmp_lt_u32 s29, 4
    s_cbranch_scc1 L_%s_mm
    """ % (f2u(1.0 / 512), f2u(1e-5), name))
    sc = {"r512": 40, "eps": 41}

    def stats_ops(src, acc, t):
        ops = []
        for r in range(4):
            ops.append("v_lshlrev_b32 v%d, 16, v%d" % (t, src + r))
            ops.append("v_and_b32 v%d, 0xffff0000, v%d" % (t + 1, src + r))
            ops.append("v_add_f32 v%d, v%d, v%d" % (acc, acc, t))
            ops.append("v_add_f32 v%d, v%d, v%d" % (acc + 1, acc + 1, t + 1))
            ops.append("v_fma_f32 v%d, v%d, v%d, v%d" % (acc + 2, t, t, acc + 2))
            ops.append("v_fma_f32 v%d, v%d, v%d, v%d" % (acc + 3, t + 1, t + 1, acc + 3))
        return ops

    def stats_fin(acc, vrow):
        a("v_add_f32 v%d, v%d, v%d" % (acc, acc, acc + 1))
        a("v_add_f32 v%d, v%d, v%d" % (acc + 2, acc + 2, acc + 3))
        for m in ("quad_perm:[1,0,3,2]", "quad_perm:[2,3,0,1]", "row_half_mirror"):
            a("s_nop 1")
            a("v_add_f32_dpp v%d, v%d, v%d %s row_mask:0xf bank_mask:0xf" % (acc, acc, acc, m))
            a("v_add_f32_dpp v%d, v%d, v%d %s row_mask:0xf bank_mask:0xf" % (acc + 2, acc + 2, acc + 2, m))
        ln_finalize(a, acc, acc + 2, acc + 1, acc + 3, 36, sc)
        a("v_lshlrev_b32 v%d, 2, v%d" % (vrow, vrow))
        a("ds_write_b32 v%d, v%d offset:%d" % (vrow, acc + 1, K1_MISC))
        a("ds_write_b32 v%d, v%d offset:%d" % (vrow, acc + 3, K1_MISC + 512))

    a("s_sub_u32 s29, s29, 4")
    a("v_and_b32 v0, 255, v0")
    a("""
    s_lshl_b32 s30, s27, 6
    s_sub_u32 s30, s30, 16
    s_mul_i32 s31, s29, 24
    v_lshrrev_b32 v10, 3, v1
    v_add_u32 v10, s31, v10
    v_and_b32 v11, 7, v1
    """)
    for i in range(3):
        a("v_add_u32 v12, %d, v10" % (8 * i))
        a("v_bfe_u32 v13, v12, 1, 3")
        a("v_xor_b32 v13, v13, v11")
        a("v_add_u32 v14, s30, v12")
        a("v_lshlrev_b32 v14, 10, v14")
        a("v_lshl_add_u32 v%d, v13, 4, v14" % (2 + i))
        a("v_cmp_gt_u32 vcc, 80, v12")
        a("v_mov_b32 v13, 0x7ff00000")
        a("s_nop 0")
        a("v_cndmask_b32 v%d, v13, v%d, vcc" % (2 + i, 2 + i))
    a("""
    v_lshrrev_b32 v10, 3, v1
    v_mul_u32_u24 v12, 3072, v10
    v_bfe_u32 v13, v10, 1, 1
    v_lshlrev_b32 v13, 1, v13
    v_xor_b32 v13, v13, v11
    v_lshl_add_u32 v5, v13, 4, v12
    v_xor_b32 v13, 4, v13
    v_lshl_add_u32 v6, v13, 4, v12
    """)
    a("s_mul_i32 s31, s29, 6")
    for i in range(6):
        a("s_add_u32 s34, s31, %d" % i)
        a("s_and_b32 s35, s34, 7")
        a("s_mul_i32 s35, s35, 24576")
        a("s_lshr_b32 s34, s34, 3")
        a("s_lshl_b32 s34, s34, 10")
        a("s_add_u32 s35, s35, s34")
        a("s_add_u32 s%d, s35, s32" % (46 + i))
    a("s_mul_i32 s52, s29, 3072")
    a("s_add_u32 s52, s52, %d" % K1_S0)
    a("s_mul_i32 s53, s29, 6144")
    a("s_add_u32 s53, s53, %d" % (K1_S0 + K1_AW))
    a("""
    v_lshrrev_b32 v10, 3, v0
    v_and_b32 v11, 7, v0
    v_lshlrev_b32 v11, 4, v11
    v_add_u32 v44, 32, v10
    v_lshl_add_u32 v28, v44, 7, v11
    v_add_u32 v28, %d, v28
    v_add_u32 v45, 64, v10
    v_min_u32 v45, 79, v45
    v_lshl_add_u32 v48, v45, 7, v11
    v_add_u32 v48, %d, v48
    """ % (K1_S0, K1_S0))
    for sl in range(1, 4):
        a("v_add_u32 v%d, %d, v28" % (28 + sl, sl * K1_SLOT))
        a("v_add_u32 v%d, %d, v48" % (48 + sl, sl * K1_SLOT))
    for r in list(range(32, 36)) + list(range(52, 56)):
        a("v_mov_b32 v%d, 0" % r)
    a("s_waitcnt lgkmcnt(0)")
    if layer == 0:
        srd(a, 4, 20, 21, 0, 2 * MB)
    else:
        srd(a, 4, 24, 25, X2_OFF, 2 * MB)
    srd(a, 8, 22, 23, 0, 512 * 3072)
    srd(a, 16, 24, 25, ST_OFF[layer], 49152)

    def issue(c):
        sl = (c & 3) * K1_SLOT
        if ROT:
            a("s_add_u32 s35, s26, %d" % c)
            a("s_and_b32 s35, s35, 7")
            a("s_lshl_b32 s34, s35, 7")
            a("s_mul_i32 s35, s35, %d" % (64 * 3072))
        else:
            a("s_mov_b32 s34, %d" % (128 * c))
            a("s_mov_b32 s35, %d" % (c * 64 * 3072))
        for i in range(3):
            a("s_add_u32 m0, s52, %d" % (sl + 1024 * i))
            a("s_nop 0")
            a("buffer_load_dwordx4 v%d, s[4:7], s34 offen lds" % (2 + i))
        for i in range(6):
            a("s_add_u32 s34, s%d, s35" % (46 + i))
            a("s_add_u32 m0, s53, %d" % (sl + 1024 * i))
            a("s_nop 0")
            a("buffer_load_dwordx4 v%d, s[8:11], s34 offen lds" % (5 + (i & 1)))

    a("""
    v_lshlrev_b32 v10, 4, v0
    s_lshl_b32 s34, s2, 6
    s_add_u32 s34, s34, 32640
    v_add_u32 v12, s34, v10
    s_lshl_b32 s34, s2, 7
    v_add_u32 v10, s34, v10
    v_cmp_gt_u32 vcc, 12, v0
    v_mov_b32 v11, 0x7ffffff0
    s_nop 0
    v_cndmask_b32 v12, v11, v12, vcc
    v_cmp_gt_u32 vcc, 8, v0
    s_nop 1
    v_cndmask_b32 v10, v12, v10, vcc
    buffer_store_dwordx4 v[32:35], v10, s[16:19], 0 offen
    """)
    for c in range(3):
        issue(c)
    a("s_waitcnt vmcnt(18)")
    a("s_barrier")
    for c in range(8):
        issued_hi = min(c + 2, 7)
        need = min(c + 1, 7)
        a("s_waitcnt vmcnt(%d)" % (9 * (issued_hi - need)))
        a("s_barrier")
        if c + 3 < 8:
            issue(c + 3)
        a("ds_read_b128 v[40:43], v%d" % (28 + (c & 3)))
        a("ds_read_b128 v[56:59], v%d" % (48 + (c & 3)))
        a("s_waitcnt lgkmcnt(0)")
        for op in stats_ops(40, 32, 36) + stats_ops(56, 52, 36):
            a(op)
    stats_fin(32, 44)
    stats_fin(52, 45)
    a("""
    s_waitcnt lgkmcnt(0)
    s_barrier
    s_endpgm
    """)
    a.label("L_%s_mm" % name)
    a("""
    v_and_b32 v10, 15, v1
    v_lshrrev_b32 v11, 4, v1
    v_bfe_u32 v12, v10, 1, 3
    v_xor_b32 v12, v12, v11
    v_lshlrev_b32 v12, 4, v12
    v_lshl_add_u32 v16, v10, 7, v12
    v_add_u32 v16, %d, v16
    v_xor_b32 v20, 64, v16
    """ % K1_S0)
    a("""
    v_bfe_u32 v10, v1, 2, 2
    v_lshl_add_u32 v12, v11, 3, v10
    v_lshlrev_b32 v12, 7, v12
    v_lshrrev_b32 v13, 1, v10
    v_and_b32 v14, 1, v11
    v_lshl_or_b32 v13, v14, 1, v13
    v_xor_b32 v13, s29, v13
    v_lshl_add_u32 v12, v13, 5, v12
    v_and_b32 v13, 3, v1
    v_lshl_add_u32 v24, v13, 3, v12
    v_add_u32 v24, %d, v24
    """ % (K1_S0 + K1_AW))
    a("""
    v_lshrrev_b32 v172, 3, v0
    v_and_b32 v11, 7, v0
    v_lshlrev_b32 v11, 4, v11
    v_lshl_add_u32 v28, v172, 7, v11
    v_add_u32 v28, %d, v28
    """ % K1_S0)
    for sl in range(1, 4):
        for b in (16, 20, 24, 28):
            a("v_add_u32 v%d, %d, v%d" % (b + sl, sl * K1_SLOT, b))
    for r in range(32, 36):
        a("v_mov_b32 v%d, 0" % r)
    for r in range(36, 40):
        a("v_mov_b32 v%d, 0x%x" % (r, ONES_BF))
    a("s_waitcnt lgkmcnt(0)")
    srd(a, 12, 24, 25, O_OFF, 2 * MB)
    AF = [40, 60]
    BF = [80, 92]
    ACC = 104
    QA, KA, VA, CS = ACC, ACC + 16, ACC + 36, ACC + 56

    def reads(c, sp):
        sl = c & 3
        st = sp
        o = []
        for seg in range(3):
            off = seg * 8192 + sp * 4096
            o.append("ds_read_b64_tr_b16 %s, v%d offset:%d" % (vr(BF[st] + 4 * seg, 2), 24 + sl, off))
            o.append("ds_read_b64_tr_b16 %s, v%d offset:%d" % (vr(BF[st] + 4 * seg + 2, 2), 24 + sl, off + 512))
        for t in (1, 2, 3, 4, 0):
            o.append("ds_read_b128 %s, v%d offset:%d" % (vr(AF[st] + 4 * t, 4), (16 if sp == 0 else 20) + sl, t * 2048))
        return o

    def mfmas(first, st, fill=()):
        A, B = AF[st], BF[st]
        mf = []
        for t in range(4):
            mf.append((QA + 4 * t, vr(B, 4), vr(A + 4 * (t + 1), 4)))
        for t in range(5):
            mf.append((KA + 4 * t, vr(B + 4, 4), vr(A + 4 * t, 4)))
        for t in range(5):
            mf.append((VA + 4 * t, vr(A + 4 * t, 4), vr(B + 8, 4)))
        mf.append((CS, vr(B, 4), "v[36:39]"))
        mf.append((CS + 4, vr(B + 4, 4), "v[36:39]"))
        mf.append((CS + 8, "v[36:39]", vr(B + 8, 4)))
        fi = 0
        for (acc, x, y) in mf:
            a("v_mfma_f32_16x16x32_bf16 %s, %s, %s, %s" % (vr(acc, 4), x, y, "0" if first else vr(acc, 4)))
            n = 0
            while fi < len(fill) and n < 2:
                n += 2 if fill[fi].startswith("ds_") else 1
                a(fill[fi]); fi += 1
        while fi < len(fill):
            a(fill[fi]); fi += 1

    for c in range(8):
        a("s_barrier")
        if c == 0:
            for x in reads(0, 0):
                a(x)
        a("s_waitcnt lgkmcnt(0)")
        mfmas(c == 0, 0, reads(c, 1) + ["ds_read_b128 v[176:179], v%d" % (28 + (c & 3))])
        if c == 0:
            a("s_barrier")
        a("s_waitcnt lgkmcnt(0)")
        mfmas(False, 1, (reads(c + 1, 0) if c < 7 else []) + stats_ops(176, 32, 180))
    stats_fin(32, 172)
    a("s_waitcnt lgkmcnt(0)")
    a("s_barrier")
    a("""
    v_and_b32 v10, 15, v1
    v_lshlrev_b32 v10, 2, v10
    v_lshrrev_b32 v11, 4, v1
    v_lshlrev_b32 v11, 4, v11
    """)
    for t in range(5):
        a("ds_read_b32 v%d, v10 offset:%d" % (40 + t, K1_MISC + 64 * t))
        a("ds_read_b32 v%d, v10 offset:%d" % (45 + t, K1_MISC + 512 + 64 * t))
    for t in range(5):
        a("ds_read_b128 %s, v11 offset:%d" % (vr(52 + 8 * t, 4), K1_MISC + 64 * t))
        a("ds_read_b128 %s, v11 offset:%d" % (vr(56 + 8 * t, 4), K1_MISC + 512 + 64 * t))
    a("""
    v_and_b32 v188, 15, v1
    v_lshrrev_b32 v189, 4, v1
    v_and_b32 v190, 1, v1
    v_lshl_add_u32 v189, v189, 2, v190
    v_cmp_eq_u32 s[44:45], 1, v190
    v_cmp_le_u32 s[46:47], v189, v188
    v_add_u32 v189, 2, v189
    v_cmp_le_u32 s[48:49], v189, v188
    v_lshlrev_b32 v190, 4, v190
    s_cmp_eq_u32 s27, 0
    s_cselect_b32 s35, 0x%x, 0
    v_mov_b32 v191, s35
    v_mov_b32 v193, 0
    v_cndmask_b32 v192, v191, v193, s[46:47]
    v_cndmask_b32 v191, v191, v193, s[48:49]
    s_mov_b32 s42, 0x%x
    """ % (f2u(-1e30), f2u(0.25 * LOG2E)))
    a("s_waitcnt lgkmcnt(0)")
    QF, KF, VF = 196, 204, 214

    def pk_src(regs):
        if regs[0] == regs[1]:
            b = regs[0] & ~1
            return vr(b, 2), True, regs[0] & 1
        assert regs[1] == regs[0] + 1 and regs[0] % 2 == 0
        return vr(regs[0], 2), False, 0

    def norm(acc, cs_regs, m_regs, i_regs, dst):
        for h in range(2):
            m, mb, mo = pk_src(m_regs[2 * h:2 * h + 2])
            c, cb, co = pk_src(cs_regs[2 * h:2 * h + 2])
            lo = [mo if mb else 0, co if cb else 0, 0]
            hi = [mo if mb else 1, co if cb else 1, 1]
            a("v_pk_fma_f32 %s, %s, %s, %s op_sel:[%d,%d,%d] op_sel_hi:[%d,%d,%d] neg_lo:[1,0,0] neg_hi:[1,0,0]" % (
                vr(acc + 2 * h, 2), m, c, vr(acc + 2 * h, 2), *lo, *hi))
        for h in range(2):
            i, ib, io = pk_src(i_regs[2 * h:2 * h + 2])
            a("v_pk_mul_f32 %s, %s, %s op_sel:[%d,0] op_sel_hi:[%d,1]" % (
                vr(acc + 2 * h, 2), i, vr(acc + 2 * h, 2), io if ib else 0, io if ib else 1))
        a("v_cvt_pk_bf16_f32 v%d, v%d, v%d" % (dst, acc, acc + 1))
        a("v_cvt_pk_bf16_f32 v%d, v%d, v%d" % (dst + 1, acc + 2, acc + 3))

    for t in range(4):
        norm(QA + 4 * t, [CS + r for r in range(4)], [41 + t] * 4, [46 + t] * 4, QF + 2 * t)
    for t in range(5):
        norm(KA + 4 * t, [CS + 4 + r for r in range(4)], [40 + t] * 4, [45 + t] * 4, KF + 2 * t)
    for t in range(5):
        norm(VA + 4 * t, [CS + 8] * 4, [52 + 8 * t + r for r in range(4)], [56 + 8 * t + r for r in range(4)], VF + 2 * t)
    a("s_nop 1")
    SS = 104
    for t in range(4):
        q = vr(QF + 2 * t, 2)
        a("v_mfma_f32_16x16x16_bf16 %s, %s, %s, 0" % (vr(SS + 8 * t, 4), vr(KF + 2 * t, 2), q))
        a("v_mfma_f32_16x16x16_bf16 %s, %s, %s, 0" % (vr(SS + 8 * t + 4, 4), vr(KF + 2 * t + 2, 2), q))
    a("s_nop 7")
    E = 140
    for u in range(4):
        Sp, Sc = SS + 8 * u, SS + 8 * u + 4
        a("v_cndmask_b32 v194, v%d, v%d, s[44:45]" % (Sc, Sc + 1))
        a("v_cndmask_b32 v195, v%d, v%d, s[44:45]" % (Sp, Sp + 1))
        a("v_cndmask_b32 v%d, v195, v194, s[46:47]" % (E + 2 * u))
        a("v_cndmask_b32 v194, v%d, v%d, s[44:45]" % (Sc + 2, Sc + 3))
        a("v_cndmask_b32 v195, v%d, v%d, s[44:45]" % (Sp + 2, Sp + 3))
        a("v_cndmask_b32 v%d, v195, v194, s[48:49]" % (E + 1 + 2 * u))
    for u in range(4):
        a("v_cvt_pk_bf16_f32 v194, v%d, v%d" % (E + 2 * u, E + 1 + 2 * u))
        a("v_lshlrev_b32 v%d, 16, v194" % (E + 2 * u))
        a("v_and_b32 v%d, 0xffff0000, v194" % (E + 1 + 2 * u))
        b0, b1 = (192, 191) if u == 0 else (193, 193)
        a("v_fma_f32 v%d, v%d, s42, v%d" % (E + 2 * u, E + 2 * u, b0))
        a("v_fma_f32 v%d, v%d, s42, v%d" % (E + 1 + 2 * u, E + 1 + 2 * u, b1))
        a("v_max_f32 v%d, v%d, v%d" % (148 + u, E + 2 * u, E + 1 + 2 * u))
    bfly(a, "v_max_f32", [148, 149, 150, 151], [152, 153, 154, 155])
    for u in range(4):
        a("v_sub_f32 v%d, v%d, v%d" % (E + 2 * u, E + 2 * u, 148 + u))
        a("v_sub_f32 v%d, v%d, v%d" % (E + 1 + 2 * u, E + 1 + 2 * u, 148 + u))
        a("v_exp_f32 v%d, v%d" % (E + 2 * u, E + 2 * u))
        a("v_exp_f32 v%d, v%d" % (E + 1 + 2 * u, E + 1 + 2 * u))
    a("s_nop 0")
    for u in range(4):
        a("v_add_f32 v%d, v%d, v%d" % (148 + u, E + 2 * u, E + 1 + 2 * u))
    bfly(a, "v_add_f32", [148, 149, 150, 151], [152, 153, 154, 155])
    for u in range(4):
        a("v_rcp_f32 v%d, v%d" % (148 + u, 148 + u))
    a("s_nop 0")
    for u in range(4):
        a("v_mul_f32 v%d, v%d, v%d" % (E + 2 * u, E + 2 * u, 148 + u))
        a("v_mul_f32 v%d, v%d, v%d" % (E + 1 + 2 * u, E + 1 + 2 * u, 148 + u))
        a("v_cvt_pk_bf16_f32 v194, v%d, v%d" % (E + 2 * u, E + 1 + 2 * u))
        a("v_and_b32 v195, 0xffff, v194")
        a("v_lshlrev_b32 v195, v190, v195")
        a("v_lshrrev_b32 v194, 16, v194")
        a("v_lshlrev_b32 v194, v190, v194")
        P = 156 + 4 * u
        a("v_cndmask_b32 v%d, v195, v193, s[46:47]" % (P + 0))
        a("v_cndmask_b32 v%d, v194, v193, s[48:49]" % (P + 1))
        a("v_cndmask_b32 v%d, v193, v195, s[46:47]" % (P + 2))
        a("v_cndmask_b32 v%d, v193, v194, s[48:49]" % (P + 3))
    a("s_nop 1")
    for u in range(4):
        a("v_mfma_f32_16x16x32_bf16 %s, %s, %s, 0" % (vr(172 + 4 * u, 4), vr(VF + 2 * u, 4), vr(156 + 4 * u, 4)))
    a("""
    v_and_b32 v10, 15, v1
    v_lshlrev_b32 v10, 10, v10
    v_lshrrev_b32 v11, 4, v1
    v_lshl_add_u32 v10, v11, 3, v10
    s_lshl_b32 s34, s27, 16
    s_lshl_b32 s35, s29, 5
    s_add_u32 s34, s34, s35
    s_add_u32 s34, s34, s32
    v_add_u32 v10, s34, v10
    s_nop 2
    """)
    for u in range(4):
        a("v_cvt_pk_bf16_f32 v%d, v%d, v%d" % (40 + 2 * u, 172 + 4 * u, 173 + 4 * u))
        a("v_cvt_pk_bf16_f32 v%d, v%d, v%d" % (41 + 2 * u, 174 + 4 * u, 175 + 4 * u))
        a("s_mov_b32 s34, %d" % (16384 * u))
        a("buffer_store_dwordx2 %s, v10, s[12:15], s34 offen" % vr(40 + 2 * u, 2))
    a.label("L_%s_end" % name)
    a("s_endpgm")
    return name, a.text() + kdesc(name, 224, 0)


K2_CH = 16384
PREFETCH = True
DRY = False
K2_LDS2 = 8 * K2_CH


def gen_k2(layer):
    a = Asm()
    name = "k2l%d_kernel" % layer
    khead(a, name)
    a("s_cmp_ge_u32 s2, 256")
    a("s_cbranch_scc1 L_%s_end" % name)
    a("s_load_dwordx2 s[20:21], s[0:1], 0")
    a("s_load_dwordx2 s[22:23], s[0:1], 16")
    a("s_load_dwordx2 s[24:25], s[0:1], 80")
    a("s_load_dwordx2 s[36:37], s[0:1], 32")
    a("""
    s_and_b32 s3, s2, 7
    s_lshr_b32 s26, s2, 3
    s_lshl_b32 s27, s3, 2
    s_and_b32 s30, s26, 3
    s_add_u32 s27, s27, s30
    s_lshr_b32 s28, s26, 2
    v_lshrrev_b32 v1, 6, v0
    s_nop 0
    v_readfirstlane_b32 s29, v1
    v_and_b32 v1, 63, v0
    s_cmp_lt_u32 s29, 4
    s_cbranch_scc1 L_%s_mm
    """ % name)
    a("s_sub_u32 s29, s29, 4")
    a("""
    v_lshrrev_b32 v10, 3, v1
    v_and_b32 v11, 7, v1
    s_lshl_b32 s30, s27, 6
    s_lshl_b32 s31, s29, 4
    s_add_u32 s30, s30, s31
    v_add_u32 v12, s30, v10
    v_lshlrev_b32 v12, 10, v12
    v_lshrrev_b32 v13, 1, v10
    v_xor_b32 v13, v13, v11
    v_lshl_add_u32 v2, v13, 4, v12
    v_xor_b32 v13, 4, v13
    v_add_u32 v12, 8192, v12
    v_lshl_add_u32 v3, v13, 4, v12
    v_add_u32 v12, s31, v10
    v_lshlrev_b32 v12, 10, v12
    s_lshl_b32 s32, s28, 7
    v_add_u32 v12, s32, v12
    v_bfe_u32 v13, v10, 1, 1
    v_lshlrev_b32 v13, 1, v13
    v_xor_b32 v13, v13, v11
    v_lshl_add_u32 v4, v13, 4, v12
    v_xor_b32 v13, 4, v13
    v_add_u32 v12, 8192, v12
    v_lshl_add_u32 v5, v13, 4, v12
    s_lshl_b32 s52, s29, 11
    """)
    a("s_waitcnt lgkmcnt(0)")
    srd(a, 4, 24, 25, O_OFF, 2 * MB)
    srd(a, 8, 22, 23, 0, 512 * 1024)
    for c in range(8):
        if ROT:
            a("s_add_u32 s35, s26, %d" % c)
            a("s_and_b32 s35, s35, 7")
            a("s_lshl_b32 s34, s35, 7")
            a("s_lshl_b32 s35, s35, 16")
        else:
            a("s_mov_b32 s34, %d" % (128 * c))
            a("s_mov_b32 s35, %d" % (65536 * c))
        for i in range(2):
            a("s_add_u32 m0, s52, %d" % (c * K2_CH + 1024 * i))
            a("s_nop 0")
            a("buffer_load_dwordx4 v%d, s[4:7], s34 offen lds" % (2 + i))
        for i in range(2):
            a("s_add_u32 m0, s52, %d" % (c * K2_CH + 8192 + 1024 * i))
            a("s_nop 0")
            a("buffer_load_dwordx4 v%d, s[8:11], s35 offen lds" % (4 + i))
    npf = 0
    if layer == 0 and PREFETCH:
        a("s_load_dwordx4 s[56:59], s[0:1], 40")
        a("s_load_dwordx2 s[60:61], s[0:1], 56")
        a("""
        s_lshr_b32 s34, s2, 3
        s_and_b32 s34, s34, 3
        s_lshl_b32 s34, s34, 3
        s_add_u32 s34, s34, s3
        s_lshr_b32 s35, s2, 5
        s_lshl_b32 s35, s35, 2
        s_add_u32 s35, s35, s29
        v_lshrrev_b32 v10, 3, v1
        s_lshl_b32 s38, s35, 4
        v_add_u32 v10, s38, v10
        v_mul_u32_u24 v10, 3584, v10
        v_and_b32 v11, 7, v1
        v_lshl_add_u32 v10, v11, 4, v10
        s_lshl_b32 s38, s34, 7
        v_add_u32 v10, s38, v10
        s_lshl_b32 s38, s34, 16
        s_lshl_b32 s39, s35, 11
        s_add_u32 s38, s38, s39
        v_lshlrev_b32 v11, 4, v1
        v_add_u32 v11, s38, v11
        s_waitcnt lgkmcnt(0)
        """)
        srd(a, 40, 56, 57, 0, 512 * 3584)
        srd(a, 44, 58, 59, 0, 512 * 3584)
        srd(a, 48, 60, 61, 0, 1792 * 1024)
        a("s_mov_b32 s38, %d" % (8 * 3584))
        a("buffer_load_dwordx4 v[12:15], v10, s[40:43], 0 offen")
        a("buffer_load_dwordx4 v[16:19], v10, s[40:43], s38 offen")
        a("buffer_load_dwordx4 v[20:23], v10, s[44:47], 0 offen")
        a("buffer_load_dwordx4 v[24:27], v10, s[44:47], s38 offen")
        a("buffer_load_dwordx4 v[28:31], v11, s[48:51], 0 offen")
        a("buffer_load_dwordx4 v[32:35], v11, s[48:51], 0 offen offset:1024")
        npf = 6
    for j in range(4):
        a("s_waitcnt vmcnt(%d)" % (8 * (3 - j) + npf))
        a("s_barrier")
    a("s_endpgm")
    a.label("L_%s_mm" % name)
    a("""
    s_lshr_b32 s30, s29, 1
    s_and_b32 s31, s29, 1
    v_and_b32 v10, 15, v1
    v_lshrrev_b32 v11, 4, v1
    v_bfe_u32 v12, v10, 1, 3
    v_xor_b32 v12, v12, v11
    v_lshlrev_b32 v12, 4, v12
    v_lshl_add_u32 v16, v10, 7, v12
    s_lshl_b32 s34, s30, 12
    v_add_u32 v16, s34, v16
    v_xor_b32 v17, 64, v16
    v_add_u32 v18, 65536, v16
    v_add_u32 v19, 65536, v17
    v_bfe_u32 v10, v1, 2, 2
    v_lshl_add_u32 v12, v11, 3, v10
    v_lshlrev_b32 v12, 7, v12
    v_lshrrev_b32 v13, 1, v10
    v_and_b32 v14, 1, v11
    v_lshl_or_b32 v13, v14, 1, v13
    s_lshl_b32 s34, s31, 1
    v_xor_b32 v13, s34, v13
    v_and_b32 v14, 3, v1
    v_lshl_add_u32 v12, v14, 3, v12
    v_add_u32 v12, 8192, v12
    v_lshl_add_u32 v20, v13, 5, v12
    v_xor_b32 v13, 1, v13
    v_lshl_add_u32 v21, v13, 5, v12
    v_add_u32 v22, 65536, v20
    v_add_u32 v23, 65536, v21
    """)
    a("""
    s_lshl_b32 s34, s27, 6
    s_lshl_b32 s35, s30, 5
    s_add_u32 s34, s34, s35
    v_and_b32 v2, 15, v1
    v_add_u32 v2, s34, v2
    v_lshlrev_b32 v2, 10, v2
    v_lshrrev_b32 v10, 4, v1
    v_lshlrev_b32 v10, 3, v10
    s_lshl_b32 s35, s28, 7
    s_lshl_b32 s38, s31, 6
    s_add_u32 s35, s35, s38
    v_add_u32 v13, s35, v10
    v_add_u32 v9, v2, v13
    v_add_u32 v12, 0x4000, v9
    """)
    a("s_waitcnt lgkmcnt(0)")
    if layer == 0:
        srd(a, 12, 20, 21, 0, 2 * MB)
    else:
        srd(a, 12, 24, 25, X2_OFF, 2 * MB)
    srd(a, 16, 24, 25, X1_OFF, 2 * MB)
    srd(a, 40, 24, 25, ST_OFF[layer], 32768)
    srd(a, 44, 36, 37, 0, 1024)
    for ti, vo in enumerate((9, 12)):
        for ct in range(2):
            a("buffer_load_dwordx2 %s, v%d, s[12:15], 0 offen offset:%d" % (vr(48 + 4 * ti + 2 * ct, 2), vo, 32 * ct))
    for ct in range(2):
        a("buffer_load_dwordx2 %s, v13, s[44:47], 0 offen offset:%d" % (vr(56 + 2 * ct, 2), 32 * ct))
    FR = [96, 112]

    def reads(s):
        c, sp = s >> 1, s & 1
        hi = 2 if c >= 4 else 0
        co = (c & 3) * K2_CH
        F = FR[s & 1]
        o = []
        for ct in range(2):
            o.append("ds_read_b64_tr_b16 %s, v%d offset:%d" % (vr(F + 8 + 4 * ct, 2), 20 + ct + hi, co + sp * 4096))
            o.append("ds_read_b64_tr_b16 %s, v%d offset:%d" % (vr(F + 10 + 4 * ct, 2), 20 + ct + hi, co + sp * 4096 + 512))
        for t in range(2):
            o.append("ds_read_b128 %s, v%d offset:%d" % (vr(F + 4 * t, 4), 16 + sp + hi, co + t * 2048))
        return o

    for s in range(16):
        if (s & 3) == 0:
            a("s_barrier")
            for x in reads(s):
                a(x)
        a("s_waitcnt lgkmcnt(0)")
        fill = reads(s + 1) if (s & 3) != 3 else []
        F = FR[s & 1]
        fi = 0
        for ti in range(2):
            for ct in range(2):
                acc = 32 + 4 * (2 * ti + ct)
                a("v_mfma_f32_16x16x32_bf16 %s, %s, %s, %s" % (vr(acc, 4), vr(F + 8 + 4 * ct, 4), vr(F + 4 * ti, 4), "0" if s == 0 else vr(acc, 4)))
                for _ in range(2):
                    if fi < len(fill):
                        a(fill[fi]); fi += 1
    a("s_waitcnt vmcnt(0)")
    a("s_nop 7")
    for ct in range(2):
        for j in range(2):
            a("v_lshlrev_b32 v%d, 16, v%d" % (64 + 4 * ct + 2 * j, 56 + 2 * ct + j))
            a("v_and_b32 v%d, 0xffff0000, v%d" % (65 + 4 * ct + 2 * j, 56 + 2 * ct + j))
    for ti in range(2):
        S, Q, D = 80 + 4 * ti, 81 + 4 * ti, 82 + 4 * ti
        for ct in range(2):
            acc = 32 + 4 * (2 * ti + ct)
            xr = 48 + 4 * ti + 2 * ct
            for j in range(2):
                a("v_cvt_pk_bf16_f32 v72, v%d, v%d" % (acc + 2 * j, acc + 2 * j + 1))
                a("v_lshlrev_b32 v73, 16, v72")
                a("v_and_b32 v74, 0xffff0000, v72")
                a("v_lshlrev_b32 v75, 16, v%d" % (xr + j))
                a("v_and_b32 v76, 0xffff0000, v%d" % (xr + j))
                a("v_add_f32 v73, v73, v75")
                a("v_add_f32 v74, v74, v76")
                a("v_cvt_pk_bf16_f32 v%d, v73, v74" % (xr + j))
                a("v_lshlrev_b32 v73, 16, v%d" % (xr + j))
                a("v_and_b32 v74, 0xffff0000, v%d" % (xr + j))
                w0, w1 = 64 + 4 * ct + 2 * j, 65 + 4 * ct + 2 * j
                if ct == 0 and j == 0:
                    a("v_add_f32 v%d, v73, v74" % S)
                    a("v_mul_f32 v%d, v73, v73" % Q)
                    a("v_mul_f32 v%d, v73, v%d" % (D, w0))
                else:
                    a("v_add_f32 v%d, v%d, v73" % (S, S))
                    a("v_add_f32 v%d, v%d, v74" % (S, S))
                    a("v_fma_f32 v%d, v73, v73, v%d" % (Q, Q))
                    a("v_fma_f32 v%d, v73, v%d, v%d" % (D, w0, D))
                a("v_fma_f32 v%d, v74, v74, v%d" % (Q, Q))
                a("v_fma_f32 v%d, v74, v%d, v%d" % (D, w1, D))
            a("buffer_store_dwordx2 %s, v%d, s[16:19], 0 offen offset:%d" % (vr(xr, 2), (9, 12)[ti], 32 * ct))
    bfly(a, "v_add_f32", [80, 81, 82, 84, 85, 86], [88, 89, 90, 91, 92, 93])
    a("""
    v_lshrrev_b32 v88, 4, v1
    v_cmp_eq_u32 s[48:49], 1, v88
    v_cmp_eq_u32 s[50:51], 2, v88
    v_cmp_eq_u32 s[52:53], 3, v88
    v_lshrrev_b32 v89, 8, v2
    v_lshl_add_u32 v89, v88, 13, v89
    v_add_u32 v90, 64, v89
    """)
    for ti in range(2):
        S = 80 + 4 * ti
        a("v_cndmask_b32 v%d, v%d, v%d, s[48:49]" % (S, S, S + 1))
        a("v_cndmask_b32 v%d, v%d, v%d, s[50:51]" % (S, S, S + 2))
    a("s_andn2_b64 exec, exec, s[52:53]")
    for ti in range(2):
        S = 80 + 4 * ti
        a("buffer_atomic_add_f32 v%d, v%d, s[40:43], 0 offen" % (S, 89 + ti))
    a.label("L_%s_end" % name)
    a("s_endpgm")
    return name, a.text() + kdesc(name, 128, 0)


SLAB_OFF = [8 * MB, 8 * MB + 524288]
K3_G = 0
K3_U = 65536
K3_MS2 = 131072
K3_XS2 = K3_MS2 + 16384
K3_H = K3_XS2 + 8 * 1040 + 64
K3_HP = 144
K3_CAND2 = K3_H + 16 * K3_HP
K3_SEL2 = K3_CAND2 + 128
K3_FLG = K3_SEL2 + 128
K3_LDS2 = K3_FLG + 64
K3_WDP = 1056


def norm_pair(a, src, vm, vinv, mode, T=50):
    a("v_lshlrev_b32 v%d, 16, v%d" % (T, src))
    a("v_and_b32 v%d, 0xffff0000, v%d" % (T + 1, src))
    a("v_sub_f32 v%d, v%d, v%d" % (T + 2, T, vm))
    a("v_sub_f32 v%d, v%d, v%d" % (T + 3, T + 1, vm))
    a("v_cvt_pk_bf16_f32 v%d, v%d, v%d" % (T + 4, T + 2, T + 3))
    a("v_lshlrev_b32 v%d, 16, v%d" % (T + 2, T + 4))
    a("v_and_b32 v%d, 0xffff0000, v%d" % (T + 3, T + 4))
    a("v_mul_f32 v%d, v%d, v%d" % (T + 2, T + 2, vinv))
    a("v_mul_f32 v%d, v%d, v%d" % (T + 3, T + 3, vinv))
    if mode == "xn":
        a("v_cvt_pk_bf16_f32 v%d, v%d, v%d" % (src, T + 2, T + 3))
    else:
        a("v_cvt_pk_bf16_f32 v%d, v%d, v%d" % (T + 4, T + 2, T + 3))
        a("v_lshlrev_b32 v%d, 16, v%d" % (T + 2, T + 4))
        a("v_and_b32 v%d, 0xffff0000, v%d" % (T + 3, T + 4))
        a("v_add_f32 v%d, v%d, v%d" % (T + 2, T + 2, T))
        a("v_add_f32 v%d, v%d, v%d" % (T + 3, T + 3, T + 1))
        a("v_cvt_pk_bf16_f32 v%d, v%d, v%d" % (src, T + 2, T + 3))


def gen_k3(layer):
    a = Asm()
    name = "k3l%d_kernel" % layer
    khead(a, name)
    a("s_cmp_ge_u32 s2, 256")
    a("s_cbranch_scc1 L_%s_end" % name)
    a("s_load_dwordx4 s[20:23], s[0:1], 32")
    a("s_load_dwordx4 s[28:31], s[0:1], 48")
    a("s_load_dwordx2 s[24:25], s[0:1], 80")
    a("s_load_dwordx2 s[26:27], s[0:1], 64")
    a("s_load_dwordx2 s[64:65], s[0:1], 72")
    a("""
    v_lshrrev_b32 v1, 6, v0
    s_nop 0
    v_readfirstlane_b32 s33, v1
    v_and_b32 v1, 63, v0
    s_lshl_b32 s32, s2, 7
    s_mov_b32 s56, 0x%x
    s_mov_b32 s57, 0x%x
    s_mov_b32 s58, 0x%x
    s_cmp_lt_u32 s33, 4
    s_cbranch_scc1 L_%s_mm
    """ % (f2u(1.0 / 512), f2u(1e-5), ONES_BF, name))
    sc = {"r512": 56, "eps": 57}
    a("s_sub_u32 s33, s33, 4")
    a("v_and_b32 v0, 255, v0")
    a("s_waitcnt lgkmcnt(0)")
    srd(a, 4, 24, 25, ST_OFF[layer], 32768)
    srd(a, 8, 24, 25, X1_OFF, 2 * MB)
    if layer == 0:
        srd(a, 12, 24, 25, X2_OFF, 2 * MB)
    else:
        srd(a, 12, 26, 27, 0, 2 * MB)
    srd(a, 48, 64, 65, 0, 256)
    a("""
    s_and_b32 s35, s2, 7
    s_lshl_b32 s35, s35, 5
    s_lshr_b32 s34, s2, 3
    s_add_u32 s35, s35, s34
    s_lshl_b32 s34, s35, 13
    v_lshlrev_b32 v4, 4, v0
    v_add_u32 v4, s34, v4
    v_add_u32 v5, 4096, v4
    s_lshl_b32 s34, s35, 3
    s_add_u32 s34, s34, s33
    s_lshl_b32 s34, s34, 2
    v_mov_b32 v6, s34
    s_mov_b32 s34, 8192
    buffer_load_dword v8, v6, s[4:7], 0 offen
    buffer_load_dword v9, v6, s[4:7], s34 offen
    buffer_load_dword v12, v6, s[4:7], 0 offen offset:16
    buffer_load_dword v13, v6, s[4:7], s34 offen offset:16
    buffer_load_dwordx4 v[100:103], v4, s[8:11], 0 offen
    buffer_load_dwordx4 v[104:107], v5, s[8:11], 0 offen
    """)
    a("s_cmp_ge_u32 s2, 28")
    a("s_cbranch_scc1 L_%s_x2only" % name)
    a("s_barrier")
    srd(a, 36, 22, 23, 0, 512 * 3584)
    srd(a, 40, 28, 29, 0, 512 * 3584)
    srd(a, 44, 30, 31, 0, 1792 * 1024)
    a("""
    v_lshrrev_b32 v20, 3, v1
    v_and_b32 v21, 7, v1
    s_lshl_b32 s35, s33, 7
    v_add_u32 v22, s35, v20
    v_mul_u32_u24 v22, 3584, v22
    v_add_u32 v22, s32, v22
    v_bfe_u32 v23, v20, 1, 1
    v_lshlrev_b32 v23, 1, v23
    v_xor_b32 v23, v23, v21
    v_lshl_add_u32 v2, v23, 4, v22
    v_xor_b32 v23, 4, v23
    v_lshl_add_u32 v3, v23, 4, v22
    s_lshl_b32 s52, s33, 14
    """)
    for i in range(16):
        a("s_mov_b32 s34, %d" % (8 * i * 3584))
        a("s_add_u32 m0, s52, %d" % (K3_G + 1024 * i))
        a("s_nop 0")
        a("buffer_load_dwordx4 v%d, s[36:39], s34 offen lds" % (2 + (i & 1)))
        a("s_add_u32 m0, s52, %d" % (K3_U + 1024 * i))
        a("s_nop 0")
        a("buffer_load_dwordx4 v%d, s[40:43], s34 offen lds" % (2 + (i & 1)))
        if THR and i >= THR // 2:
            a("s_waitcnt vmcnt(%d)" % THR)
    a("""
    s_lshl_b32 s34, s2, 16
    s_lshl_b32 s35, s33, 14
    s_add_u32 s34, s34, s35
    v_lshlrev_b32 v7, 4, v1
    v_add_u32 v7, s34, v7
    """)
    for i in range(16):
        a("s_mov_b32 s34, %d" % (1024 * i))
        a("buffer_load_dwordx4 %s, v7, s[44:47], s34 offen" % vr(112 + 4 * i, 4))
        if THR:
            a("s_waitcnt vmcnt(%d)" % THR)
    def x2_block():
        ln_finalize(a, 8, 9, 40, 41, 42, sc)
        ln_finalize(a, 12, 13, 43, 44, 45, sc)
        for r in range(4):
            norm_pair(a, 100 + r, 40, 41, "x2")
        a("buffer_store_dwordx4 v[100:103], v4, s[12:15], 0 offen")
        for r in range(4):
            norm_pair(a, 104 + r, 43, 44, "x2")
        a("buffer_store_dwordx4 v[104:107], v5, s[12:15], 0 offen")

    a("s_branch L_%s_ffnl" % name)
    a.label("L_%s_x2only" % name)
    a("s_waitcnt vmcnt(0)")
    x2_block()
    a("s_endpgm")
    a.label("L_%s_ffnl" % name)
    a("s_waitcnt vmcnt(16)")
    a("s_barrier")
    x2_block()
    a("""
    s_mul_i32 s34, s33, %d
    v_lshlrev_b32 v7, 4, v1
    v_add_u32 v7, s34, v7
    """ % (16 * K3_WDP))
    a("s_waitcnt vmcnt(2)")
    a("s_barrier")
    for i in range(16):
        pos = (i & 3) | ((i & 4) << 1) | ((i & 8) >> 1)
        a("ds_write_b128 v7, %s offset:%d" % (vr(112 + 4 * i, 4), K3_G + pos * K3_WDP))
    a("s_waitcnt lgkmcnt(0)")
    a("s_barrier")
    a("s_endpgm")
    a.label("L_%s_mm" % name)
    a("s_cmp_ge_u32 s2, 28")
    a("s_cbranch_scc1 L_%s_end" % name)
    a("""
    s_lshl_b32 s34, s33, 2
    v_mov_b32 v2, s34
    v_add_u32 v2, %d, v2
    v_mov_b32 v3, 0
    ds_write_b32 v2, v3
    """ % K3_FLG)
    a("s_setprio 3")
    a("s_waitcnt lgkmcnt(0)")
    a("s_barrier")
    srd(a, 4, 24, 25, ST_OFF[layer], 32768)
    srd(a, 8, 24, 25, X1_OFF, 2 * MB)
    srd(a, 16, 20, 21, 0, 1024)
    srd(a, 44, 24, 25, SEL_OFF[layer], 64)
    srd(a, 48, 24, 25, XS_OFF[layer], 8192)
    srd(a, 52, 24, 25, SLAB_OFF[layer], 28 * 16384)
    a("v_lshlrev_b32 v2, 5, v0")
    a("s_mov_b32 s34, 8192")
    a("s_mov_b32 s35, 16384")
    for q, so in enumerate(("0", "s34", "s35")):
        for h in range(2):
            a("buffer_load_dwordx4 %s, v2, s[4:7], %s offen offset:%d" % (vr(64 + 8 * q + 4 * h, 4), so, 16 * h))
    a("v_lshlrev_b32 v3, 4, v1")
    a("buffer_load_dwordx4 v[96:99], v3, s[16:19], 0 offen")
    if DRY:
        a("s_mov_b32 s99, 0")
        a("s_mov_b64 exec, 0")
        a("s_branch L_%s_r1" % name)
        a.label("L_%s_r0" % name)
    a("s_waitcnt vmcnt(0)")
    a.label("L_%s_r1" % name)
    a("v_mov_b32 v8, 0")
    for r in range(4):
        a("v_dot2_f32_bf16 v8, v%d, s58, v8" % (96 + r))
    a("s_nop 2")
    for sh in (1, 2, 4, 8):
        a("v_add_f32_dpp v8, v8, v8 row_ror:%d row_mask:0xf bank_mask:0xf" % sh)
        a("s_nop 1")
    bfly(a, "v_add_f32", [8], [9])
    a("v_lshlrev_b32 v10, 5, v0")
    a("v_lshlrev_b32 v11, 3, v0")
    a("v_sub_u32 v11, 2047, v11")
    a("v_add_u32 v10, %d, v10" % K3_MS2)
    a("s_mov_b32 s59, 0xffff0000")
    a("v_mov_b32 v9, v8")
    a("v_mov_b32 v2, s56")
    a("v_mov_b32 v3, s56")
    a("v_mov_b32 v4, s57")
    a("v_mov_b32 v5, s57")

    P4 = range(4)
    S = lambda p: 64 + 2 * p
    Q = lambda p: 72 + 2 * p
    D = lambda p: 80 + 2 * p
    T = lambda p: 88 + p
    U = lambda p: 92 + p

    def stage(fn):
        for p in P4:
            for x in fn(p):
                a(x)
    unp = lambda src, lo: ["v_lshlrev_b32 v%d, 16, v%d" % (lo, src), "v_and_b32 v%d, s59, v%d" % (lo + 1, src)]
    stage(lambda p: ["v_pk_mul_f32 %s, %s, v[2:3]" % (vr(S(p), 2), vr(S(p), 2)), "v_pk_mul_f32 %s, %s, v[2:3]" % (vr(Q(p), 2), vr(Q(p), 2))])
    stage(lambda p: ["v_pk_fma_f32 %s, %s, %s, %s neg_lo:[1,0,0] neg_hi:[1,0,0]" % (vr(Q(p), 2), vr(S(p), 2), vr(S(p), 2), vr(Q(p), 2)),
                     "v_cvt_pk_bf16_f32 v%d, v%d, v%d" % (T(p), S(p), S(p) + 1)])
    stage(lambda p: ["v_max_f32 v%d, 0, v%d" % (Q(p), Q(p)), "v_max_f32 v%d, 0, v%d" % (Q(p) + 1, Q(p) + 1)] + unp(T(p), S(p)))
    stage(lambda p: ["v_cvt_pk_bf16_f32 v%d, v%d, v%d" % (U(p), Q(p), Q(p) + 1),
                     "v_pk_fma_f32 %s, %s, v[8:9], %s neg_lo:[1,0,0] neg_hi:[1,0,0]" % (vr(D(p), 2), vr(S(p), 2), vr(D(p), 2))])
    stage(lambda p: unp(U(p), Q(p)))
    stage(lambda p: ["v_pk_add_f32 %s, %s, v[4:5]" % (vr(Q(p), 2), vr(Q(p), 2))])
    stage(lambda p: ["v_cvt_pk_bf16_f32 v%d, v%d, v%d" % (U(p), Q(p), Q(p) + 1)])
    stage(lambda p: unp(U(p), Q(p)))
    stage(lambda p: ["v_sqrt_f32 v%d, v%d" % (Q(p), Q(p)), "v_sqrt_f32 v%d, v%d" % (Q(p) + 1, Q(p) + 1)])
    a("s_nop 0")
    stage(lambda p: ["v_cvt_pk_bf16_f32 v%d, v%d, v%d" % (U(p), Q(p), Q(p) + 1)])
    stage(lambda p: unp(U(p), Q(p)))
    stage(lambda p: ["v_rcp_f32 v%d, v%d" % (Q(p), Q(p)), "v_rcp_f32 v%d, v%d" % (Q(p) + 1, Q(p) + 1)])
    a("s_nop 0")
    stage(lambda p: ["v_pk_mul_f32 %s, %s, %s" % (vr(D(p), 2), vr(D(p), 2), vr(Q(p), 2))])
    stage(lambda p: ["v_cvt_pk_bf16_f32 v%d, v%d, v%d" % (U(p), D(p), D(p) + 1)])
    stage(lambda p: unp(U(p), D(p)))
    stage(lambda p: ["v_ashrrev_i32 v%d, 31, v%d" % (20 + 2 * p + h, D(p) + h) for h in range(2)])
    stage(lambda p: ["v_or_b32 v%d, 0x80000000, v%d" % (20 + 2 * p + h, 20 + 2 * p + h) for h in range(2)])
    stage(lambda p: ["v_xor_b32 v%d, v%d, v%d" % (D(p) + h, D(p) + h, 20 + 2 * p + h) for h in range(2)])
    stage(lambda p: ["v_subrev_u32 v%d, %d, v11" % (20 + 2 * p + h, 2 * p + h) for h in range(2)])
    stage(lambda p: ["v_and_or_b32 v%d, v%d, s59, v%d" % (20 + 2 * p + h, D(p) + h, 20 + 2 * p + h) for h in range(2)])
    net = [(0, 1), (2, 3), (4, 5), (6, 7), (0, 2), (1, 3), (4, 6), (5, 7), (1, 2), (5, 6),
           (0, 4), (1, 5), (2, 6), (3, 7), (2, 4), (3, 5), (1, 2), (3, 4), (5, 6)]
    layers = [net[0:4], net[4:8], net[8:10], net[10:14], net[14:16], net[16:19]]
    for lay in layers:
        for q, (i, j) in enumerate(lay):
            a("v_max_u32 v%d, v%d, v%d" % (88 + q, 20 + i, 20 + j))
        for q, (i, j) in enumerate(lay):
            a("v_min_u32 v%d, v%d, v%d" % (20 + j, 20 + i, 20 + j))
        for q, (i, j) in enumerate(lay):
            a("v_mov_b32 v%d, v%d" % (20 + i, 88 + q))
    if DRY:
        a("s_cmp_eq_u32 s99, 0")
        a("s_cbranch_scc0 L_%s_r2" % name)
        a("s_mov_b32 s99, 1")
        a("s_mov_b64 exec, -1")
        a("s_branch L_%s_r0" % name)
        a.label("L_%s_r2" % name)
    a("v_mov_b32 v30, 0")
    a("v_mov_b32 v31, 0")
    a("s_mov_b32 s34, 0")
    a.label("L_%s_rd" % name)
    a("v_mov_b32 v12, v20")
    a("s_nop 1")
    for sh in (1, 2, 4, 8):
        a("v_max_u32_dpp v12, v12, v12 row_ror:%d row_mask:0xf bank_mask:0xf" % sh)
        a("s_nop 1")
    bfly(a, "v_max_u32", [12], [13])
    a("v_cmp_eq_u32 vcc, v12, v20")
    a("v_cmp_eq_u32 s[60:61], s34, v1")
    a("s_add_u32 s34, s34, 1")
    for i in range(7):
        a("v_cndmask_b32 v%d, v%d, v%d, vcc" % (20 + i, 20 + i, 21 + i))
    a("v_cndmask_b32 v27, v27, v31, vcc")
    a("v_cndmask_b32 v30, v30, v12, s[60:61]")
    a("s_cmp_lt_u32 s34, 8")
    a("s_cbranch_scc1 L_%s_rd" % name)
    a("ds_write_b128 v10, v[64:67]")
    a("ds_write_b128 v10, v[68:71] offset:16")
    a("ds_write_b128 v10, v[72:75] offset:8192")
    a("ds_write_b128 v10, v[76:79] offset:8208")
    a("""
    s_lshl_b32 s34, s33, 5
    v_lshlrev_b32 v12, 2, v1
    v_add_u32 v12, s34, v12
    v_add_u32 v12, %d, v12
    v_cmp_gt_u32 vcc, 8, v1
    s_and_saveexec_b64 s[62:63], vcc
    ds_write_b32 v12, v30
    s_mov_b64 exec, s[62:63]
    s_lshl_b32 s34, s33, 2
    v_mov_b32 v12, s34
    v_add_u32 v12, %d, v12
    v_mov_b32 v13, 1
    ds_write_b32 v12, v13
    v_mov_b32 v12, %d
    """ % (K3_CAND2, K3_FLG, K3_FLG))
    a.label("L_%s_poll" % name)
    a("""
    ds_read_b128 v[32:35], v12
    s_waitcnt lgkmcnt(0)
    v_and_b32 v32, v32, v33
    v_and_b32 v34, v34, v35
    v_and_b32 v32, v32, v34
    v_cmp_eq_u32 vcc, 1, v32
    s_cbranch_vccz L_%s_poll
    """ % name)
    a("v_and_b32 v12, 31, v1")
    a("v_lshlrev_b32 v12, 2, v12")
    a("v_add_u32 v12, %d, v12" % K3_CAND2)
    a("ds_read_b32 v30, v12")
    a("v_mov_b32 v13, %d" % K3_CAND2)
    for i in range(8):
        a("ds_read_b128 %s, v13 offset:%d" % (vr(32 + 4 * i, 4), 16 * i))
    a("v_mov_b32 v14, 0")
    a("s_waitcnt lgkmcnt(0)")
    for i in range(32):
        a("v_cmp_gt_u32 vcc, v%d, v30" % (32 + i))
        a("v_addc_co_u32 v14, vcc, 0, v14, vcc")
    a("""
    v_cmp_gt_u32 vcc, 8, v14
    v_cmp_gt_u32 s[60:61], 32, v1
    s_and_b64 vcc, vcc, s[60:61]
    v_lshlrev_b32 v14, 2, v14
    v_add_u32 v14, %d, v14
    s_and_saveexec_b64 s[62:63], vcc
    ds_write_b32 v14, v30
    s_mov_b64 exec, s[62:63]
    s_waitcnt lgkmcnt(0)
    v_lshrrev_b32 v12, 5, v0
    v_lshlrev_b32 v12, 2, v12
    v_add_u32 v12, %d, v12
    ds_read_b32 v31, v12
    s_waitcnt lgkmcnt(0)
    v_and_b32 v13, 0xffff, v31
    v_sub_u32 v13, 2047, v13
    v_lshlrev_b32 v14, 10, v13
    v_and_b32 v15, 31, v0
    v_lshl_add_u32 v14, v15, 5, v14
    buffer_load_dwordx4 v[32:35], v14, s[8:11], 0 offen
    buffer_load_dwordx4 v[36:39], v14, s[8:11], 0 offen offset:16
    v_lshlrev_b32 v16, 2, v13
    v_add_u32 v16, %d, v16
    ds_read_b32 v40, v16
    ds_read_b32 v41, v16 offset:8192
    """ % (K3_SEL2, K3_SEL2, K3_MS2))
    a("""
    v_lshrrev_b32 v12, 5, v0
    v_mul_u32_u24 v12, 1040, v12
    v_lshl_add_u32 v12, v15, 5, v12
    v_add_u32 v12, %d, v12
    v_lshrrev_b32 v11, 4, v1
    v_bfe_u32 v10, v1, 2, 2
    v_lshl_add_u32 v17, v11, 3, v10
    v_lshlrev_b32 v17, 7, v17
    v_lshrrev_b32 v18, 1, v10
    v_and_b32 v19, 1, v11
    v_lshl_or_b32 v18, v19, 1, v18
    v_xor_b32 v18, s33, v18
    v_lshl_add_u32 v17, v18, 5, v17
    v_and_b32 v18, 3, v1
    v_lshl_add_u32 v8, v18, 3, v17
    v_add_u32 v9, %d, v8
    v_and_b32 v17, 7, v1
    v_mul_u32_u24 v17, 1040, v17
    v_lshl_add_u32 v17, v11, 4, v17
    v_add_u32 v17, %d, v17
    """ % (K3_XS2, K3_U, K3_XS2))
    a("v_mov_b32 v121, v14")
    a("s_waitcnt vmcnt(0) lgkmcnt(0)")
    for r in range(8):
        norm_pair(a, 32 + r, 40, 41, "xn")
    a("ds_write_b128 v12, v[32:35]")
    a("ds_write_b128 v12, v[36:39] offset:16")
    a("""
    v_and_b32 v51, 0xffff0000, v31
    v_ashrrev_i32 v50, 31, v51
    v_not_b32 v50, v50
    v_or_b32 v50, 0x80000000, v50
    v_xor_b32 v51, v51, v50
    v_and_b32 v51, 0xffff0000, v51
    v_mul_f32 v52, 0x%x, v51
    v_exp_f32 v52, v52
    s_nop 0
    v_add_f32 v52, 1.0, v52
    v_rcp_f32 v52, v52
    s_nop 0
    v_cvt_pk_bf16_f32 v52, v52, v52
    v_lshlrev_b32 v52, 16, v52
    """ % f2u(-LOG2E))
    a("s_cmp_lg_u32 s2, 0")
    a("s_cbranch_scc1 L_%s_nopub" % name)
    a("""
    v_lshlrev_b32 v12, 5, v0
    buffer_store_dwordx4 v[32:35], v12, s[48:51], 0 offen
    buffer_store_dwordx4 v[36:39], v12, s[48:51], 0 offen offset:16
    v_lshrrev_b32 v12, 5, v0
    v_lshlrev_b32 v12, 2, v12
    v_and_b32 v15, 31, v0
    v_cmp_eq_u32 vcc, 0, v15
    v_mov_b32 v53, 0x7ffffff0
    s_nop 0
    v_cndmask_b32 v12, v53, v12, vcc
    buffer_store_dword v13, v12, s[44:47], 0 offen
    buffer_store_dword v52, v12, s[44:47], 0 offen offset:32
    """)
    a.label("L_%s_nopub" % name)
    a("s_waitcnt lgkmcnt(0)")
    a("s_barrier")
    FR = [128, 140, 152, 164]

    def rd(s):
        F = FR[s & 3]
        return ["ds_read_b64_tr_b16 %s, v8 offset:%d" % (vr(F, 2), 4096 * s),
                "ds_read_b64_tr_b16 %s, v8 offset:%d" % (vr(F + 2, 2), 4096 * s + 512),
                "ds_read_b64_tr_b16 %s, v9 offset:%d" % (vr(F + 4, 2), 4096 * s),
                "ds_read_b64_tr_b16 %s, v9 offset:%d" % (vr(F + 6, 2), 4096 * s + 512),
                "ds_read_b128 %s, v17 offset:%d" % (vr(F + 8, 4), 64 * s)]
    for s_ in range(3):
        for x in rd(s_):
            a(x)
    for s_ in range(16):
        left = min(15, s_ + 2) - s_
        a("s_waitcnt lgkmcnt(%d)" % (5 * left))
        F = FR[s_ & 3]
        a("v_mfma_f32_16x16x32_bf16 v[96:99], %s, %s, %s" % (vr(F, 4), vr(F + 8, 4), "0" if s_ == 0 else "v[96:99]"))
        a("v_mfma_f32_16x16x32_bf16 v[100:103], %s, %s, %s" % (vr(F + 4, 4), vr(F + 8, 4), "0" if s_ == 0 else "v[100:103]"))
        if s_ + 3 < 16:
            for x in rd(s_ + 3):
                a(x)
    a("s_barrier")
    a("s_mov_b32 s34, 0x%x" % f2u(-LOG2E))
    a("""
    v_and_b32 v10, 15, v1
    v_mul_u32_u24 v10, %d, v10
    v_lshrrev_b32 v11, 4, v1
    v_lshl_add_u32 v12, v11, 3, v10
    s_lshl_b32 s35, s33, 5
    v_add_u32 v12, s35, v12
    v_add_u32 v12, %d, v12
    v_lshl_add_u32 v13, v11, 4, v10
    v_add_u32 v13, %d, v13
    """ % (K3_HP, K3_H, K3_H))
    for r in range(4):
        rbf(a, 96 + r)
        rbf(a, 100 + r)
    for r in range(4):
        a("v_mul_f32 v%d, s34, v%d" % (104 + r, 96 + r))
        a("v_exp_f32 v%d, v%d" % (104 + r, 104 + r))
    a("s_nop 0")
    for r in range(4):
        a("v_add_f32 v%d, 1.0, v%d" % (104 + r, 104 + r))
        a("v_rcp_f32 v%d, v%d" % (104 + r, 104 + r))
    a("s_nop 0")
    for r in range(4):
        a("v_mul_f32 v%d, v%d, v%d" % (96 + r, 96 + r, 104 + r))
        rbf(a, 96 + r)
        a("v_mul_f32 v%d, v%d, v%d" % (96 + r, 96 + r, 100 + r))
    a("v_cvt_pk_bf16_f32 v96, v96, v97")
    a("v_cvt_pk_bf16_f32 v97, v98, v99")
    a("ds_write_b64 v12, v[96:97]")
    a("""
    v_lshrrev_b32 v10, 5, v1
    v_lshlrev_b32 v8, 4, v10
    v_bfe_u32 v10, v1, 4, 1
    v_lshl_add_u32 v8, v10, 2, v8
    v_bfe_u32 v10, v1, 2, 2
    v_add_u32 v8, v8, v10
    v_mul_u32_u24 v8, %d, v8
    v_and_b32 v10, 3, v1
    v_lshl_add_u32 v8, v10, 3, v8
    s_lshl_b32 s35, s33, 8
    v_add_u32 v8, s35, v8
    v_and_b32 v10, 15, v1
    v_lshlrev_b32 v14, 11, v10
    v_lshrrev_b32 v11, 4, v1
    v_lshl_add_u32 v14, v11, 4, v14
    s_lshl_b32 s35, s33, 9
    s_lshl_b32 s36, s2, 14
    s_add_u32 s35, s35, s36
    v_add_u32 v14, s35, v14
    v_cmp_gt_u32 vcc, 8, v10
    v_mov_b32 v15, 0x7ffffff0
    s_nop 0
    v_cndmask_b32 v14, v15, v14, vcc
    """ % K3_WDP)
    a("s_waitcnt lgkmcnt(0)")
    a("s_barrier")
    a("ds_read_b128 v[64:67], v13")
    a("ds_read_b128 v[68:71], v13 offset:64")
    for ct in range(8):
        for s in range(2):
            b = 128 + 8 * ct + 4 * s
            a("ds_read_b64_tr_b16 %s, v8 offset:%d" % (vr(b, 2), K3_G + 32 * s * K3_WDP + 32 * ct))
            a("ds_read_b64_tr_b16 %s, v8 offset:%d" % (vr(b + 2, 2), K3_G + (32 * s + 8) * K3_WDP + 32 * ct))
    a("s_waitcnt lgkmcnt(0)")
    for ct in range(8):
        b = 128 + 8 * ct
        a("v_mfma_f32_16x16x32_bf16 %s, %s, v[64:67], 0" % (vr(72 + 4 * ct, 4), vr(b, 4)))
        a("v_mfma_f32_16x16x32_bf16 %s, %s, v[68:71], %s" % (vr(72 + 4 * ct, 4), vr(b + 4, 4), vr(72 + 4 * ct, 4)))
    a("s_nop 7")
    for ct in range(8):
        a("buffer_store_dwordx4 %s, v14, s[52:55], 0 offen offset:%d" % (vr(72 + 4 * ct, 4), 64 * ct))
    a.label("L_%s_end" % name)
    a("s_endpgm")
    return name, a.text() + kdesc(name, 192, 0)


def gen_k4(layer):
    a = Asm()
    name = "k4l%d_kernel" % layer
    khead(a, name)
    a("s_cmp_ge_u32 s2, 8")
    a("s_cbranch_scc1 L_%s_end" % name)
    a("s_load_dwordx2 s[24:25], s[0:1], 80")
    a("s_load_dwordx2 s[26:27], s[0:1], 64")
    a("s_waitcnt lgkmcnt(0)")
    srd(a, 4, 24, 25, SLAB_OFF[layer], 28 * 16384)
    srd(a, 8, 24, 25, X1_OFF, 2 * MB)
    if layer == 0:
        srd(a, 12, 24, 25, X2_OFF, 2 * MB)
    else:
        srd(a, 12, 26, 27, 0, 2 * MB)
    srd(a, 16, 24, 25, SEL_OFF[layer], 64)
    srd(a, 20, 24, 25, XS_OFF[layer], 8192)
    a("""
    s_lshl_b32 s3, s2, 2
    v_mov_b32 v2, s3
    buffer_load_dword v3, v2, s[16:19], 0 offen
    buffer_load_dword v4, v2, s[16:19], 0 offen offset:32
    s_lshl_b32 s3, s2, 10
    v_lshlrev_b32 v5, 2, v0
    v_add_u32 v6, s3, v5
    buffer_load_dword v7, v6, s[20:23], 0 offen
    s_lshl_b32 s3, s2, 11
    v_lshlrev_b32 v8, 3, v0
    v_add_u32 v8, s3, v8
    """)
    for p in range(28):
        a("s_mov_b32 s3, %d" % (16384 * p))
        a("buffer_load_dwordx2 %s, v8, s[4:7], s3 offen" % vr(16 + 2 * p, 2))
    a("s_waitcnt vmcnt(30)")
    a("v_lshl_add_u32 v9, v3, 10, v5")
    a("buffer_load_dword v10, v9, s[8:11], 0 offen")
    a("s_waitcnt vmcnt(1)")
    for p in range(1, 28):
        a("v_add_f32 v16, v16, v%d" % (16 + 2 * p))
        a("v_add_f32 v17, v17, v%d" % (17 + 2 * p))
    a("""
    v_cvt_pk_bf16_f32 v40, v16, v17
    v_lshlrev_b32 v41, 16, v40
    v_and_b32 v42, 0xffff0000, v40
    v_mul_f32 v41, v41, v4
    v_mul_f32 v42, v42, v4
    v_cvt_pk_bf16_f32 v40, v41, v42
    v_lshlrev_b32 v41, 16, v40
    v_and_b32 v42, 0xffff0000, v40
    v_lshlrev_b32 v43, 16, v7
    v_and_b32 v44, 0xffff0000, v7
    v_add_f32 v41, v41, v43
    v_add_f32 v42, v42, v44
    v_cvt_pk_bf16_f32 v40, v41, v42
    v_lshlrev_b32 v41, 16, v40
    v_and_b32 v42, 0xffff0000, v40
    s_waitcnt vmcnt(0)
    v_lshlrev_b32 v43, 16, v10
    v_and_b32 v44, 0xffff0000, v10
    v_add_f32 v41, v41, v43
    v_add_f32 v42, v42, v44
    v_cvt_pk_bf16_f32 v40, v41, v42
    buffer_store_dword v40, v9, s[12:15], 0 offen
    """)
    a.label("L_%s_end" % name)
    a("s_endpgm")
    return name, a.text() + kdesc(name, 80, 0)


def build_parts():
    parts = []
    launches = []
    for layer in range(2):
        for g, grid, blk, lds in ((gen_k1, 256, 512, K1_LDS2), (gen_k2, 256, 512, K2_LDS2), (gen_k3, 256, 512, K3_LDS2), (gen_k4, 8, 256, 0)):
            n, t = g(layer)
            parts.append(t)
            launches.append("; @launch kernel=%s grid=(%d,1,1) block=(%d,1,1) lds=%d" % (n, grid, blk, lds))
    return parts, launches


def main(out):
    parts, launches = build_parts()
    txt = HEADER + "\n".join(launches) + "\n" + '.amdgcn_target "amdgcn-amd-amdhsa--gfx950"\n' + "\n".join(parts)
    open(out, "w").write(txt)


if __name__ == "__main__":
    main(sys.argv[1] if len(sys.argv) > 1 else "interleave_layers__sliding_local_dilated__moe_arch_mod__prompt.s")
```
